```python
import torch

def _softmax(x, axis=-1):
    return torch.softmax(x, dim=axis)
def _gelu(x):
    return torch.nn.functional.gelu(x, approximate="tanh")
def _silu(x):
    return torch.nn.functional.silu(x)
def _sigmoid(x):
    return torch.sigmoid(x)
def _layernorm(x, axis=-1, eps=1e-5):
    m = x.mean(dim=axis, keepdim=True)
    v = x.var(dim=axis, keepdim=True, unbiased=False)
    return (x - m) / torch.sqrt(v + eps)
def _scatter_add(tgt, idx, src, axis=0):
    return tgt.clone().index_add_(axis, idx, src)
def _segment_sum(src, seg, n):
    out = torch.zeros((n,) + src.shape[1:], dtype=src.dtype)
    return out.index_add_(0, seg, src)
def _pad(x, pw):
    flat = tuple(v for pair in reversed(pw) for v in pair)
    return torch.nn.functional.pad(x, flat)

kernel_name = 'parallel_sum__gqa_block_cached__dense_activation_squared_relu__decode'

def setup_inputs():

    _w = (lambda a: (lambda t: t.to(torch.bfloat16) if t.is_floating_point() else t)(torch.as_tensor(a)))
    def _A_setup():
        B, Sq, D = 8, 1, 512
        Hq, Hkv, Sk, Dh = 32, 32, 4096, 128
        assert Hq % Hkv == 0, (Hq, Hkv)
        return {
            "x": _w((lambda *s: torch.randn(*s, dtype=torch.bfloat16) * 0.05)(B, Sq, D)),
            "k_cache": _w((lambda *s: torch.randn(*s, dtype=torch.bfloat16) * 1.6)(B, Hkv, Sk, Dh)),
            "v_cache": _w((lambda *s: torch.randn(*s, dtype=torch.bfloat16) * 3.2)(B, Hkv, Sk, Dh)),
            "wq": _w((lambda *s: torch.randn(*s, dtype=torch.bfloat16) * 1.6)(D, Hq * Dh) * (D ** -0.5)),
            "wo": _w((lambda *s: torch.randn(*s, dtype=torch.bfloat16) * 3.2)(Hq * Dh, D) * ((Hq * Dh) ** -0.5)),
        }
    _A_in = _A_setup()

    def _B_setup():
        B, S, D, F = 8, 1, 512, 1376
        return {
            "x": _w((lambda *s: torch.randn(*s, dtype=torch.bfloat16) * 0.05)(B, S, D)),
            "w1": _w((lambda *s: torch.randn(*s, dtype=torch.bfloat16) * 0.05)(D, F)),
            "b1": _w((lambda *s: torch.randn(*s, dtype=torch.bfloat16) * 0.4)(F)),
            "w2": _w((lambda *s: torch.randn(*s, dtype=torch.bfloat16) * 0.05)(F, D)),
            "b2": _w((lambda *s: torch.randn(*s, dtype=torch.bfloat16) * 1.6)(D)),
        }
    _B_in = _B_setup()

    return {
        "A_x": _A_in["x"],
        "A_k_cache": _A_in["k_cache"],
        "A_v_cache": _A_in["v_cache"],
        "A_wq": _A_in["wq"],
        "A_wo": _A_in["wo"],
        "B_x": _B_in["x"],
        "B_w1": _B_in["w1"],
        "B_b1": _B_in["b1"],
        "B_w2": _B_in["w2"],
        "B_b2": _B_in["b2"],
    }

def reference(A_x, A_k_cache, A_v_cache, A_wq, A_wo, B_x, B_w1, B_b1, B_w2, B_b2):
    def _A_ref(x, k_cache, v_cache, wq, wo):
        B, Sq, D = x.shape
        Hq, Dh = 32, 128
        Hkv = k_cache.shape[1]
        rep = Hq // Hkv
        q = (lambda x, *d: x.permute(*d))((x @ wq).reshape(B, Sq, Hq, Dh), 0, 2, 1, 3)
        k = (lambda x, n, axis: torch.repeat_interleave(x, n, dim=axis))(k_cache, rep, axis=1)
        v = (lambda x, n, axis: torch.repeat_interleave(x, n, dim=axis))(v_cache, rep, axis=1)
        scores = torch.einsum("bhqd,bhkd->bhqk", q, k) * (Dh ** -0.5)
        p = _softmax(scores, axis=-1)
        o = torch.einsum("bhqk,bhkd->bhqd", p, v)
        return (lambda x, *d: x.permute(*d))(o, 0, 2, 1, 3).reshape(B, Sq, Hq * Dh) @ wo

    def _B_ref(x, w1, b1, w2, b2):
        h = torch.einsum("bsd,df->bsf", x, w1) + b1
        zero = torch.zeros_like(h)
        r = torch.where(h > zero, h, zero)
        h = r * r
        out = torch.einsum("bsf,fd->bsd", h, w2) + b2
        return out

    x = A_x
    xn = _layernorm(x, axis=-1)
    return x + _A_ref(xn, A_k_cache, A_v_cache, A_wq, A_wo) + _B_ref(xn, B_w1, B_b1, B_w2, B_b2)
```

```python
import sys, os

NAME = "parallel_sum__gqa_block_cached__dense_activation_squared_relu__decode"
KNAME = NAME + "_kernel"

HEADER = open("cdna_kernels/" + NAME + ".s.ref").read().split("; Override launch")[0]


class G:
    def __init__(self):
        self.L = []

    def __call__(self, s):
        for line in s.strip("\n").split("\n"):
            self.L.append("  " + line.strip() if not line.strip().endswith(":") else line.strip())

    def c(self, s):
        self.L.append("  ; " + s)

    def text(self):
        return "\n".join(self.L) + "\n"


def vr(b, n=4):
    return f"v[{b}:{b+n-1}]"


def sr(b, n=4):
    return f"s[{b}:{b+n-1}]"


def gen(R=32, PRE0=8, stamps=False, pol="nt"):
    g = G()
    L_QP = 0
    L_OP = 2048
    L_ML = 4096
    L_HP = 4352
    L_FF = 5120
    L_SC = 8192
    LDS = 8192 + 16384
    sX, sK, sV, sWQ, sWO, sBX, sW1, sB1 = 4, 6, 8, 10, 12, 14, 16, 18
    sW2, sB2, sOUT, sDBG, sWS = 20, 22, 24, 26, 28
    sWAVE, sB, sH = 30, 31, 3
    SRD_A, SRD_B, SRD_PF, SRD_C = 32, 36, 40, 44
    sOFF, sIT, sT0, sT1, sT2, sT3 = 48, 49, 50, 51, 52, 53
    sM, sC0, sNCH = 54, 55, 56
    sMASKC1, sMASKC0, sEX = 58, 60, 62
    sLO32 = 64
    sST = 66
    vTID, vLANE, vS, vC = 0, 1, 2, 3
    vMASK = 4
    vOFF = 8
    vT = 10
    vA = 16
    vACC = 24
    vQ = 28
    vP = 32
    vMAX, vL, vPP, vSC, vLDS = 48, 49, 50, 51, 52
    vX = 56
    vRING = 128
    assert R * 4 <= 128
    NL = 256
    NIT = NL // R

    g(f"""
    s_cmp_ge_u32 s2, 256
    s_cbranch_scc1 L_end
    s_load_dwordx16 s[4:19], s[0:1], 0
    s_load_dwordx8 s[20:27], s[0:1], 64
    s_load_dwordx2 s[28:29], s[0:1], 96
    """)
    if stamps:
        g(f"s_memrealtime {sr(sST,2)}")
    g(f"""
    v_lshrrev_b32 v{vT}, 6, v{vTID}
    v_and_b32 v{vLANE}, 63, v{vTID}
    v_readfirstlane_b32 s{sWAVE}, v{vT}
    v_lshrrev_b32 v{vS}, 4, v{vLANE}
    v_and_b32 v{vC}, 15, v{vLANE}
    s_lshr_b32 s{sB}, s2, 5
    s_and_b32 s{sH}, s2, 31
    s_mov_b32 s{sLO32}, -1
    s_mov_b32 s{sLO32+1}, 0
    """)
    g.c("identity masks: lane m=c<8 : reg (m>>1), half (m&1)")
    g(f"""
    v_and_b32 v{vT}, 1, v{vC}
    v_lshlrev_b32 v{vT}, 4, v{vT}
    v_mov_b32 v{vT+1}, 0xffff
    v_lshlrev_b32 v{vT+1}, v{vT}, v{vT+1}
    v_lshrrev_b32 v{vT+2}, 1, v{vC}
    """)
    for t in range(4):
        g(f"""
        v_cmp_eq_u32 vcc, {t}, v{vT+2}
        s_nop 1
        v_cndmask_b32 v{vMASK+t}, 0, v{vT+1}, vcc
        """)
    g(f"""
    s_cmp_ge_u32 s{sWAVE}, 4
    s_cbranch_scc1 L_helper
    """)

    g.c("=========== streamer waves 0..3")
    g(f"""
    s_lshl_b32 s{sT0}, s{sWAVE}, 10
    v_lshlrev_b32 v{vOFF}, 4, v{vLANE}
    v_add_u32 v{vOFF}, s{sT0}, v{vOFF}
    s_lshl_b32 s{sT1}, s2, 20
    s_waitcnt lgkmcnt(0)
    s_add_u32 s{SRD_A}, s{sK}, s{sT1}
    s_addc_u32 s{SRD_A+1}, s{sK+1}, 0
    s_mov_b32 s{SRD_A+2}, 0x100000
    s_mov_b32 s{SRD_A+3}, 0x20000
    s_add_u32 s{SRD_B}, s{sV}, s{sT1}
    s_addc_u32 s{SRD_B+1}, s{sV+1}, 0
    s_mov_b32 s{SRD_B+2}, 0x100000
    s_mov_b32 s{SRD_B+3}, 0x20000
    s_mov_b32 s{SRD_PF}, s{SRD_A}
    s_mov_b32 s{SRD_PF+1}, s{SRD_A+1}
    s_mov_b32 s{SRD_PF+2}, 0x100000
    s_mov_b32 s{SRD_PF+3}, 0x20000
    s_mov_b32 s{sOFF}, 0
    """)

    def pf(b):
        g(f"buffer_load_dwordx4 {vr(vRING+4*b)}, v{vOFF}, {sr(SRD_PF)}, s{sOFF} offen {pol}")
        g(f"s_add_u32 s{sOFF}, s{sOFF}, 4096")

    for b in range(PRE0):
        pf(b)
    g("s_barrier")
    for b in range(PRE0, R):
        pf(b)
    g(f"""
    v_and_b32 v{vT}, 2, v{vC}
    v_cmp_ne_u32 {sr(sMASKC1,2)}, 0, v{vT}
    v_and_b32 v{vT}, 1, v{vC}
    v_cmp_ne_u32 {sr(sMASKC0,2)}, 0, v{vT}
    v_mov_b32 v{vMAX}, 0xff800000
    v_mov_b32 v{vL}, 0
    s_lshl_b32 s{sT0}, s{sWAVE}, 12
    s_add_u32 s{sT0}, s{sT0}, {L_SC}
    v_lshlrev_b32 v{vLDS}, 2, v{vLANE}
    v_add_u32 v{vLDS}, s{sT0}, v{vLDS}
    v_lshlrev_b32 v{vT}, 5, v{vC}
    v_mov_b32 v{vACC}, 0
    v_mov_b32 v{vACC+1}, 0
    v_mov_b32 v{vACC+2}, 0
    v_mov_b32 v{vACC+3}, 0
    s_barrier
    """)
    g.c("q = sum of 4 partials, lane (s,c) takes q[8c..8c+8)")
    tq = 64
    for j in range(4):
        g(f"ds_read_b128 {vr(tq+8*j)}, v{vT} offset:{L_QP+512*j}")
        g(f"ds_read_b128 {vr(tq+8*j+4)}, v{vT} offset:{L_QP+512*j+16}")
    g("s_waitcnt lgkmcnt(0)")
    for e in range(8):
        g(f"v_add_f32 v{tq+e}, v{tq+e}, v{tq+8+e}")
        g(f"v_add_f32 v{tq+16+e}, v{tq+16+e}, v{tq+24+e}")
    for e in range(8):
        g(f"v_add_f32 v{tq+e}, v{tq+e}, v{tq+16+e}")
    for t in range(4):
        g(f"v_cvt_pk_bf16_f32 v{vQ+t}, v{tq+2*t}, v{tq+2*t+1}")
    if stamps:
        g(f"s_memrealtime {sr(sST+2,2)}")
    g(f"""
    s_mov_b32 s{sIT}, 0
    s_mov_b32 s{sT3}, 0x3db504f3
    L_kloop:
    s_cmp_lg_u32 s{sIT}, {NIT-1}
    s_cbranch_scc1 L_knosw
    s_mov_b32 s{SRD_PF}, s{SRD_B}
    s_mov_b32 s{SRD_PF+1}, s{SRD_B+1}
    s_mov_b32 s{sOFF}, 0
    L_knosw:
    """)
    for grp in range(R // 16):
        for j in range(16):
            b = grp * 16 + j
            rb = vRING + 4 * b
            g(f"s_waitcnt vmcnt({R-1})")
            g(f"v_dot2_f32_bf16 v{vP+j}, v{rb}, v{vQ}, 0")
            for t in range(1, 4):
                g(f"v_dot2_f32_bf16 v{vP+j}, v{rb+t}, v{vQ+t}, v{vP+j}")
            pf(b)
        g.c("transposing reduction over the 16 lanes of each row")
        g("s_nop 1")
        for j in range(8):
            g(f"v_add_f32_dpp v{vP+j}, v{vP+j}, v{vP+j} row_ror:8 row_mask:0xf bank_mask:0x3")
            g(f"v_add_f32_dpp v{vP+j}, v{vP+j+8}, v{vP+j+8} row_ror:8 row_mask:0xf bank_mask:0xc")
        for j in range(4):
            g(f"v_add_f32_dpp v{vP+j}, v{vP+j}, v{vP+j} row_half_mirror row_mask:0xf bank_mask:0x5")
            g(f"v_add_f32_dpp v{vP+j}, v{vP+j+4}, v{vP+j+4} row_half_mirror row_mask:0xf bank_mask:0xa")
        g(f"v_add_f32_dpp v{vP+0}, v{vP+0}, v{vP+0} quad_perm:[2,3,0,1] row_mask:0xf bank_mask:0xf")
        g(f"v_add_f32_dpp v{vP+1}, v{vP+1}, v{vP+1} quad_perm:[2,3,0,1] row_mask:0xf bank_mask:0xf")
        g(f"v_add_f32_dpp v{vP+2}, v{vP+2}, v{vP+2} quad_perm:[2,3,0,1] row_mask:0xf bank_mask:0xf")
        g(f"v_add_f32_dpp v{vP+3}, v{vP+3}, v{vP+3} quad_perm:[2,3,0,1] row_mask:0xf bank_mask:0xf")
        g(f"v_cndmask_b32 v{vP+0}, v{vP+0}, v{vP+2}, {sr(sMASKC1,2)}")
        g(f"v_cndmask_b32 v{vP+1}, v{vP+1}, v{vP+3}, {sr(sMASKC1,2)}")
        g("s_nop 1")
        g(f"v_add_f32_dpp v{vP+0}, v{vP+0}, v{vP+0} quad_perm:[1,0,3,2] row_mask:0xf bank_mask:0xf")
        g(f"v_add_f32_dpp v{vP+1}, v{vP+1}, v{vP+1} quad_perm:[1,0,3,2] row_mask:0xf bank_mask:0xf")
        g(f"v_cndmask_b32 v{vP+0}, v{vP+0}, v{vP+1}, {sr(sMASKC0,2)}")
        g.c("score = bf16(bf16(q.k) * Dh^-0.5)")
        g(f"""
        v_cvt_pk_bf16_f32 v{vP+0}, v{vP+0}, v{vP+0}
        v_lshlrev_b32 v{vP+0}, 16, v{vP+0}
        v_mul_f32 v{vP+0}, s{sT3}, v{vP+0}
        v_cvt_pk_bf16_f32 v{vP+0}, v{vP+0}, v{vP+0}
        v_lshlrev_b32 v{vSC}, 16, v{vP+0}
        v_max_f32 v{vMAX}, v{vMAX}, v{vSC}
        ds_write_b32 v{vLDS}, v{vSC} offset:{256*grp}
        """)
    g(f"""
    v_add_u32 v{vLDS}, {256*(R//16)}, v{vLDS}
    s_add_u32 s{sIT}, s{sIT}, 1
    s_cmp_lt_u32 s{sIT}, {NIT}
    s_cbranch_scc1 L_kloop
    """)
    g.c("wave max")
    g(f"""
    v_subrev_u32 v{vLDS}, 4096, v{vLDS}
    s_nop 0
    v_max_f32_dpp v{vMAX}, v{vMAX}, v{vMAX} row_ror:8 row_mask:0xf bank_mask:0xf
    s_nop 1
    v_max_f32_dpp v{vMAX}, v{vMAX}, v{vMAX} row_ror:4 row_mask:0xf bank_mask:0xf
    s_nop 1
    v_max_f32_dpp v{vMAX}, v{vMAX}, v{vMAX} row_ror:2 row_mask:0xf bank_mask:0xf
    s_nop 1
    v_max_f32_dpp v{vMAX}, v{vMAX}, v{vMAX} row_ror:1 row_mask:0xf bank_mask:0xf
    s_nop 1
    v_max_f32_dpp v{vMAX}, v{vMAX}, v{vMAX} row_bcast:15 row_mask:0xa bank_mask:0xf
    s_nop 1
    v_max_f32_dpp v{vMAX}, v{vMAX}, v{vMAX} row_bcast:31 row_mask:0xc bank_mask:0xf
    s_waitcnt lgkmcnt(0)
    ds_read_b32 v{vSC}, v{vLDS}
    v_readlane_b32 s{sM}, v{vMAX}, 63
    s_mov_b32 s{sT3}, 0x3fb8aa3b
    s_mov_b32 s{sIT}, 0
    """)
    if stamps:
        g(f"s_memrealtime {sr(sST+4,2)}")
    g(f"""
    L_vloop:
    s_cmp_lg_u32 s{sIT}, {NIT-1}
    s_cbranch_scc1 L_vnosw
    s_mov_b32 s{SRD_PF+2}, 0
    L_vnosw:
    """)

    def mkA(dst, src, lane):
        for t in range(4):
            g(f"v_and_b32_dpp v{dst+t}, v{src}, v{vMASK+t} row_newbcast:{lane} row_mask:0xf bank_mask:0xf")

    for grp in range(R // 16):
        g(f"""
        s_waitcnt lgkmcnt(0)
        v_subrev_f32 v{vT}, s{sM}, v{vSC}
        v_mul_f32 v{vT}, s{sT3}, v{vT}
        v_exp_f32 v{vT}, v{vT}
        ds_read_b32 v{vSC}, v{vLDS} offset:{256*(grp+1)}
        v_add_f32 v{vL}, v{vL}, v{vT}
        v_cvt_pk_bf16_f32 v{vPP}, v{vT}, v{vT}
        s_nop 1
        """)
        mkA(vA, vPP, 0)
        for j in range(16):
            b = grp * 16 + j
            rb = vRING + 4 * b
            if j < 15:
                mkA(vA + 4 * ((j + 1) & 1), vPP, j + 1)
            g(f"s_waitcnt vmcnt({R-1})")
            if j == 15:
                g("s_nop 0")
            g(f"v_mfma_f32_16x16x32_bf16 {vr(vACC)}, {vr(vA+4*(j&1))}, {vr(rb)}, {vr(vACC)}")
            pf(b)
    g(f"""
    v_add_u32 v{vLDS}, {256*(R//16)}, v{vLDS}
    s_add_u32 s{sIT}, s{sIT}, 1
    s_cmp_lt_u32 s{sIT}, {NIT}
    s_cbranch_scc1 L_vloop
    """)
    if stamps:
        g(f"s_memrealtime {sr(sST+6,2)}")
    g.c("l: wave sum ; publish (m,l) and o partial")
    g(f"""
    v_add_f32_dpp v{vL}, v{vL}, v{vL} row_ror:8 row_mask:0xf bank_mask:0xf
    v_lshlrev_b32 v{vT}, 5, v{vC}
    v_lshlrev_b32 v{vT+1}, 4, v{vS}
    v_add_f32_dpp v{vL}, v{vL}, v{vL} row_ror:4 row_mask:0xf bank_mask:0xf
    v_add_u32 v{vT}, v{vT}, v{vT+1}
    s_lshl_b32 s{sT0}, s{sWAVE}, 9
    v_add_f32_dpp v{vL}, v{vL}, v{vL} row_ror:2 row_mask:0xf bank_mask:0xf
    v_add_u32 v{vT}, s{sT0}, v{vT}
    s_lshl_b32 s{sT0}, s{sWAVE}, 3
    v_add_f32_dpp v{vL}, v{vL}, v{vL} row_ror:1 row_mask:0xf bank_mask:0xf
    v_mov_b32 v{vT+2}, s{sT0}
    v_mov_b32 v{vT+4}, s{sM}
    v_add_f32_dpp v{vL}, v{vL}, v{vL} row_bcast:15 row_mask:0xa bank_mask:0xf
    s_nop 1
    v_add_f32_dpp v{vL}, v{vL}, v{vL} row_bcast:31 row_mask:0xc bank_mask:0xf
    s_mov_b64 exec, {sr(sLO32,2)}
    ds_write_b128 v{vT}, {vr(vACC)} offset:{L_OP}
    s_mov_b64 exec, -1
    v_readlane_b32 s{sT1}, v{vL}, 63
    s_nop 1
    v_mov_b32 v{vT+5}, s{sT1}
    ds_write_b64 v{vT+2}, v[{vT+4}:{vT+5}] offset:{L_ML}
    s_waitcnt lgkmcnt(0)
    s_barrier
    s_cmp_lg_u32 s{sH}, 31
    s_cbranch_scc1 L_sdone
    """)
    g.c("=========== consumer: streamer waves of the WG with h == 31 reduce batch b")
    vR = vRING
    g(f"""
    s_lshl_b32 s{sT0}, s{sB}, 16
    s_add_u32 s{SRD_C}, s{sWS}, s{sT0}
    s_addc_u32 s{SRD_C+1}, s{sWS+1}, 0
    s_mov_b32 s{SRD_C+2}, 0x10000
    s_mov_b32 s{SRD_C+3}, 0x20000
    v_lshrrev_b32 v{vT}, 5, v{vLANE}
    v_lshlrev_b32 v{vT}, 11, v{vT}
    v_and_b32 v{vT+1}, 31, v{vLANE}
    v_lshlrev_b32 v{vT+2}, 4, v{vT+1}
    v_add_u32 v{vT}, v{vT}, v{vT+2}
    s_lshl_b32 s{sT0}, s{sWAVE}, 9
    v_add_u32 v{vT}, s{sT0}, v{vT}
    s_lshl_b32 s{sT0}, s{sWAVE}, 8
    v_lshlrev_b32 v{vT+1}, 3, v{vT+1}
    v_add_u32 v{vT+1}, s{sT0}, v{vT+1}
    s_lshl_b32 s{sT0}, s{sB}, 10
    v_add_u32 v{vT+2}, s{sT0}, v{vT+1}
    global_load_dwordx2 v[{vX}:{vX+1}], v{vT+2}, {sr(sX,2)}
    global_load_dwordx2 v[{vX+2}:{vX+3}], v{vT+1}, {sr(sB2,2)}
    s_lshl_b32 s{sT0}, s{sB}, 5
    v_mov_b32 v{vT+3}, s{sT0}
    s_mov_b32 s{sIT}, 0
    L_cwait:
    global_load_dword v{vT+4}, v{vT+3}, {sr(sDBG,2)} sc1
    s_add_u32 s{sIT}, s{sIT}, 1
    s_cmp_gt_u32 s{sIT}, 0x40000
    s_cbranch_scc1 L_poll
    s_waitcnt vmcnt(0)
    v_readfirstlane_b32 s{sT1}, v{vT+4}
    s_nop 3
    s_cmp_ge_u32 s{sT1}, 32
    s_cbranch_scc0 L_cwait
    L_poll:
    s_mov_b32 s{sOFF}, 0
    """)
    for i in range(16):
        g(f"buffer_load_dwordx4 {vr(vR+4*i)}, v{vT}, {sr(SRD_C)}, s{sOFF} offen sc1")
        if i < 15:
            g(f"s_add_u32 s{sOFF}, s{sOFF}, 4096")
    g(f"v_mov_b32 v{vT+4}, 0")
    for i in range(16):
        g(f"s_waitcnt vmcnt({15-i})")
        g(f"v_max3_u32 v{vT+4}, v{vT+4}, v{vR+4*i}, v{vR+4*i+1}")
        g(f"v_max3_u32 v{vT+4}, v{vT+4}, v{vR+4*i+2}, v{vR+4*i+3}")
    g(f"""
    v_cmp_eq_u32 vcc, -1, v{vT+4}
    s_add_u32 s{sIT}, s{sIT}, 1
    s_cmp_gt_u32 s{sIT}, 0x40000
    s_cbranch_scc1 L_pdone
    s_nop 2
    s_cbranch_vccnz L_poll
    L_pdone:
    """)
    n = 16
    while n > 1:
        for i in range(n // 2):
            for e in range(4):
                g(f"v_add_f32 v{vR+4*i+e}, v{vR+4*i+e}, v{vR+4*(i+n//2)+e}")
        n //= 2
    for e in range(4):
        g(f"v_mov_b32 v{vR+4+e}, v{vR+e}")
    g("s_nop 1")
    for e in range(4):
        g(f"v_permlane32_swap_b32 v{vR+e}, v{vR+4+e}")
    g("s_nop 1")
    for e in range(4):
        g(f"v_add_f32 v{vR+e}, v{vR+e}, v{vR+4+e}")
    g.c("+ x + b2")
    for e in range(4):
        src_x = vX + (e >> 1)
        src_b = vX + 2 + (e >> 1)
        if e & 1:
            g(f"v_and_b32 v{vR+8}, 0xffff0000, v{src_x}")
            g(f"v_and_b32 v{vR+9}, 0xffff0000, v{src_b}")
        else:
            g(f"v_lshlrev_b32 v{vR+8}, 16, v{src_x}")
            g(f"v_lshlrev_b32 v{vR+9}, 16, v{src_b}")
        g(f"v_add_f32 v{vR+8}, v{vR+8}, v{vR+9}")
        g(f"v_add_f32 v{vR+e}, v{vR+e}, v{vR+8}")
    g(f"""
    v_cvt_pk_bf16_f32 v{vR+10}, v{vR+0}, v{vR+1}
    v_cvt_pk_bf16_f32 v{vR+11}, v{vR+2}, v{vR+3}
    s_mov_b64 exec, {sr(sLO32,2)}
    global_store_dwordx2 v{vT+2}, v[{vR+10}:{vR+11}], {sr(sOUT,2)}
    s_mov_b64 exec, -1
    L_sdone:
    """)
    if stamps:
        emit_stamps(g, sST, 5, sWS, sWAVE, vT, sT0, vLANE)
    g("s_endpgm")

    g.c("=========== helper waves 4..7")
    sJ = 57
    vW = 128
    vX0, vX1 = 64, 65
    vXO = 66
    g(f"""
    L_helper:
    s_sub_u32 s{sJ}, s{sWAVE}, 4
    s_lshl_b32 s{sT0}, s{sB}, 10
    v_lshlrev_b32 v{vT}, 4, v{vLANE}
    v_add_u32 v{vT}, s{sT0}, v{vT}
    s_lshl_b32 s{sT1}, s{sJ}, 8
    s_add_u32 s{sT0}, s{sT0}, s{sT1}
    v_lshlrev_b32 v{vT+1}, 2, v{vLANE}
    v_add_u32 v{vT+1}, s{sT0}, v{vT+1}
    """)
    g.c("wq voffset = (128j + 32s)*8192 + h*256 + c*16")
    g(f"""
    s_lshl_b32 s{sT0}, s{sJ}, 20
    s_lshl_b32 s{sT1}, s{sH}, 8
    s_add_u32 s{sT0}, s{sT0}, s{sT1}
    v_lshlrev_b32 v{vOFF}, 18, v{vS}
    v_lshl_add_u32 v{vOFF}, v{vC}, 4, v{vOFF}
    v_add_u32 v{vOFF}, s{sT0}, v{vOFF}
    s_waitcnt lgkmcnt(0)
    global_load_dwordx4 {vr(vX)}, v{vT}, {sr(sX,2)}
    global_load_dword v{vXO}, v{vT+1}, {sr(sX,2)}
    s_mov_b32 s{SRD_A}, s{sWQ}
    s_mov_b32 s{SRD_A+1}, s{sWQ+1}
    s_mov_b32 s{SRD_A+2}, 0x400000
    s_mov_b32 s{SRD_A+3}, 0x20000
    s_mov_b32 s{sOFF}, 0
    """)
    for t in range(32):
        g(f"buffer_load_dwordx4 {vr(vW+4*t)}, v{vOFF}, {sr(SRD_A)}, s{sOFF} offen")
        g(f"s_add_u32 s{sOFF}, s{sOFF}, 8192")
    g("s_barrier")
    g.c("sentinel into own partial slot")
    vPO = 67
    g(f"""
    s_lshl_b32 s{sT0}, s2, 11
    s_lshl_b32 s{sT1}, s{sJ}, 9
    s_add_u32 s{sT0}, s{sT0}, s{sT1}
    v_lshlrev_b32 v{vPO}, 5, v{vC}
    v_lshl_add_u32 v{vPO}, v{vS}, 4, v{vPO}
    v_add_u32 v{vPO}, s{sT0}, v{vPO}
    v_mov_b32 v{vA}, -1
    v_mov_b32 v{vA+1}, -1
    v_mov_b32 v{vA+2}, -1
    v_mov_b32 v{vA+3}, -1
    s_mov_b64 exec, {sr(sLO32,2)}
    global_store_dwordx4 v{vPO}, {vr(vA)}, {sr(sWS,2)} sc1
    s_mov_b64 exec, -1
    """)
    g.c("layernorm statistics (whole row per wave)")
    xf = 72
    g("s_waitcnt vmcnt(33)")
    for e in range(4):
        g(f"v_lshlrev_b32 v{xf+2*e}, 16, v{vX+e}")
        g(f"v_and_b32 v{xf+2*e+1}, 0xffff0000, v{vX+e}")
    g(f"""
    v_add_f32 v{vT}, v{xf}, v{xf+1}
    v_add_f32 v{vT+1}, v{xf+2}, v{xf+3}
    v_add_f32 v{vT+2}, v{xf+4}, v{xf+5}
    v_add_f32 v{vT+3}, v{xf+6}, v{xf+7}
    v_add_f32 v{vT}, v{vT}, v{vT+1}
    v_add_f32 v{vT+2}, v{vT+2}, v{vT+3}
    v_add_f32 v{vT}, v{vT}, v{vT+2}
    """)

    def wavesum(v, sdst):
        g(f"""
        s_nop 1
        v_add_f32_dpp v{v}, v{v}, v{v} row_ror:8 row_mask:0xf bank_mask:0xf
        s_nop 1
        v_add_f32_dpp v{v}, v{v}, v{v} row_ror:4 row_mask:0xf bank_mask:0xf
        s_nop 1
        v_add_f32_dpp v{v}, v{v}, v{v} row_ror:2 row_mask:0xf bank_mask:0xf
        s_nop 1
        v_add_f32_dpp v{v}, v{v}, v{v} row_ror:1 row_mask:0xf bank_mask:0xf
        s_nop 1
        v_add_f32_dpp v{v}, v{v}, v{v} row_bcast:15 row_mask:0xa bank_mask:0xf
        s_nop 1
        v_add_f32_dpp v{v}, v{v}, v{v} row_bcast:31 row_mask:0xc bank_mask:0xf
        s_nop 1
        v_readlane_b32 s{sdst}, v{v}, 63
        s_nop 1
        """)

    wavesum(vT, sT0)
    g(f"""
    v_mov_b32 v{vT}, 0x3b000000
    v_mul_f32 v{vT}, s{sT0}, v{vT}
    """)
    for e in range(8):
        g(f"v_sub_f32 v{80+e}, v{xf+e}, v{vT}")
    g(f"v_mul_f32 v{vT+1}, v80, v80")
    for e in range(1, 8):
        g(f"v_fmac_f32 v{vT+1}, v{80+e}, v{80+e}")
    wavesum(vT + 1, sT1)
    vMB, vSD, vRS = 68, 69, 70
    g(f"""
    v_mov_b32 v{vT+1}, 0x3b000000
    v_mul_f32 v{vT+1}, s{sT1}, v{vT+1}
    v_cvt_pk_bf16_f32 v{vMB}, v{vT}, v{vT}
    v_lshlrev_b32 v{vMB}, 16, v{vMB}
    v_cvt_pk_bf16_f32 v{vT+1}, v{vT+1}, v{vT+1}
    v_lshlrev_b32 v{vT+1}, 16, v{vT+1}
    v_add_f32 v{vT+1}, 0x3727c5ac, v{vT+1}
    v_cvt_pk_bf16_f32 v{vT+1}, v{vT+1}, v{vT+1}
    v_lshlrev_b32 v{vT+1}, 16, v{vT+1}
    v_sqrt_f32 v{vT+1}, v{vT+1}
    s_nop 0
    v_cvt_pk_bf16_f32 v{vT+1}, v{vT+1}, v{vT+1}
    v_lshlrev_b32 v{vSD}, 16, v{vT+1}
    v_rcp_f32 v{vRS}, v{vSD}
    """)

    def norm(dst, src):
        g(f"""
        v_sub_f32 v{src}, v{src}, v{vMB}
        v_cvt_pk_bf16_f32 v{src}, v{src}, v{src}
        v_lshlrev_b32 v{src}, 16, v{src}
        v_mul_f32 v{vT+2}, v{src}, v{vRS}
        v_fma_f32 v{vT+3}, -v{vT+2}, v{vSD}, v{src}
        v_fmac_f32 v{vT+2}, v{vT+3}, v{vRS}
        v_cvt_pk_bf16_f32 v{dst}, v{vT+2}, v{vT+2}
        """)

    g(f"""
    s_waitcnt vmcnt(33)
    v_lshlrev_b32 v{vT+4}, 16, v{vXO}
    v_and_b32 v{vT+5}, 0xffff0000, v{vXO}
    """)
    norm(vX0, vT + 4)
    norm(vX1, vT + 5)
    for e in range(4):
        g(f"v_mov_b32 v{vACC+e}, 0")
    g.c("q partial: tile t=2c'+u rows k = 128j + 32s + t")
    mkA(vA, vX0, 0)
    for t in range(32):
        if t < 31:
            t1 = t + 1
            mkA(vA + 4 * (t1 & 1), vX1 if (t1 & 1) else vX0, t1 >> 1)
        g(f"s_waitcnt vmcnt({32-t})")
        if t == 31:
            g("s_nop 0")
        g(f"v_mfma_f32_16x16x32_bf16 {vr(vACC)}, {vr(vA+4*(t&1))}, {vr(vW+4*t)}, {vr(vACC)}")
    vDL = 71
    g(f"""
    v_lshlrev_b32 v{vDL}, 5, v{vC}
    v_lshl_add_u32 v{vDL}, v{vS}, 4, v{vDL}
    s_lshl_b32 s{sT0}, s{sJ}, 9
    v_add_u32 v{vT}, s{sT0}, v{vDL}
    s_nop 4
    s_mov_b64 exec, {sr(sLO32,2)}
    ds_write_b128 v{vT}, {vr(vACC)} offset:{L_QP}
    s_mov_b64 exec, -1
    s_waitcnt vmcnt(0) lgkmcnt(0)
    s_barrier
    """)
    g.c("slot cleared: one add per WG")
    g(f"""
    s_cmp_lg_u32 s{sJ}, 0
    s_cbranch_scc1 L_noadd
    s_lshl_b32 s{sT0}, s{sB}, 5
    v_mov_b32 v{vT}, s{sT0}
    v_mov_b32 v{vT+1}, 1
    s_mov_b64 exec, 1
    global_atomic_add v{vT}, v{vT+1}, {sr(sDBG,2)} sc1
    s_mov_b64 exec, -1
    L_noadd:
    s_cmp_lg_u32 s{sJ}, 3
    s_cbranch_scc1 L_noffn
    """)
    g.c("=========== FFN (wave 7): chunks [c0, c0+nch) of 8 hidden units")
    g(f"""
    s_mul_i32 s{sC0}, s{sH}, 43
    s_add_u32 s{sT0}, s{sC0}, 43
    s_lshr_b32 s{sC0}, s{sC0}, 3
    s_lshr_b32 s{sT0}, s{sT0}, 3
    s_sub_u32 s{sNCH}, s{sT0}, s{sC0}
    """)
    vXA, vXB = 88, 92
    for e in range(4):
        norm(vXA + e, xf + 2 * e)
        norm(vXB + e, xf + 2 * e + 1)
    vM2 = 96
    g(f"""
    v_and_b32 v{vT}, 1, v{vC}
    v_lshlrev_b32 v{vT}, 4, v{vT}
    v_mov_b32 v{vT+1}, 0xffff
    v_lshlrev_b32 v{vT+1}, v{vT}, v{vT+1}
    v_bfe_u32 v{vT+2}, v{vC}, 1, 2
    """)
    for t in range(4):
        g(f"""
        v_cmp_eq_u32 vcc, {t}, v{vT+2}
        s_nop 1
        v_cndmask_b32 v{vM2+t}, 0, v{vT+1}, vcc
        """)
    g.c("w1 voffset: (128 s + (c>>3))*2752 + (c0 + (c&7))*16, out of range if (c&7) >= nch")
    g(f"""
    v_lshrrev_b32 v{vT}, 3, v{vC}
    v_lshl_add_u32 v{vT}, v{vS}, 7, v{vT}
    v_mul_u32_u24 v{vT}, 2752, v{vT}
    v_and_b32 v{vT+1}, 7, v{vC}
    v_add_u32 v{vT+2}, s{sC0}, v{vT+1}
    v_lshl_add_u32 v{vOFF}, v{vT+2}, 4, v{vT}
    v_cmp_gt_u32 vcc, s{sNCH}, v{vT+1}
    v_mov_b32 v{vT+3}, 0x40000000
    s_nop 0
    v_cndmask_b32 v{vOFF}, v{vT+3}, v{vOFF}, vcc
    s_mov_b32 s{SRD_A}, s{sW1}
    s_mov_b32 s{SRD_A+1}, s{sW1+1}
    s_mov_b32 s{SRD_A+2}, {512*2752}
    s_mov_b32 s{SRD_A+3}, 0x20000
    s_mov_b32 s{sOFF}, 0
    """)
    for e in range(4):
        g(f"v_mov_b32 v{vACC+e}, 0")
    vTB = 100
    for half in range(2):
        for u in range(32):
            g(f"buffer_load_dwordx4 {vr(vW+4*u)}, v{vOFF}, {sr(SRD_A)}, s{sOFF} offen")
            g(f"s_add_u32 s{sOFF}, s{sOFF}, {2*2752}")
        for u in range(32):
            T = half * 32 + u
            cp, ep = T >> 2, T & 3
            a = vA + 4 * (u & 1)
            tb = vTB + (u & 1)
            g(f"v_mov_b32_dpp v{tb}, v{vXA+ep} row_newbcast:{cp} row_mask:0xf bank_mask:0x3")
            g(f"v_mov_b32_dpp v{tb}, v{vXB+ep} row_newbcast:{cp} row_mask:0xf bank_mask:0xc")
            for t in range(4):
                g(f"v_and_b32 v{a+t}, v{tb}, v{vM2+t}")
            g(f"s_waitcnt vmcnt({31-u})")
            g("s_nop 0")
            g(f"v_mfma_f32_16x16x32_bf16 {vr(vACC)}, {vr(a)}, {vr(vW+4*u)}, {vr(vACC)}")
    g.c("issue w2 loads (first 24 tiles) and b1")
    vB1 = 102
    g(f"""
    s_lshl_b32 s{sT0}, s{sC0}, 13
    v_lshlrev_b32 v{vOFF}, 10, v{vS}
    v_lshl_add_u32 v{vOFF}, v{vC}, 4, v{vOFF}
    v_add_u32 v{vOFF}, s{sT0}, v{vOFF}
    s_mov_b32 s{SRD_B}, s{sW2}
    s_mov_b32 s{SRD_B+1}, s{sW2+1}
    s_lshl_b32 s{sT1}, s{sNCH}, 13
    s_add_u32 s{SRD_B+2}, s{sT0}, s{sT1}
    s_mov_b32 s{SRD_B+3}, 0x20000
    s_mov_b32 s{SRD_C}, s{sB1}
    s_mov_b32 s{SRD_C+1}, s{sB1+1}
    s_add_u32 s{sT1}, s{sC0}, s{sNCH}
    s_lshl_b32 s{SRD_C+2}, s{sT1}, 4
    s_mov_b32 s{SRD_C+3}, 0x20000
    v_lshl_add_u32 v{vT+4}, v{vC}, 2, v{vS}
    s_lshl_b32 s{sT1}, s{sC0}, 4
    v_lshlrev_b32 v{vT+5}, 1, v{vT+4}
    v_add_u32 v{vT+5}, s{sT1}, v{vT+5}
    buffer_load_ushort v{vB1}, v{vT+5}, {sr(SRD_C)}, 0 offen
    """)
    g.c("hidden halves to LDS: lanes (s'<2,c'<8) -> [0..64), lanes (s'>=2,c'>=8) -> [64..128)")
    g(f"""
    v_lshrrev_b32 v{vT}, 1, v{vS}
    v_lshrrev_b32 v{vT+1}, 3, v{vC}
    v_cmp_eq_u32 vcc, v{vT}, v{vT+1}
    v_lshlrev_b32 v{vT}, 8, v{vT}
    v_and_b32 v{vT+1}, 7, v{vC}
    v_lshl_add_u32 v{vT}, v{vT+1}, 5, v{vT}
    v_and_b32 v{vT+1}, 1, v{vS}
    v_lshl_add_u32 v{vT}, v{vT+1}, 4, v{vT}
    s_and_saveexec_b64 {sr(sEX,2)}, vcc
    ds_write_b128 v{vT}, {vr(vACC)} offset:{L_HP}
    s_mov_b64 exec, -1
    s_mov_b32 s{sOFF}, 0
    """)
    for t in range(6):
        for cb in range(4):
            g(f"buffer_load_dwordx4 {vr(vW+4*(4*t+cb))}, v{vOFF}, {sr(SRD_B)}, s{sOFF} offen offset:{256*cb}")
        g(f"s_add_u32 s{sOFF}, s{sOFF}, 4096")
    vH = 103
    g(f"""
    v_lshlrev_b32 v{vT+5}, 2, v{vT+4}
    s_waitcnt lgkmcnt(0)
    ds_read_b32 v{vT}, v{vT+5} offset:{L_HP}
    ds_read_b32 v{vT+1}, v{vT+5} offset:{L_HP+256}
    s_waitcnt vmcnt(24) lgkmcnt(0)
    v_add_f32 v{vT}, v{vT}, v{vT+1}
    v_cvt_pk_bf16_f32 v{vT}, v{vT}, v{vT}
    v_lshlrev_b32 v{vT}, 16, v{vT}
    v_lshlrev_b32 v{vB1}, 16, v{vB1}
    v_add_f32 v{vT}, v{vT}, v{vB1}
    v_cvt_pk_bf16_f32 v{vT}, v{vT}, v{vT}
    v_lshlrev_b32 v{vT}, 16, v{vT}
    v_cmp_lt_f32 vcc, 0, v{vT}
    s_lshl_b32 s{sT1}, s{sNCH}, 3
    v_cmp_gt_u32 {sr(sEX,2)}, s{sT1}, v{vT+4}
    s_nop 1
    s_and_b64 vcc, vcc, {sr(sEX,2)}
    s_nop 1
    v_cndmask_b32 v{vT}, 0, v{vT}, vcc
    v_mul_f32 v{vT}, v{vT}, v{vT}
    v_cvt_pk_bf16_f32 v{vH}, v{vT}, v{vT}
    """)
    vF = 104
    for e in range(16):
        g(f"v_mov_b32 v{vF+e}, 0")
    for half in range(2):
        if half == 1:
            for t in range(6):
                for cb in range(4):
                    g(f"buffer_load_dwordx4 {vr(vW+4*(4*t+cb))}, v{vOFF}, {sr(SRD_B)}, s{sOFF} offen offset:{256*cb}")
                g(f"s_add_u32 s{sOFF}, s{sOFF}, 4096")
        for t in range(6):
            a = vA + 4 * (t & 1)
            mkA(a, vH, half * 6 + t)
            g(f"s_waitcnt vmcnt({20-4*t})")
            g("s_nop 0")
            for cb in range(4):
                g(f"v_mfma_f32_16x16x32_bf16 {vr(vF+4*cb)}, {vr(a)}, {vr(vW+4*(4*t+cb))}, {vr(vF+4*cb)}")
    g("s_nop 7")
    g(f"s_mov_b64 exec, {sr(sLO32,2)}")
    for cb in range(4):
        g(f"ds_write_b128 v{vDL}, {vr(vF+4*cb)} offset:{L_FF+512*cb}")
    g(f"""
    s_mov_b64 exec, -1
    L_noffn:
    """)
    g.c("wo tiles: tile t=2c'+u rows d = 32 s + t ; cols j*128 + 8c")
    g(f"""
    s_lshl_b32 s{sT0}, s{sH}, 17
    s_lshl_b32 s{sT1}, s{sJ}, 8
    s_add_u32 s{sT0}, s{sT0}, s{sT1}
    v_lshlrev_b32 v{vOFF}, 15, v{vS}
    v_lshl_add_u32 v{vOFF}, v{vC}, 4, v{vOFF}
    v_add_u32 v{vOFF}, s{sT0}, v{vOFF}
    s_mov_b32 s{SRD_A}, s{sWO}
    s_mov_b32 s{SRD_A+1}, s{sWO+1}
    s_mov_b32 s{SRD_A+2}, 0x400000
    s_mov_b32 s{SRD_A+3}, 0x20000
    s_mov_b32 s{sOFF}, 0
    """)
    for t in range(32):
        g(f"buffer_load_dwordx4 {vr(vW+4*t)}, v{vOFF}, {sr(SRD_A)}, s{sOFF} offen offset:{1024*(t&3)}")
        if (t & 3) == 3:
            g(f"s_add_u32 s{sOFF}, s{sOFF}, 4096")
    g(f"""
    v_lshlrev_b32 v{vT}, 7, v{vS}
    v_lshl_add_u32 v{vT}, v{vC}, 3, v{vT}
    v_mov_b32 v{vT+1}, 0
    s_lshl_b32 s{sT0}, s{sJ}, 9
    v_add_u32 v{vT+2}, s{sT0}, v{vDL}
    s_mov_b32 s{sT3}, 0x3fb8aa3b
    s_waitcnt vmcnt(0) lgkmcnt(0)
    s_barrier
    """)
    g.c("combine the 4 streamer partials")
    o = 72
    g(f"""
    ds_read_b128 v[80:83], v{vT+1} offset:{L_ML}
    ds_read_b128 v[84:87], v{vT+1} offset:{L_ML+16}
    ds_read_b64 v[{o}:{o+1}], v{vT} offset:{L_OP}
    ds_read_b64 v[{o+2}:{o+3}], v{vT} offset:{L_OP+512}
    ds_read_b64 v[{o+4}:{o+5}], v{vT} offset:{L_OP+1024}
    ds_read_b64 v[{o+6}:{o+7}], v{vT} offset:{L_OP+1536}
    ds_read_b128 {vr(vACC)}, v{vT+2} offset:{L_FF}
    s_waitcnt lgkmcnt(5)
    v_max3_f32 v88, v80, v82, v84
    v_max_f32 v88, v88, v86
    v_sub_f32 v80, v80, v88
    v_sub_f32 v82, v82, v88
    v_sub_f32 v84, v84, v88
    v_sub_f32 v86, v86, v88
    v_mul_f32 v80, s{sT3}, v80
    v_mul_f32 v82, s{sT3}, v82
    v_mul_f32 v84, s{sT3}, v84
    v_mul_f32 v86, s{sT3}, v86
    v_exp_f32 v80, v80
    v_exp_f32 v82, v82
    v_exp_f32 v84, v84
    v_exp_f32 v86, v86
    v_mul_f32 v89, v80, v81
    v_fmac_f32 v89, v82, v83
    v_fmac_f32 v89, v84, v85
    v_fmac_f32 v89, v86, v87
    v_rcp_f32 v90, v89
    s_waitcnt lgkmcnt(1)
    v_mul_f32 v{o}, v80, v{o}
    v_mul_f32 v{o+1}, v80, v{o+1}
    v_fmac_f32 v{o}, v82, v{o+2}
    v_fmac_f32 v{o+1}, v82, v{o+3}
    v_fmac_f32 v{o}, v84, v{o+4}
    v_fmac_f32 v{o+1}, v84, v{o+5}
    v_fmac_f32 v{o}, v86, v{o+6}
    v_fmac_f32 v{o+1}, v86, v{o+7}
    v_mul_f32 v91, v{o}, v90
    v_mul_f32 v92, v{o+1}, v90
    v_fma_f32 v93, -v91, v89, v{o}
    v_fma_f32 v94, -v92, v89, v{o+1}
    v_fmac_f32 v91, v93, v90
    v_fmac_f32 v92, v94, v90
    v_cvt_pk_bf16_f32 v{vX0}, v91, v91
    v_cvt_pk_bf16_f32 v{vX1}, v92, v92
    s_waitcnt lgkmcnt(0)
    s_nop 0
    """)
    mkA(vA, vX0, 0)
    for t in range(32):
        if t < 31:
            t1 = t + 1
            mkA(vA + 4 * (t1 & 1), vX1 if (t1 & 1) else vX0, t1 >> 1)
        else:
            g("s_nop 1")
        g(f"v_mfma_f32_16x16x32_bf16 {vr(vACC)}, {vr(vA+4*(t&1))}, {vr(vW+4*t)}, {vr(vACC)}")
    g(f"""
    v_mov_b32 v{vT}, -2
    s_nop 7
    v_min_u32 v{vACC}, v{vT}, v{vACC}
    v_min_u32 v{vACC+1}, v{vT}, v{vACC+1}
    v_min_u32 v{vACC+2}, v{vT}, v{vACC+2}
    v_min_u32 v{vACC+3}, v{vT}, v{vACC+3}
    s_mov_b64 exec, {sr(sLO32,2)}
    global_store_dwordx4 v{vPO}, {vr(vACC)}, {sr(sWS,2)} sc1
    s_mov_b64 exec, -1
    """)
    if stamps:
        g(f"s_memrealtime {sr(sST+2,2)}")
        emit_stamps(g, sST, 5, sWS, sWAVE, vT, sT0, vLANE)
    g("""
    L_end:
    s_endpgm
    """)

    out = HEADER
    out += f"; @launch grid=(256,1,1) block=(512,1,1) lds={LDS}\n"
    out += f""".amdgcn_target "amdgcn-amd-amdhsa--gfx950"
.text
.globl {KNAME}
.p2align 8
.type {KNAME},@function
{KNAME}:
"""
    out += g.text()
    out += f""".section .rodata,"a"
.p2align 6
.amdhsa_kernel {KNAME}
  .amdhsa_next_free_vgpr 256
  .amdhsa_next_free_sgpr 96
  .amdhsa_accum_offset 256
  .amdhsa_group_segment_fixed_size 0
  .amdhsa_kernarg_size 104
  .amdhsa_user_sgpr_count 2
  .amdhsa_user_sgpr_kernarg_segment_ptr 1
  .amdhsa_system_sgpr_workgroup_id_x 1
  .amdhsa_float_denorm_mode_32 3
.end_amdhsa_kernel
"""
    return out


def emit_stamps(g, sST, n, sWS, sWAVE, vT, sT0, vLANE):
    g(f"""
    s_memrealtime {sr(sST+2*(n-1),2)}
    s_lshl_b32 s{sT0}, s2, 3
    s_add_u32 s{sT0}, s{sT0}, s{sWAVE}
    s_lshl_b32 s{sT0}, s{sT0}, 7
    s_add_u32 s{sT0}, s{sT0}, 0x1000000
    v_mov_b32 v{vT}, s{sT0}
    s_getreg_b32 s{sT0}, hwreg(HW_REG_XCC_ID)
    s_waitcnt lgkmcnt(0)
    s_mov_b64 exec, 1
    """)
    for k in range(n):
        g(f"v_mov_b32 v{vT+1}, s{sST+2*k}")
        g(f"global_store_dword v{vT}, v{vT+1}, {sr(sWS,2)} offset:{4*k}")
    g(f"v_mov_b32 v{vT+1}, s{sT0}")
    g(f"global_store_dword v{vT}, v{vT+1}, {sr(sWS,2)} offset:64")
    g("s_mov_b64 exec, -1")


if __name__ == "__main__":
    out = sys.argv[1] if len(sys.argv) > 1 else "cdna_kernels/" + NAME + ".s"
    kw = {}
    for a in sys.argv[2:]:
        k, v = a.split("=")
        kw[k] = eval(v)
    open(out, "w").write(gen(**kw))
    print("wrote", out)
```

```python
import sys, os

NAME = "parallel_sum__gqa_block_cached__dense_activation_squared_relu__decode"
KNAME = NAME + "_kernel"
HEADER = open("cdna_kernels/" + NAME + ".s.ref").read().split("; Override launch")[0]


class G:
    def __init__(self):
        self.L = []

    def __call__(self, s):
        for line in s.strip("\n").split("\n"):
            t = line.strip()
            if not t:
                continue
            self.L.append(t if t.endswith(":") else "  " + t)

    def c(self, s):
        self.L.append("  ; " + s)

    def text(self):
        return "\n".join(self.L) + "\n"


def vr(b, n=4):
    return f"v[{b}:{b+n-1}]"


def sr(b, n=4):
    return f"s[{b}:{b+n-1}]"


def gen(R=32, DS=8, stamps=False, pol="nt", wpol="nt", hprio=3, hprio2=0, nocons=False,
        noffn=False, nowo=False, nowq=False):
    g = G()

    def st(k):
        if stamps:
            g(f"s_memrealtime s[{66+2*k}:{67+2*k}]")

    L_QP = 0
    L_HP = 2048
    L_OP = 4096
    L_ML = 6144
    L_SC = 8192
    LDS = 8192 + 16384 + 256
    sX, sK, sV, sWQ, sWO, sBX, sW1, sB1 = 4, 6, 8, 10, 12, 14, 16, 18
    sW2, sB2, sOUT, sDBG, sWS = 20, 22, 24, 26, 28
    sWAVE, sB, sH = 30, 31, 3
    SRD_A, SRD_B, SRD_PF, SRD_C = 32, 36, 40, 44
    sOFF, sIT, sT0, sT1, sT2, sT3 = 48, 49, 50, 51, 52, 53
    sM, sC0, sNCH, sJ = 54, 55, 56, 57
    sMASKC1, sMASKC0, sEX = 58, 60, 62
    sLO32 = 64
    sST = 66
    vTID, vLANE, vS, vC = 0, 1, 2, 3
    vMASK = 4
    vOFF, vOFF2 = 8, 9
    vT = 10
    vA = 16
    vACC = 24
    vQ = 28
    vP = 32
    vMAX, vL, vPP, vSC, vLDS = 48, 49, 50, 51, 52
    vX = 56
    vRING = 128
    assert R * 4 <= 128 and R % 16 == 0
    NL = 256
    NIT = NL // R
    NG = R // 16

    def mkA(dst, src, lane):
        for t in range(4):
            g(f"v_and_b32_dpp v{dst+t}, v{src}, v{vMASK+t} row_newbcast:{lane} row_mask:0xf bank_mask:0xf")

    def srd(d, base, size):
        g(f"""
        s_mov_b32 s{d}, s{base}
        s_mov_b32 s{d+1}, s{base+1}
        s_mov_b32 s{d+2}, {size}
        s_mov_b32 s{d+3}, 0x20000
        """)

    g(f"""
    s_cmp_ge_u32 s2, 256
    s_cbranch_scc1 L_end
    s_load_dwordx16 s[4:19], s[0:1], 0
    s_load_dwordx8 s[20:27], s[0:1], 64
    s_load_dwordx2 s[28:29], s[0:1], 96
    """)
    st(0)
    g(f"""
    v_lshrrev_b32 v{vT}, 6, v{vTID}
    v_and_b32 v{vLANE}, 63, v{vTID}
    v_readfirstlane_b32 s{sWAVE}, v{vT}
    v_lshrrev_b32 v{vS}, 4, v{vLANE}
    v_and_b32 v{vC}, 15, v{vLANE}
    s_lshr_b32 s{sB}, s2, 5
    s_and_b32 s{sH}, s2, 31
    s_mov_b32 s{sLO32}, -1
    s_mov_b32 s{sLO32+1}, 0
    s_cmp_ge_u32 s{sWAVE}, 4
    s_cbranch_scc1 L_helper
    """)

    def masks(dst, full):
        g(f"""
        v_and_b32 v{vT}, 1, v{vC}
        v_lshlrev_b32 v{vT}, 4, v{vT}
        v_mov_b32 v{vT+1}, 0xffff
        v_lshlrev_b32 v{vT+1}, v{vT}, v{vT+1}
        """)
        if full:
            g(f"v_bfe_u32 v{vT+2}, v{vC}, 1, 2")
        else:
            g(f"v_lshrrev_b32 v{vT+2}, 1, v{vC}")
        for t in range(4):
            g(f"""
            v_cmp_eq_u32 vcc, {t}, v{vT+2}
            s_nop 1
            v_cndmask_b32 v{dst+t}, 0, v{vT+1}, vcc
            """)

    g.c("=========== streamer waves 0..3")
    g(f"""
    s_lshl_b32 s{sT0}, s{sWAVE}, 10
    v_lshlrev_b32 v{vOFF}, 4, v{vLANE}
    v_add_u32 v{vOFF}, s{sT0}, v{vOFF}
    s_lshl_b32 s{sT1}, s2, 20
    s_mov_b32 s{sOFF}, 0
    s_mov_b32 s{SRD_PF+2}, 0x100000
    s_mov_b32 s{SRD_PF+3}, 0x20000
    s_waitcnt lgkmcnt(0)
    s_add_u32 s{SRD_PF}, s{sK}, s{sT1}
    s_addc_u32 s{SRD_PF+1}, s{sK+1}, 0
    """)

    def pf(b):
        g(f"buffer_load_dwordx4 {vr(vRING+4*b)}, v{vOFF}, {sr(SRD_PF)}, s{sOFF} offen {pol}")
        g(f"s_add_u32 s{sOFF}, s{sOFF}, 4096")

    st(5)
    for b in range(DS):
        pf(b)
    g(f"""
    s_add_u32 s{SRD_B}, s{sV}, s{sT1}
    s_addc_u32 s{SRD_B+1}, s{sV+1}, 0
    """)
    masks(vMASK, False)
    g(f"""
    v_and_b32 v{vT}, 2, v{vC}
    v_cmp_ne_u32 {sr(sMASKC1,2)}, 0, v{vT}
    v_and_b32 v{vT}, 1, v{vC}
    v_cmp_ne_u32 {sr(sMASKC0,2)}, 0, v{vT}
    v_mov_b32 v{vMAX}, 0xff800000
    v_mov_b32 v{vL}, 0
    s_lshl_b32 s{sT0}, s{sWAVE}, 12
    s_add_u32 s{sT0}, s{sT0}, {L_SC}
    v_lshlrev_b32 v{vLDS}, 2, v{vLANE}
    v_add_u32 v{vLDS}, s{sT0}, v{vLDS}
    v_lshlrev_b32 v{vT}, 5, v{vC}
    v_mov_b32 v{vACC}, 0
    v_mov_b32 v{vACC+1}, 0
    v_mov_b32 v{vACC+2}, 0
    v_mov_b32 v{vACC+3}, 0
    s_mov_b32 s{sIT}, 0
    s_mov_b32 s{sT3}, 0x3db504f3
    """)
    for b in range(DS, R):
        g(f"s_waitcnt vmcnt({DS-1})")
        pf(b)
    st(8)
    g("s_barrier")
    g.c("q = sum of 4 partials, lane (s,c) takes q[8c..8c+8)")
    tq = 64
    for j in range(4):
        g(f"ds_read_b128 {vr(tq+8*j)}, v{vT} offset:{L_QP+512*j}")
        g(f"ds_read_b128 {vr(tq+8*j+4)}, v{vT} offset:{L_QP+512*j+16}")
    g("s_waitcnt lgkmcnt(4)")
    for e in range(8):
        g(f"v_add_f32 v{tq+e}, v{tq+e}, v{tq+8+e}")
    g("s_waitcnt lgkmcnt(0)")
    for e in range(8):
        g(f"v_add_f32 v{tq+16+e}, v{tq+16+e}, v{tq+24+e}")
    for e in range(8):
        g(f"v_add_f32 v{tq+e}, v{tq+e}, v{tq+16+e}")
    for t in range(4):
        g(f"v_cvt_pk_bf16_f32 v{vQ+t}, v{tq+2*t}, v{tq+2*t+1}")
    st(1)
    g(f"""
    L_kloop:
    s_cmp_lg_u32 s{sIT}, {NIT-1}
    s_cbranch_scc1 L_knosw
    s_mov_b32 s{SRD_PF}, s{SRD_B}
    s_mov_b32 s{SRD_PF+1}, s{SRD_B+1}
    s_mov_b32 s{sOFF}, 0
    L_knosw:
    """)
    for grp in range(NG):
        for j in range(16):
            b = grp * 16 + j
            rb = vRING + 4 * b
            if DS == R:
                g(f"s_waitcnt vmcnt({DS-1})")
            g(f"v_dot2_f32_bf16 v{vP+j}, v{rb}, v{vQ}, 0")
            for t in range(1, 4):
                g(f"v_dot2_f32_bf16 v{vP+j}, v{rb+t}, v{vQ+t}, v{vP+j}")
            if DS < R:
                g(f"s_waitcnt vmcnt({DS-1})")
            pf(b)
        g.c("transposing reduction over the 16 lanes of each row")
        g("s_nop 1")
        for j in range(8):
            g(f"v_add_f32_dpp v{vP+j}, v{vP+j}, v{vP+j} row_ror:8 row_mask:0xf bank_mask:0x3")
            g(f"v_add_f32_dpp v{vP+j}, v{vP+j+8}, v{vP+j+8} row_ror:8 row_mask:0xf bank_mask:0xc")
        for j in range(4):
            g(f"v_add_f32_dpp v{vP+j}, v{vP+j}, v{vP+j} row_half_mirror row_mask:0xf bank_mask:0x5")
            g(f"v_add_f32_dpp v{vP+j}, v{vP+j+4}, v{vP+j+4} row_half_mirror row_mask:0xf bank_mask:0xa")
        for j in range(4):
            g(f"v_add_f32_dpp v{vP+j}, v{vP+j}, v{vP+j} quad_perm:[2,3,0,1] row_mask:0xf bank_mask:0xf")
        g(f"v_cndmask_b32 v{vP+0}, v{vP+0}, v{vP+2}, {sr(sMASKC1,2)}")
        g(f"v_cndmask_b32 v{vP+1}, v{vP+1}, v{vP+3}, {sr(sMASKC1,2)}")
        g("s_nop 1")
        g(f"v_add_f32_dpp v{vP+0}, v{vP+0}, v{vP+0} quad_perm:[1,0,3,2] row_mask:0xf bank_mask:0xf")
        g(f"v_add_f32_dpp v{vP+1}, v{vP+1}, v{vP+1} quad_perm:[1,0,3,2] row_mask:0xf bank_mask:0xf")
        g(f"v_cndmask_b32 v{vP+0}, v{vP+0}, v{vP+1}, {sr(sMASKC0,2)}")
        g.c("score = bf16(bf16(q.k) * Dh^-0.5)")
        g(f"""
        v_cvt_pk_bf16_f32 v{vP+0}, v{vP+0}, v{vP+0}
        v_lshlrev_b32 v{vP+0}, 16, v{vP+0}
        v_mul_f32 v{vP+0}, s{sT3}, v{vP+0}
        v_cvt_pk_bf16_f32 v{vP+0}, v{vP+0}, v{vP+0}
        v_lshlrev_b32 v{vSC}, 16, v{vP+0}
        v_max_f32 v{vMAX}, v{vMAX}, v{vSC}
        ds_write_b32 v{vLDS}, v{vSC} offset:{256*grp}
        """)
    g(f"""
    v_add_u32 v{vLDS}, {256*NG}, v{vLDS}
    s_add_u32 s{sIT}, s{sIT}, 1
    s_cmp_lt_u32 s{sIT}, {NIT}
    s_cbranch_scc1 L_kloop
    """)
    g.c("wave max")
    g(f"""
    v_subrev_u32 v{vLDS}, 4096, v{vLDS}
    s_nop 0
    v_max_f32_dpp v{vMAX}, v{vMAX}, v{vMAX} row_ror:8 row_mask:0xf bank_mask:0xf
    s_nop 1
    v_max_f32_dpp v{vMAX}, v{vMAX}, v{vMAX} row_ror:4 row_mask:0xf bank_mask:0xf
    s_nop 1
    v_max_f32_dpp v{vMAX}, v{vMAX}, v{vMAX} row_ror:2 row_mask:0xf bank_mask:0xf
    s_nop 1
    v_max_f32_dpp v{vMAX}, v{vMAX}, v{vMAX} row_ror:1 row_mask:0xf bank_mask:0xf
    s_nop 1
    v_max_f32_dpp v{vMAX}, v{vMAX}, v{vMAX} row_bcast:15 row_mask:0xa bank_mask:0xf
    s_nop 1
    v_max_f32_dpp v{vMAX}, v{vMAX}, v{vMAX} row_bcast:31 row_mask:0xc bank_mask:0xf
    s_waitcnt lgkmcnt(0)
    ds_read_b32 v{vSC}, v{vLDS}
    v_readlane_b32 s{sM}, v{vMAX}, 63
    s_mov_b32 s{sT3}, 0x3fb8aa3b
    s_mov_b32 s{sIT}, 0
    """)
    st(2)

    def vbody(last):
        for grp in range(NG):
            g(f"""
            s_waitcnt lgkmcnt(0)
            v_subrev_f32 v{vT}, s{sM}, v{vSC}
            v_mul_f32 v{vT}, s{sT3}, v{vT}
            v_exp_f32 v{vT}, v{vT}
            ds_read_b32 v{vSC}, v{vLDS} offset:{256*(grp+1)}
            v_add_f32 v{vL}, v{vL}, v{vT}
            v_cvt_pk_bf16_f32 v{vPP}, v{vT}, v{vT}
            s_nop 1
            """)
            mkA(vA, vPP, 0)
            for j in range(16):
                b = grp * 16 + j
                rb = vRING + 4 * b
                if j < 15:
                    mkA(vA + 4 * ((j + 1) & 1), vPP, j + 1)
                else:
                    g("s_nop 0")
                if last:
                    if R - 1 - b < DS:
                        g(f"s_waitcnt vmcnt({R-1-b})")
                elif DS == R:
                    g(f"s_waitcnt vmcnt({DS-1})")
                g(f"v_mfma_f32_16x16x32_bf16 {vr(vACC)}, {vr(vA+4*(j&1))}, {vr(rb)}, {vr(vACC)}")
                if not last:
                    if DS < R:
                        g(f"s_waitcnt vmcnt({DS-1})")
                    pf(b)

    g("L_vloop:")
    vbody(False)
    g(f"""
    v_add_u32 v{vLDS}, {256*NG}, v{vLDS}
    s_add_u32 s{sIT}, s{sIT}, 1
    s_cmp_lt_u32 s{sIT}, {NIT-1}
    s_cbranch_scc1 L_vloop
    """)
    vbody(True)
    st(3)
    g.c("l: wave sum ; publish (m,l) and o partial")
    g(f"""
    v_add_f32_dpp v{vL}, v{vL}, v{vL} row_ror:8 row_mask:0xf bank_mask:0xf
    v_lshlrev_b32 v{vT}, 5, v{vC}
    v_lshlrev_b32 v{vT+1}, 4, v{vS}
    v_add_f32_dpp v{vL}, v{vL}, v{vL} row_ror:4 row_mask:0xf bank_mask:0xf
    v_add_u32 v{vT}, v{vT}, v{vT+1}
    s_lshl_b32 s{sT0}, s{sWAVE}, 9
    v_add_f32_dpp v{vL}, v{vL}, v{vL} row_ror:2 row_mask:0xf bank_mask:0xf
    v_add_u32 v{vT}, s{sT0}, v{vT}
    s_lshl_b32 s{sT0}, s{sWAVE}, 3
    v_add_f32_dpp v{vL}, v{vL}, v{vL} row_ror:1 row_mask:0xf bank_mask:0xf
    v_mov_b32 v{vT+2}, s{sT0}
    v_mov_b32 v{vT+4}, s{sM}
    v_add_f32_dpp v{vL}, v{vL}, v{vL} row_bcast:15 row_mask:0xa bank_mask:0xf
    s_nop 1
    v_add_f32_dpp v{vL}, v{vL}, v{vL} row_bcast:31 row_mask:0xc bank_mask:0xf
    s_mov_b64 exec, {sr(sLO32,2)}
    ds_write_b128 v{vT}, {vr(vACC)} offset:{L_OP}
    s_mov_b64 exec, -1
    v_readlane_b32 s{sT1}, v{vL}, 63
    s_nop 1
    v_mov_b32 v{vT+5}, s{sT1}
    ds_write_b64 v{vT+2}, v[{vT+4}:{vT+5}] offset:{L_ML}
    s_waitcnt lgkmcnt(0)
    s_barrier
    s_cmp_lt_u32 s{sH}, {99 if nocons else 28}
    s_cbranch_scc1 L_sdone
    """)
    g.c("=========== consumer: wave w of WG (b, 28+jj) reduces columns jj*128+32w .. +32 of batch b")
    vR = vRING
    g(f"""
    s_lshl_b32 s{sT0}, s{sB}, 16
    s_add_u32 s{SRD_C}, s{sWS}, s{sT0}
    s_addc_u32 s{SRD_C+1}, s{sWS+1}, 0
    s_mov_b32 s{SRD_C+2}, 0x10000
    s_mov_b32 s{SRD_C+3}, 0x20000
    s_sub_u32 s{sT2}, s{sH}, 28
    s_lshl_b32 s{sT2}, s{sT2}, 2
    s_add_u32 s{sT2}, s{sT2}, s{sWAVE}
    v_lshrrev_b32 v{vT}, 3, v{vLANE}
    v_lshlrev_b32 v{vT}, 11, v{vT}
    v_and_b32 v{vT+1}, 7, v{vLANE}
    v_lshl_add_u32 v{vT}, v{vT+1}, 4, v{vT}
    s_lshl_b32 s{sT0}, s{sT2}, 7
    v_add_u32 v{vT}, s{sT0}, v{vT}
    s_lshl_b32 s{sT0}, s{sT2}, 6
    v_lshlrev_b32 v{vT+1}, 3, v{vT+1}
    v_add_u32 v{vT+1}, s{sT0}, v{vT+1}
    s_lshl_b32 s{sT0}, s{sB}, 10
    v_add_u32 v{vT+2}, s{sT0}, v{vT+1}
    global_load_dwordx2 v[{vX}:{vX+1}], v{vT+2}, {sr(sX,2)}
    global_load_dwordx2 v[{vX+2}:{vX+3}], v{vT+1}, {sr(sB2,2)}
    s_mov_b32 s{sIT}, 0
    s_movk_i32 s{sT0}, 0x4000
    s_mov_b32 s{sT1}, 0x8000
    s_mov_b32 s{sT2}, 0xc000
    L_poll:
    buffer_load_dwordx4 {vr(vR)}, v{vT}, {sr(SRD_C)}, 0 offen sc1
    buffer_load_dwordx4 {vr(vR+4)}, v{vT}, {sr(SRD_C)}, s{sT0} offen sc1
    buffer_load_dwordx4 {vr(vR+8)}, v{vT}, {sr(SRD_C)}, s{sT1} offen sc1
    buffer_load_dwordx4 {vr(vR+12)}, v{vT}, {sr(SRD_C)}, s{sT2} offen sc1
    s_add_u32 s{sIT}, s{sIT}, 1
    s_waitcnt vmcnt(3)
    v_max3_u32 v{vT+4}, v{vR}, v{vR+1}, v{vR+2}
    s_waitcnt vmcnt(2)
    v_max3_u32 v{vT+4}, v{vT+4}, v{vR+3}, v{vR+4}
    v_max3_u32 v{vT+4}, v{vT+4}, v{vR+5}, v{vR+6}
    s_waitcnt vmcnt(1)
    v_max3_u32 v{vT+4}, v{vT+4}, v{vR+7}, v{vR+8}
    v_max3_u32 v{vT+4}, v{vT+4}, v{vR+9}, v{vR+10}
    s_waitcnt vmcnt(0)
    v_max3_u32 v{vT+4}, v{vT+4}, v{vR+11}, v{vR+12}
    v_max3_u32 v{vT+4}, v{vT+4}, v{vR+13}, v{vR+14}
    v_max_u32 v{vT+4}, v{vT+4}, v{vR+15}
    v_cmp_eq_u32 vcc, -1, v{vT+4}
    s_cmp_gt_u32 s{sIT}, 0x80000
    s_cbranch_scc1 L_pdone
    s_nop 3
    s_cbranch_vccnz L_poll
    L_pdone:
    """)
    for e in range(4):
        g(f"v_add_f32 v{vR+e}, v{vR+e}, v{vR+4+e}")
        g(f"v_add_f32 v{vR+8+e}, v{vR+8+e}, v{vR+12+e}")
    for e in range(4):
        g(f"v_add_f32 v{vR+e}, v{vR+e}, v{vR+8+e}")
    g("s_nop 1")
    for e in range(4):
        g(f"v_add_f32_dpp v{vR+e}, v{vR+e}, v{vR+e} row_ror:8 row_mask:0xf bank_mask:0xf")
    for op in ("v_permlane16_swap_b32", "v_permlane32_swap_b32"):
        for e in range(4):
            g(f"v_mov_b32 v{vR+4+e}, v{vR+e}")
        g("s_nop 1")
        for e in range(4):
            g(f"{op} v{vR+e}, v{vR+4+e}")
        g("s_nop 1")
        for e in range(4):
            g(f"v_add_f32 v{vR+e}, v{vR+e}, v{vR+4+e}")
    g.c("+ x + b2")
    for e in range(4):
        src_x = vX + (e >> 1)
        src_b = vX + 2 + (e >> 1)
        if e & 1:
            g(f"v_and_b32 v{vR+8}, 0xffff0000, v{src_x}")
            g(f"v_and_b32 v{vR+9}, 0xffff0000, v{src_b}")
        else:
            g(f"v_lshlrev_b32 v{vR+8}, 16, v{src_x}")
            g(f"v_lshlrev_b32 v{vR+9}, 16, v{src_b}")
        g(f"v_add_f32 v{vR+8}, v{vR+8}, v{vR+9}")
        g(f"v_add_f32 v{vR+e}, v{vR+e}, v{vR+8}")
    g(f"""
    v_cvt_pk_bf16_f32 v{vR+10}, v{vR+0}, v{vR+1}
    v_cvt_pk_bf16_f32 v{vR+11}, v{vR+2}, v{vR+3}
    s_mov_b64 exec, 0xff
    global_store_dwordx2 v{vT+2}, v[{vR+10}:{vR+11}], {sr(sOUT,2)}
    s_mov_b64 exec, -1
    L_sdone:
    """)
    if stamps:
        st(4)
        emit_stamps(g, sST, 14, sWS, sWAVE, vT, sT0)
    g("s_endpgm")

    g.c("=========== helper waves 4..7")
    vACC2 = 28
    vM2 = 32
    vX0, vX1, vXO, vPO, vMB, vSD, vRS, vDL = 36, 37, 38, 39, 40, 41, 42, 43
    vTB, vB1, vH, vF = 44, 46, 47, 48
    xf = 48
    vW1 = 64
    vW = 128
    g(f"""
    L_helper:
    s_setprio {hprio}
    s_sub_u32 s{sJ}, s{sWAVE}, 4
    s_lshl_b32 s{sT0}, s{sB}, 10
    v_lshlrev_b32 v{vT}, 4, v{vLANE}
    v_add_u32 v{vT}, s{sT0}, v{vT}
    s_lshl_b32 s{sT1}, s{sJ}, 8
    s_add_u32 s{sT0}, s{sT0}, s{sT1}
    v_lshlrev_b32 v{vT+1}, 2, v{vLANE}
    v_add_u32 v{vT+1}, s{sT0}, v{vT+1}
    """)
    g.c("wq voffset = (128j + 32s)*8192 + h*256 + c*16")
    g(f"""
    s_lshl_b32 s{sT0}, s{sJ}, 20
    s_lshl_b32 s{sT1}, s{sH}, 8
    s_add_u32 s{sT0}, s{sT0}, s{sT1}
    v_lshlrev_b32 v{vOFF}, 18, v{vS}
    v_lshl_add_u32 v{vOFF}, v{vC}, 4, v{vOFF}
    v_add_u32 v{vOFF}, s{sT0}, v{vOFF}
    s_mul_i32 s{sC0}, s{sH}, 43
    s_add_u32 s{sT0}, s{sC0}, 43
    s_lshr_b32 s{sC0}, s{sC0}, 3
    s_lshr_b32 s{sT0}, s{sT0}, 3
    s_sub_u32 s{sNCH}, s{sT0}, s{sC0}
    s_mov_b32 s{sOFF}, 0
    s_waitcnt lgkmcnt(0)
    global_load_dwordx4 {vr(vX)}, v{vT}, {sr(sX,2)}
    global_load_dword v{vXO}, v{vT+1}, {sr(sX,2)}
    """)
    st(5)
    srd(SRD_A, sWQ, 0 if nowq else 0x400000)
    for t in range(32):
        g(f"buffer_load_dwordx4 {vr(vW+4*t)}, v{vOFF}, {sr(SRD_A)}, s{sOFF} offen {wpol}")
        g(f"s_add_u32 s{sOFF}, s{sOFF}, 8192")
    st(6)
    g.c("w1 voffset: (128j + 32s + (c>>3))*2752 + (c0 + (c&7))*16, out of range if (c&7) >= nch")
    g(f"""
    v_lshrrev_b32 v{vT}, 3, v{vC}
    v_lshl_add_u32 v{vT}, v{vS}, 5, v{vT}
    s_lshl_b32 s{sT0}, s{sJ}, 7
    v_add_u32 v{vT}, s{sT0}, v{vT}
    v_mul_u32_u24 v{vT}, 2752, v{vT}
    v_and_b32 v{vT+1}, 7, v{vC}
    v_add_u32 v{vT+2}, s{sC0}, v{vT+1}
    v_lshl_add_u32 v{vOFF2}, v{vT+2}, 4, v{vT}
    v_cmp_gt_u32 vcc, s{sNCH}, v{vT+1}
    v_mov_b32 v{vT+3}, 0x40000000
    s_mov_b32 s{sOFF}, 0
    v_cndmask_b32 v{vOFF2}, v{vT+3}, v{vOFF2}, vcc
    """)
    srd(SRD_B, sW1, 0 if noffn else 512 * 2752)
    for u in range(16):
        g(f"buffer_load_dwordx4 {vr(vW1+4*u)}, v{vOFF2}, {sr(SRD_B)}, s{sOFF} offen {wpol}")
        g(f"s_add_u32 s{sOFF}, s{sOFF}, {2*2752}")
    g.c("b1: lane (s,c) -> hidden unit 4c+s")
    vHI = 60
    g(f"""
    s_mov_b32 s{SRD_C}, s{sB1}
    s_mov_b32 s{SRD_C+1}, s{sB1+1}
    s_add_u32 s{sT1}, s{sC0}, s{sNCH}
    s_lshl_b32 s{SRD_C+2}, s{sT1}, 4
    s_mov_b32 s{SRD_C+3}, 0x20000
    v_lshl_add_u32 v{vHI}, v{vC}, 2, v{vS}
    s_lshl_b32 s{sT1}, s{sC0}, 4
    v_lshlrev_b32 v{vT+5}, 1, v{vHI}
    v_add_u32 v{vT+5}, s{sT1}, v{vT+5}
    buffer_load_ushort v{vB1}, v{vT+5}, {sr(SRD_C)}, 0 offen
    """)
    st(7)
    masks(vMASK, False)
    masks(vM2, True)
    g.c("layernorm statistics (whole row per wave)")
    g("s_waitcnt vmcnt(49)")
    st(8)
    for e in range(4):
        g(f"v_lshlrev_b32 v{xf+2*e}, 16, v{vX+e}")
        g(f"v_and_b32 v{xf+2*e+1}, 0xffff0000, v{vX+e}")
    g(f"""
    v_add_f32 v{vT}, v{xf}, v{xf+1}
    v_add_f32 v{vT+1}, v{xf+2}, v{xf+3}
    v_add_f32 v{vT+2}, v{xf+4}, v{xf+5}
    v_add_f32 v{vT+3}, v{xf+6}, v{xf+7}
    v_add_f32 v{vT}, v{vT}, v{vT+1}
    v_add_f32 v{vT+2}, v{vT+2}, v{vT+3}
    v_add_f32 v{vT}, v{vT}, v{vT+2}
    """)

    def wavesum(v, sdst):
        g(f"""
        s_nop 1
        v_add_f32_dpp v{v}, v{v}, v{v} row_ror:8 row_mask:0xf bank_mask:0xf
        s_nop 1
        v_add_f32_dpp v{v}, v{v}, v{v} row_ror:4 row_mask:0xf bank_mask:0xf
        s_nop 1
        v_add_f32_dpp v{v}, v{v}, v{v} row_ror:2 row_mask:0xf bank_mask:0xf
        s_nop 1
        v_add_f32_dpp v{v}, v{v}, v{v} row_ror:1 row_mask:0xf bank_mask:0xf
        s_nop 1
        v_add_f32_dpp v{v}, v{v}, v{v} row_bcast:15 row_mask:0xa bank_mask:0xf
        s_nop 1
        v_add_f32_dpp v{v}, v{v}, v{v} row_bcast:31 row_mask:0xc bank_mask:0xf
        s_nop 1
        v_readlane_b32 s{sdst}, v{v}, 63
        s_nop 1
        """)

    wavesum(vT, sT0)
    g(f"""
    v_mov_b32 v{vT}, 0x3b000000
    v_mul_f32 v{vT}, s{sT0}, v{vT}
    """)
    for e in range(8):
        g(f"v_sub_f32 v{xf+e}, v{xf+e}, v{vT}")
    g(f"v_mul_f32 v{vT+1}, v{xf}, v{xf}")
    for e in range(1, 8):
        g(f"v_fmac_f32 v{vT+1}, v{xf+e}, v{xf+e}")
    wavesum(vT + 1, sT1)
    g(f"""
    v_mov_b32 v{vT+1}, 0x3b000000
    v_mul_f32 v{vT+1}, s{sT1}, v{vT+1}
    v_cvt_pk_bf16_f32 v{vMB}, v{vT}, v{vT}
    v_lshlrev_b32 v{vMB}, 16, v{vMB}
    v_cvt_pk_bf16_f32 v{vT+1}, v{vT+1}, v{vT+1}
    v_lshlrev_b32 v{vT+1}, 16, v{vT+1}
    v_add_f32 v{vT+1}, 0x3727c5ac, v{vT+1}
    v_cvt_pk_bf16_f32 v{vT+1}, v{vT+1}, v{vT+1}
    v_lshlrev_b32 v{vT+1}, 16, v{vT+1}
    v_sqrt_f32 v{vT+1}, v{vT+1}
    s_nop 0
    v_cvt_pk_bf16_f32 v{vT+1}, v{vT+1}, v{vT+1}
    v_lshlrev_b32 v{vSD}, 16, v{vT+1}
    v_rcp_f32 v{vRS}, v{vSD}
    v_lshlrev_b32 v{vT+4}, 16, v{vXO}
    v_and_b32 v{vT+5}, 0xffff0000, v{vXO}
    """)

    def norm(dst, src):
        g(f"""
        v_sub_f32 v{src}, v{src}, v{vMB}
        v_cvt_pk_bf16_f32 v{src}, v{src}, v{src}
        v_lshlrev_b32 v{src}, 16, v{src}
        v_mul_f32 v{vT+2}, v{src}, v{vRS}
        v_fma_f32 v{vT+3}, -v{vT+2}, v{vSD}, v{src}
        v_fmac_f32 v{vT+2}, v{vT+3}, v{vRS}
        v_cvt_pk_bf16_f32 v{dst}, v{vT+2}, v{vT+2}
        """)

    norm(vX0, vT + 4)
    norm(vX1, vT + 5)
    for e in range(8):
        g(f"v_mov_b32 v{vACC+e}, 0")
    st(9)
    g.c("q partial: tile t=2c'+u rows k = 128j + 32s + t")
    mkA(vA, vX0, 0)
    for t in range(32):
        if t < 31:
            t1 = t + 1
            mkA(vA + 4 * (t1 & 1), vX1 if (t1 & 1) else vX0, t1 >> 1)
        g(f"s_waitcnt vmcnt({48-t})")
        if t == 0:
            st(10)
        g(f"v_mfma_f32_16x16x32_bf16 {vr(vACC)}, {vr(vA+4*(t&1))}, {vr(vW+4*t)}, {vr(vACC)}")
    st(11)
    g.c("ffn hidden partial: tile u rows k = 128j + 32s + 2u + (c>>3)")
    for u in range(16):
        a = vA + 4 * (u & 1)
        tb = vTB + (u & 1)
        g(f"v_mov_b32_dpp v{tb}, v{vX0} row_newbcast:{u} row_mask:0xf bank_mask:0x3")
        g(f"v_mov_b32_dpp v{tb}, v{vX1} row_newbcast:{u} row_mask:0xf bank_mask:0xc")
        for t in range(4):
            g(f"v_and_b32 v{a+t}, v{tb}, v{vM2+t}")
        if u == 1:
            g(f"""
            v_lshlrev_b32 v{vDL}, 5, v{vC}
            v_lshl_add_u32 v{vDL}, v{vS}, 4, v{vDL}
            s_lshl_b32 s{sT0}, s{sJ}, 9
            v_add_u32 v{vT}, s{sT0}, v{vDL}
            s_mov_b64 exec, {sr(sLO32,2)}
            ds_write_b128 v{vT}, {vr(vACC)} offset:{L_QP}
            s_mov_b64 exec, -1
            s_nop 3
            """)
        g(f"s_waitcnt vmcnt({16-u})")
        g("s_nop 0")
        g(f"v_mfma_f32_16x16x32_bf16 {vr(vACC2)}, {vr(a)}, {vr(vW1+4*u)}, {vr(vACC2)}")
    st(12)
    g.c("hidden halves to LDS: lanes (s'<2,c'<8) -> [0..64), lanes (s'>=2,c'>=8) -> [64..128)")
    g(f"""
    v_lshrrev_b32 v{vT}, 1, v{vS}
    v_lshrrev_b32 v{vT+1}, 3, v{vC}
    v_cmp_eq_u32 vcc, v{vT}, v{vT+1}
    v_lshlrev_b32 v{vT}, 8, v{vT}
    v_and_b32 v{vT+1}, 7, v{vC}
    v_lshl_add_u32 v{vT}, v{vT+1}, 5, v{vT}
    v_and_b32 v{vT+1}, 1, v{vS}
    v_lshl_add_u32 v{vT}, v{vT+1}, 4, v{vT}
    v_add_u32 v{vT}, s{sT0}, v{vT}
    s_and_saveexec_b64 {sr(sEX,2)}, vcc
    ds_write_b128 v{vT}, {vr(vACC2)} offset:{L_HP}
    s_mov_b64 exec, -1
    """)
    g.c("w2 tile t: row = 8c0 + 4t + s, cols j*128 + 8c ; wo tile t=2c'+u: rows d = 32 s + t")
    g(f"""
    s_lshl_b32 s{sT0}, s{sC0}, 13
    s_lshl_b32 s{sT2}, s{sJ}, 8
    v_lshlrev_b32 v{vOFF2}, 10, v{vS}
    v_lshl_add_u32 v{vOFF2}, v{vC}, 4, v{vOFF2}
    v_add_u32 v{vOFF2}, s{sT0}, v{vOFF2}
    v_add_u32 v{vOFF2}, s{sT2}, v{vOFF2}
    s_mov_b32 s{SRD_B}, s{sW2}
    s_mov_b32 s{SRD_B+1}, s{sW2+1}
    s_lshl_b32 s{sT1}, s{sNCH}, 13
    s_add_u32 s{SRD_B+2}, s{sT0}, s{sT1}
    s_mov_b32 s{SRD_B+3}, 0x20000
    s_lshl_b32 s{sT0}, s{sH}, 17
    s_add_u32 s{sT0}, s{sT0}, s{sT2}
    v_lshlrev_b32 v{vOFF}, 15, v{vS}
    v_lshl_add_u32 v{vOFF}, v{vC}, 4, v{vOFF}
    v_add_u32 v{vOFF}, s{sT0}, v{vOFF}
    v_lshlrev_b32 v{vT+5}, 2, v{vHI}
    s_mov_b32 s{sOFF}, 0
    """)
    if noffn:
        g(f"s_mov_b32 s{SRD_B+2}, 0")
    srd(SRD_A, sWO, 0 if nowo else 0x400000)
    g(f"""
    s_waitcnt lgkmcnt(0)
    s_barrier
    s_setprio {hprio2}
    """)
    st(13)
    hp = 48
    for j in range(4):
        g(f"ds_read2_b32 v[{hp+2*j}:{hp+2*j+1}], v{vT+5} offset0:{(L_HP+512*j)//4 - 512} offset1:{(L_HP+512*j)//4 - 512 + 64}" if False else
          f"ds_read_b32 v{hp+2*j}, v{vT+5} offset:{L_HP+512*j}\nds_read_b32 v{hp+2*j+1}, v{vT+5} offset:{L_HP+512*j+256}")
    for t in range(12):
        g(f"buffer_load_dwordx4 {vr(vW1+4*t)}, v{vOFF2}, {sr(SRD_B)}, s{sOFF} offen {wpol}")
        g(f"s_add_u32 s{sOFF}, s{sOFF}, 4096")
    g(f"s_mov_b32 s{sOFF}, 0")
    for t in range(32):
        g(f"buffer_load_dwordx4 {vr(vW+4*t)}, v{vOFF}, {sr(SRD_A)}, s{sOFF} offen offset:{1024*(t&3)} {wpol}")
        if (t & 3) == 3:
            g(f"s_add_u32 s{sOFF}, s{sOFF}, 4096")
    st(2)
    g(f"""
    s_waitcnt lgkmcnt(0)
    v_add_f32 v{hp}, v{hp}, v{hp+1}
    v_add_f32 v{hp+2}, v{hp+2}, v{hp+3}
    v_add_f32 v{hp+4}, v{hp+4}, v{hp+5}
    v_add_f32 v{hp+6}, v{hp+6}, v{hp+7}
    v_add_f32 v{hp}, v{hp}, v{hp+2}
    v_add_f32 v{hp+4}, v{hp+4}, v{hp+6}
    v_add_f32 v{vT}, v{hp}, v{hp+4}
    v_cvt_pk_bf16_f32 v{vT}, v{vT}, v{vT}
    v_lshlrev_b32 v{vT}, 16, v{vT}
    s_waitcnt vmcnt(44)
    v_lshlrev_b32 v{vB1}, 16, v{vB1}
    v_add_f32 v{vT}, v{vT}, v{vB1}
    v_cvt_pk_bf16_f32 v{vT}, v{vT}, v{vT}
    v_lshlrev_b32 v{vT}, 16, v{vT}
    v_cmp_lt_f32 vcc, 0, v{vT}
    s_lshl_b32 s{sT1}, s{sNCH}, 3
    v_cmp_gt_u32 {sr(sEX,2)}, s{sT1}, v{vHI}
    s_nop 1
    s_and_b64 vcc, vcc, {sr(sEX,2)}
    s_nop 1
    v_cndmask_b32 v{vT}, 0, v{vT}, vcc
    v_mul_f32 v{vT}, v{vT}, v{vT}
    v_cvt_pk_bf16_f32 v{vH}, v{vT}, v{vT}
    """)
    for e in range(4):
        g(f"v_mov_b32 v{vACC+e}, 0")
    for t in range(12):
        a = vA + 4 * (t & 1)
        mkA(a, vH, t)
        g(f"s_waitcnt vmcnt({43-t})")
        g("s_nop 0")
        g(f"v_mfma_f32_16x16x32_bf16 {vr(vACC)}, {vr(a)}, {vr(vW1+4*t)}, {vr(vACC)}")
    st(3)
    g.c("clearing duty: wave 4 of WG (b, 28+jj) clears column block jj of all 32 slots of batch b")
    g(f"""
    s_cmp_lt_u32 s{sH}, 28
    s_cbranch_scc1 L_noclear
    s_cmp_lg_u32 s{sJ}, 0
    s_cbranch_scc1 L_noclear
    s_lshl_b32 s{sT0}, s{sB}, 16
    s_add_u32 s{SRD_C}, s{sWS}, s{sT0}
    s_addc_u32 s{SRD_C+1}, s{sWS+1}, 0
    s_mov_b32 s{SRD_C+2}, 0x10000
    s_mov_b32 s{SRD_C+3}, 0x20000
    s_sub_u32 s{sT2}, s{sH}, 28
    s_lshl_b32 s{sT0}, s{sT2}, 9
    v_lshrrev_b32 v{vT}, 5, v{vLANE}
    v_lshlrev_b32 v{vT}, 11, v{vT}
    v_and_b32 v{vT+1}, 31, v{vLANE}
    v_lshl_add_u32 v{vT}, v{vT+1}, 4, v{vT}
    v_add_u32 v{vT}, s{sT0}, v{vT}
    v_mov_b32 v{vW1}, -1
    v_mov_b32 v{vW1+1}, -1
    v_mov_b32 v{vW1+2}, -1
    v_mov_b32 v{vW1+3}, -1
    s_mov_b32 s{sOFF}, 0
    """)
    for i in range(16):
        g(f"buffer_store_dwordx4 {vr(vW1)}, v{vT}, {sr(SRD_C)}, s{sOFF} offen sc1")
        g(f"s_add_u32 s{sOFF}, s{sOFF}, 4096")
    g(f"""
    s_lshl_b32 s{sT0}, s{sB}, 2
    s_add_u32 s{sT0}, s{sT0}, s{sT2}
    s_lshl_b32 s{sT0}, s{sT0}, 3
    v_mov_b32 v{vT}, s{sT0}
    v_mov_b32 v{vT+1}, 1
    s_waitcnt vmcnt(0)
    s_mov_b64 exec, 1
    global_store_dword v{vT}, v{vT+1}, {sr(sDBG,2)} sc1
    s_mov_b64 exec, -1
    L_noclear:
    """)
    g.c("wait until column block j of batch b has been cleared")
    g(f"""
    s_lshl_b32 s{sT0}, s{sB}, 2
    s_add_u32 s{sT0}, s{sT0}, s{sJ}
    s_lshl_b32 s{sT0}, s{sT0}, 3
    v_mov_b32 v{vT}, s{sT0}
    s_mov_b32 s{sIT}, 0
    s_mov_b64 exec, 1
    L_fwait:
    global_load_dword v{vT+1}, v{vT}, {sr(sDBG,2)} sc1
    s_add_u32 s{sIT}, s{sIT}, 1
    s_waitcnt vmcnt(0)
    v_readfirstlane_b32 s{sT1}, v{vT+1}
    s_cmp_gt_u32 s{sIT}, 0x8000
    s_cbranch_scc1 L_fdone
    s_cmp_lg_u32 s{sT1}, 0
    s_cbranch_scc1 L_fdone
    s_sleep 64
    s_branch L_fwait
    L_fdone:
    s_mov_b64 exec, -1
    s_lshl_b32 s{sT0}, s2, 11
    s_lshl_b32 s{sT1}, s{sJ}, 9
    s_add_u32 s{sT0}, s{sT0}, s{sT1}
    v_add_u32 v{vPO}, s{sT0}, v{vDL}
    v_lshlrev_b32 v{vT}, 7, v{vS}
    v_lshl_add_u32 v{vT}, v{vC}, 3, v{vT}
    v_mov_b32 v{vT+1}, 0
    v_mov_b32 v{vT+2}, -2
    s_mov_b32 s{sT3}, 0x3fb8aa3b
    """)
    st(8)
    g("s_barrier")
    g.c("combine the 4 streamer partials")
    o = 64
    m = 72
    u = 80
    g(f"""
    ds_read_b128 v[{m}:{m+3}], v{vT+1} offset:{L_ML}
    ds_read_b128 v[{m+4}:{m+7}], v{vT+1} offset:{L_ML+16}
    ds_read_b64 v[{o}:{o+1}], v{vT} offset:{L_OP}
    ds_read_b64 v[{o+2}:{o+3}], v{vT} offset:{L_OP+512}
    ds_read_b64 v[{o+4}:{o+5}], v{vT} offset:{L_OP+1024}
    ds_read_b64 v[{o+6}:{o+7}], v{vT} offset:{L_OP+1536}
    s_waitcnt lgkmcnt(4)
    v_max3_f32 v{u}, v{m}, v{m+2}, v{m+4}
    v_max_f32 v{u}, v{u}, v{m+6}
    v_sub_f32 v{m}, v{m}, v{u}
    v_sub_f32 v{m+2}, v{m+2}, v{u}
    v_sub_f32 v{m+4}, v{m+4}, v{u}
    v_sub_f32 v{m+6}, v{m+6}, v{u}
    v_mul_f32 v{m}, s{sT3}, v{m}
    v_mul_f32 v{m+2}, s{sT3}, v{m+2}
    v_mul_f32 v{m+4}, s{sT3}, v{m+4}
    v_mul_f32 v{m+6}, s{sT3}, v{m+6}
    v_exp_f32 v{m}, v{m}
    v_exp_f32 v{m+2}, v{m+2}
    v_exp_f32 v{m+4}, v{m+4}
    v_exp_f32 v{m+6}, v{m+6}
    v_mul_f32 v{u+1}, v{m}, v{m+1}
    v_fmac_f32 v{u+1}, v{m+2}, v{m+3}
    v_fmac_f32 v{u+1}, v{m+4}, v{m+5}
    v_fmac_f32 v{u+1}, v{m+6}, v{m+7}
    v_rcp_f32 v{u+2}, v{u+1}
    s_waitcnt lgkmcnt(0)
    v_mul_f32 v{o}, v{m}, v{o}
    v_mul_f32 v{o+1}, v{m}, v{o+1}
    v_fmac_f32 v{o}, v{m+2}, v{o+2}
    v_fmac_f32 v{o+1}, v{m+2}, v{o+3}
    v_fmac_f32 v{o}, v{m+4}, v{o+4}
    v_fmac_f32 v{o+1}, v{m+4}, v{o+5}
    v_fmac_f32 v{o}, v{m+6}, v{o+6}
    v_fmac_f32 v{o+1}, v{m+6}, v{o+7}
    v_mul_f32 v{u+3}, v{o}, v{u+2}
    v_mul_f32 v{u+4}, v{o+1}, v{u+2}
    v_fma_f32 v{u+5}, -v{u+3}, v{u+1}, v{o}
    v_fma_f32 v{u+6}, -v{u+4}, v{u+1}, v{o+1}
    v_fmac_f32 v{u+3}, v{u+5}, v{u+2}
    v_fmac_f32 v{u+4}, v{u+6}, v{u+2}
    v_cvt_pk_bf16_f32 v{vX0}, v{u+3}, v{u+3}
    v_cvt_pk_bf16_f32 v{vX1}, v{u+4}, v{u+4}
    s_nop 0
    """)
    mkA(vA, vX0, 0)
    for t in range(32):
        if t < 31:
            t1 = t + 1
            mkA(vA + 4 * (t1 & 1), vX1 if (t1 & 1) else vX0, t1 >> 1)
        else:
            g("s_nop 0")
        g(f"v_mfma_f32_16x16x32_bf16 {vr(vACC)}, {vr(vA+4*(t&1))}, {vr(vW+4*t)}, {vr(vACC)}")
    g(f"""
    s_nop 7
    v_min_u32 v{vACC}, v{vT+2}, v{vACC}
    v_min_u32 v{vACC+1}, v{vT+2}, v{vACC+1}
    v_min_u32 v{vACC+2}, v{vT+2}, v{vACC+2}
    v_min_u32 v{vACC+3}, v{vT+2}, v{vACC+3}
    s_mov_b64 exec, {sr(sLO32,2)}
    global_store_dwordx4 v{vPO}, {vr(vACC)}, {sr(sWS,2)} sc1
    s_mov_b64 exec, -1
    """)
    if stamps:
        st(1)
        st(4)
        emit_stamps(g, sST, 14, sWS, sWAVE, vT, sT0)
    g("""
    L_end:
    s_endpgm
    """)

    out = HEADER
    out += f"; @launch grid=(256,1,1) block=(512,1,1) lds={LDS}\n"
    out += f""".amdgcn_target "amdgcn-amd-amdhsa--gfx950"
.text
.globl {KNAME}
.p2align 8
.type {KNAME},@function
{KNAME}:
"""
    out += g.text()
    out += f""".section .rodata,"a"
.p2align 6
.amdhsa_kernel {KNAME}
  .amdhsa_next_free_vgpr 256
  .amdhsa_next_free_sgpr 96
  .amdhsa_accum_offset 256
  .amdhsa_group_segment_fixed_size 0
  .amdhsa_kernarg_size 104
  .amdhsa_user_sgpr_count 2
  .amdhsa_user_sgpr_kernarg_segment_ptr 1
  .amdhsa_system_sgpr_workgroup_id_x 1
  .amdhsa_float_denorm_mode_32 3
.end_amdhsa_kernel
"""
    return out


def emit_stamps(g, sST, n, sWS, sWAVE, vT, sT0):
    g(f"""
    s_lshl_b32 s{sT0}, s2, 3
    s_add_u32 s{sT0}, s{sT0}, s{sWAVE}
    s_lshl_b32 s{sT0}, s{sT0}, 7
    s_add_u32 s{sT0}, s{sT0}, 0x1000000
    v_mov_b32 v{vT}, s{sT0}
    s_getreg_b32 s{sT0}, hwreg(HW_REG_XCC_ID)
    s_waitcnt lgkmcnt(0)
    s_mov_b64 exec, 1
    """)
    for k in range(n):
        g(f"v_mov_b32 v{vT+1}, s{sST+2*k}")
        g(f"global_store_dword v{vT}, v{vT+1}, {sr(sWS,2)} offset:{4*k}")
    g(f"v_mov_b32 v{vT+1}, s{sT0}")
    g(f"global_store_dword v{vT}, v{vT+1}, {sr(sWS,2)} offset:64")
    g("s_mov_b64 exec, -1")


if __name__ == "__main__":
    out = sys.argv[1] if len(sys.argv) > 1 else "cdna_kernels/" + NAME + ".s"
    kw = {}
    for a in sys.argv[2:]:
        k, v = a.split("=")
        kw[k] = eval(v)
    open(out, "w").write(gen(**kw))
    print("wrote", out)
```

```python
import sys, os

NAME = "parallel_sum__gqa_block_cached__dense_activation_squared_relu__decode"
KNAME = NAME + "_kernel"
HEADER = open("cdna_kernels/" + NAME + ".s.ref").read().split("; Override launch")[0]


class G:
    def __init__(self):
        self.L = []

    def __call__(self, s):
        for line in s.strip("\n").split("\n"):
            t = line.strip()
            if not t:
                continue
            self.L.append(t if t.endswith(":") else "  " + t)

    def c(self, s):
        self.L.append("  ; " + s)

    def text(self):
        return "\n".join(self.L) + "\n"


def vr(b, n=4):
    return f"v[{b}:{b+n-1}]"


def sr(b, n=4):
    return f"s[{b}:{b+n-1}]"


def gen(R=32, DS=6, stamps=False, pol="nt", wpol="", hprio=0, hprio2=0, D0=0, slp=64, DK1=0, NK1=0, DV=0, alt=False, noproto=False, early=False, DV2=0, NV2=0, nocons=False,
        noffn=False, nowo=False, nowq=False):
    g = G()

    def st(k):
        if stamps:
            g(f"s_memrealtime s[{66+2*k}:{67+2*k}]")

    L_QP = 0
    L_HP = 2048
    L_OP = 4096
    L_ML = 6144
    L_CNT = 6400
    L_SC = 8192
    LDS = 8192 + 16384 + 256
    sX, sK, sV, sWQ, sWO, sBX, sW1, sB1 = 4, 6, 8, 10, 12, 14, 16, 18
    sW2, sB2, sOUT, sDBG, sWS = 20, 22, 24, 26, 28
    sWAVE, sB, sH = 30, 31, 3
    SRD_A, SRD_B, SRD_PF, SRD_C = 32, 36, 40, 44
    sOFF, sIT, sT0, sT1, sT2, sT3 = 48, 49, 50, 51, 52, 53
    sM, sC0, sNCH, sJ = 54, 55, 56, 57
    sMASKC1, sMASKC0, sEX = 58, 60, 62
    sLO32 = 64
    sST = 66
    vTID, vLANE, vS, vC = 0, 1, 2, 3
    vMASK = 4
    vOFF, vOFF2 = 8, 9
    vT = 10
    vA = 16
    vACC = 24
    vQ = 28
    vP = 32
    vMAX, vL, vPP, vSC, vLDS = 48, 49, 50, 51, 52
    vX = 56
    vRING = 256 - 4 * R
    assert vRING >= 64 and R % 16 == 0
    NL = 256
    NIT = NL // R
    NG = R // 16

    def mkA(dst, src, lane):
        for t in range(4):
            g(f"v_and_b32_dpp v{dst+t}, v{src}, v{vMASK+t} row_newbcast:{lane} row_mask:0xf bank_mask:0xf")

    def srd(d, base, size):
        g(f"""
        s_mov_b32 s{d}, s{base}
        s_mov_b32 s{d+1}, s{base+1}
        s_mov_b32 s{d+2}, {size}
        s_mov_b32 s{d+3}, 0x20000
        """)

    g(f"""
    s_cmp_ge_u32 s2, 256
    s_cbranch_scc1 L_end
    s_load_dwordx16 s[4:19], s[0:1], 0
    s_load_dwordx8 s[20:27], s[0:1], 64
    s_load_dwordx2 s[28:29], s[0:1], 96
    """)
    st(0)
    g(f"""
    v_lshrrev_b32 v{vT}, 6, v{vTID}
    v_and_b32 v{vLANE}, 63, v{vTID}
    v_readfirstlane_b32 s{sWAVE}, v{vT}
    v_lshrrev_b32 v{vS}, 4, v{vLANE}
    v_and_b32 v{vC}, 15, v{vLANE}
    s_lshr_b32 s{sB}, s2, 5
    s_and_b32 s{sH}, s2, 31
    s_mov_b32 s{sLO32}, -1
    s_mov_b32 s{sLO32+1}, 0
    s_cmp_ge_u32 s{sWAVE}, 4
    s_cbranch_scc1 L_helper
    """)

    def masks(dst, full):
        g(f"""
        v_and_b32 v{vT}, 1, v{vC}
        v_lshlrev_b32 v{vT}, 4, v{vT}
        v_mov_b32 v{vT+1}, 0xffff
        v_lshlrev_b32 v{vT+1}, v{vT}, v{vT+1}
        """)
        if full:
            g(f"v_bfe_u32 v{vT+2}, v{vC}, 1, 2")
        else:
            g(f"v_lshrrev_b32 v{vT+2}, 1, v{vC}")
        for t in range(4):
            g(f"""
            v_cmp_eq_u32 vcc, {t}, v{vT+2}
            s_nop 1
            v_cndmask_b32 v{dst+t}, 0, v{vT+1}, vcc
            """)

    g.c("=========== streamer waves 0..3")
    g(f"""
    s_lshl_b32 s{sT0}, s{sWAVE}, 10
    v_lshlrev_b32 v{vOFF}, 4, v{vLANE}
    v_add_u32 v{vOFF}, s{sT0}, v{vOFF}
    s_lshl_b32 s{sT1}, s2, 20
    s_mov_b32 s{sOFF}, 0
    s_mov_b32 s{SRD_PF+2}, 0x100000
    s_mov_b32 s{SRD_PF+3}, 0x20000
    s_waitcnt lgkmcnt(0)
    s_add_u32 s{SRD_PF}, s{sK}, s{sT1}
    s_addc_u32 s{SRD_PF+1}, s{sK+1}, 0
    """)

    def pf(b):
        g(f"buffer_load_dwordx4 {vr(vRING+4*b)}, v{vOFF}, {sr(SRD_PF)}, s{sOFF} offen {pol}")
        g(f"s_add_u32 s{sOFF}, s{sOFF}, 4096")

    st(5)
    if not D0:
        D0 = DS
    for b in range(D0):
        pf(b)
    g(f"""
    s_add_u32 s{SRD_B}, s{sV}, s{sT1}
    s_addc_u32 s{SRD_B+1}, s{sV+1}, 0
    """)
    masks(vMASK, False)
    g(f"""
    v_and_b32 v{vT}, 2, v{vC}
    v_cmp_ne_u32 {sr(sMASKC1,2)}, 0, v{vT}
    v_and_b32 v{vT}, 1, v{vC}
    v_cmp_ne_u32 {sr(sMASKC0,2)}, 0, v{vT}
    v_mov_b32 v{vMAX}, 0xff800000
    v_mov_b32 v{vL}, 0
    s_lshl_b32 s{sT0}, s{sWAVE}, 12
    s_add_u32 s{sT0}, s{sT0}, {L_SC}
    v_lshlrev_b32 v{vLDS}, 2, v{vLANE}
    v_add_u32 v{vLDS}, s{sT0}, v{vLDS}
    v_lshlrev_b32 v{vT}, 5, v{vC}
    v_mov_b32 v{vACC}, 0
    v_mov_b32 v{vACC+1}, 0
    v_mov_b32 v{vACC+2}, 0
    v_mov_b32 v{vACC+3}, 0
    s_mov_b32 s{sIT}, 0
    s_mov_b32 s{sT3}, 0x3db504f3
    """)
    for b in range(D0, R):
        g(f"s_waitcnt vmcnt({D0-1})")
        pf(b)
    st(8)
    g("s_barrier")
    g.c("q = sum of 4 partials, lane (s,c) takes q[8c..8c+8)")
    tq = [vP, vP + 8, vA, vX]
    for j in range(4):
        g(f"ds_read_b128 {vr(tq[j])}, v{vT} offset:{L_QP+512*j}")
        g(f"ds_read_b128 {vr(tq[j]+4)}, v{vT} offset:{L_QP+512*j+16}")
    g("s_waitcnt lgkmcnt(4)")
    for e in range(8):
        g(f"v_add_f32 v{tq[0]+e}, v{tq[0]+e}, v{tq[1]+e}")
    g("s_waitcnt lgkmcnt(0)")
    for e in range(8):
        g(f"v_add_f32 v{tq[2]+e}, v{tq[2]+e}, v{tq[3]+e}")
    for e in range(8):
        g(f"v_add_f32 v{tq[0]+e}, v{tq[0]+e}, v{tq[2]+e}")
    for t in range(4):
        g(f"v_cvt_pk_bf16_f32 v{vQ+t}, v{tq[0]+2*t}, v{tq[0]+2*t+1}")
    st(1)

    def kgroup(slot, ldsoff, DS=DS):
        g(f"""
        s_cmp_eq_u32 s{sIT}, {16-NG}
        s_cselect_b32 s{SRD_PF}, s{SRD_B}, s{SRD_PF}
        s_cselect_b32 s{SRD_PF+1}, s{SRD_B+1}, s{SRD_PF+1}
        s_cselect_b32 s{sOFF}, 0, s{sOFF}
        s_add_u32 s{sIT}, s{sIT}, 1
        """)
        for j in range(16):
            b = slot * 16 + j
            rb = vRING + 4 * b
            if DS == R:
                g(f"s_waitcnt vmcnt({DS-1})")
            g(f"v_dot2_f32_bf16 v{vP+j}, v{rb}, v{vQ}, 0")
            for t in range(1, 4):
                g(f"v_dot2_f32_bf16 v{vP+j}, v{rb+t}, v{vQ+t}, v{vP+j}")
            if DS < R:
                g(f"s_waitcnt vmcnt({DS-1+(j&1 if alt else 0)})")
            pf(b)
        g.c("transposing reduction over the 16 lanes of each row")
        g("s_nop 1")
        for j in range(8):
            g(f"v_add_f32_dpp v{vP+j}, v{vP+j}, v{vP+j} row_ror:8 row_mask:0xf bank_mask:0x3")
            g(f"v_add_f32_dpp v{vP+j}, v{vP+j+8}, v{vP+j+8} row_ror:8 row_mask:0xf bank_mask:0xc")
        for j in range(4):
            g(f"v_add_f32_dpp v{vP+j}, v{vP+j}, v{vP+j} row_half_mirror row_mask:0xf bank_mask:0x5")
            g(f"v_add_f32_dpp v{vP+j}, v{vP+j+4}, v{vP+j+4} row_half_mirror row_mask:0xf bank_mask:0xa")
        for j in range(4):
            g(f"v_add_f32_dpp v{vP+j}, v{vP+j}, v{vP+j} quad_perm:[2,3,0,1] row_mask:0xf bank_mask:0xf")
        g(f"v_cndmask_b32 v{vP+0}, v{vP+0}, v{vP+2}, {sr(sMASKC1,2)}")
        g(f"v_cndmask_b32 v{vP+1}, v{vP+1}, v{vP+3}, {sr(sMASKC1,2)}")
        g("s_nop 1")
        g(f"v_add_f32_dpp v{vP+0}, v{vP+0}, v{vP+0} quad_perm:[1,0,3,2] row_mask:0xf bank_mask:0xf")
        g(f"v_add_f32_dpp v{vP+1}, v{vP+1}, v{vP+1} quad_perm:[1,0,3,2] row_mask:0xf bank_mask:0xf")
        g(f"v_cndmask_b32 v{vP+0}, v{vP+0}, v{vP+1}, {sr(sMASKC0,2)}")
        g.c("score = bf16(bf16(q.k) * Dh^-0.5)")
        g(f"""
        v_cvt_pk_bf16_f32 v{vP+0}, v{vP+0}, v{vP+0}
        v_lshlrev_b32 v{vP+0}, 16, v{vP+0}
        v_mul_f32 v{vP+0}, s{sT3}, v{vP+0}
        v_cvt_pk_bf16_f32 v{vP+0}, v{vP+0}, v{vP+0}
        v_lshlrev_b32 v{vSC}, 16, v{vP+0}
        v_max_f32 v{vMAX}, v{vMAX}, v{vSC}
        ds_write_b32 v{vLDS}, v{vSC} offset:{ldsoff}
        """)

    nk = 16 // NG
    if NK1:
        g("L_kloop1:")
        for slot in range(NG):
            kgroup(slot, 256 * slot, DK1)
        g(f"""
        v_add_u32 v{vLDS}, {256*NG}, v{vLDS}
        s_cmp_lt_u32 s{sIT}, {NK1*NG}
        s_cbranch_scc1 L_kloop1
        """)
    g("L_kloop:")
    for slot in range(NG):
        kgroup(slot, 256 * slot)
    g(f"""
    v_add_u32 v{vLDS}, {256*NG}, v{vLDS}
    s_cmp_lt_u32 s{sIT}, {nk*NG}
    s_cbranch_scc1 L_kloop
    """)
    for r in range(16 - nk * NG):
        kgroup(r, 256 * r)
    g.c("wave max")
    g(f"""
    v_subrev_u32 v{vLDS}, {256*NG*nk}, v{vLDS}
    s_nop 0
    v_max_f32_dpp v{vMAX}, v{vMAX}, v{vMAX} row_ror:8 row_mask:0xf bank_mask:0xf
    s_nop 1
    v_max_f32_dpp v{vMAX}, v{vMAX}, v{vMAX} row_ror:4 row_mask:0xf bank_mask:0xf
    s_nop 1
    v_max_f32_dpp v{vMAX}, v{vMAX}, v{vMAX} row_ror:2 row_mask:0xf bank_mask:0xf
    s_nop 1
    v_max_f32_dpp v{vMAX}, v{vMAX}, v{vMAX} row_ror:1 row_mask:0xf bank_mask:0xf
    s_nop 1
    v_max_f32_dpp v{vMAX}, v{vMAX}, v{vMAX} row_bcast:15 row_mask:0xa bank_mask:0xf
    s_nop 1
    v_max_f32_dpp v{vMAX}, v{vMAX}, v{vMAX} row_bcast:31 row_mask:0xc bank_mask:0xf
    s_waitcnt lgkmcnt(0)
    ds_read_b32 v{vSC}, v{vLDS}
    v_readlane_b32 s{sM}, v{vMAX}, 63
    s_mov_b32 s{sT3}, 0x3fb8aa3b
    s_mov_b32 s{sIT}, 0
    """)
    st(2)

    def vgroup(slot, ldsoff, rem, DS=(DV or DS)):
        g(f"""
        s_waitcnt lgkmcnt(0)
        v_subrev_f32 v{vT}, s{sM}, v{vSC}
        v_mul_f32 v{vT}, s{sT3}, v{vT}
        v_exp_f32 v{vT}, v{vT}
        ds_read_b32 v{vSC}, v{vLDS} offset:{ldsoff+256}
        v_add_f32 v{vL}, v{vL}, v{vT}
        v_cvt_pk_bf16_f32 v{vPP}, v{vT}, v{vT}
        s_nop 1
        """)
        mkA(vA, vPP, 0)
        for j in range(16):
            b = slot * 16 + j
            rb = vRING + 4 * b
            if j < 15:
                mkA(vA + 4 * ((j + 1) & 1), vPP, j + 1)
            else:
                g("s_nop 0")
            if rem is not None:
                if rem + 15 - j < DS + 2:
                    g(f"s_waitcnt vmcnt({rem+15-j})")
            elif DS == R:
                g(f"s_waitcnt vmcnt({DS-1})")
            g(f"v_mfma_f32_16x16x32_bf16 {vr(vACC)}, {vr(vA+4*(j&1))}, {vr(rb)}, {vr(vACC)}")
            if rem is None:
                if DS < R:
                    g(f"s_waitcnt vmcnt({DS-1+(j&1 if alt else 0)})")
                pf(b)

    s0 = 16 % NG
    nv = (16 - NG - NV2) // NG
    g("L_vloop:")
    for i in range(NG):
        vgroup((s0 + i) % NG, 256 * i, None)
    g(f"""
    v_add_u32 v{vLDS}, {256*NG}, v{vLDS}
    s_add_u32 s{sIT}, s{sIT}, 1
    s_cmp_lt_u32 s{sIT}, {nv}
    s_cbranch_scc1 L_vloop
    """)
    vFLG, vFLA = 53, 54
    for i, v in enumerate(range(nv * NG, 16)):
        if v == 16 - NG:
            g.c("read the 'slots cleared' flag of column block w (checked by helper w after the barrier)")
            g(f"""
            s_lshl_b32 s{sT0}, s{sB}, 2
            s_add_u32 s{sT0}, s{sT0}, s{sWAVE}
            s_lshl_b32 s{sT0}, s{sT0}, 3
            v_mov_b32 v{vFLA}, s{sT0}
            global_load_dword v{vFLG}, v{vFLA}, {sr(sDBG,2)} sc1
            """)
        vgroup((s0 + v) % NG, 256 * i, None if v < 16 - NG else 16 * (15 - v) + 1,
               DV2 if (NV2 and v >= 16 - NG - NV2) else (DV or DS))
    st(3)
    g.c("l: wave sum ; publish (m,l) and o partial")
    g(f"""
    v_add_f32_dpp v{vL}, v{vL}, v{vL} row_ror:8 row_mask:0xf bank_mask:0xf
    v_lshlrev_b32 v{vT}, 5, v{vC}
    v_lshlrev_b32 v{vT+1}, 4, v{vS}
    v_add_f32_dpp v{vL}, v{vL}, v{vL} row_ror:4 row_mask:0xf bank_mask:0xf
    v_add_u32 v{vT}, v{vT}, v{vT+1}
    s_lshl_b32 s{sT0}, s{sWAVE}, 9
    v_add_f32_dpp v{vL}, v{vL}, v{vL} row_ror:2 row_mask:0xf bank_mask:0xf
    v_add_u32 v{vT}, s{sT0}, v{vT}
    s_lshl_b32 s{sT0}, s{sWAVE}, 3
    v_add_f32_dpp v{vL}, v{vL}, v{vL} row_ror:1 row_mask:0xf bank_mask:0xf
    v_mov_b32 v{vT+2}, s{sT0}
    v_mov_b32 v{vT+4}, s{sM}
    v_add_f32_dpp v{vL}, v{vL}, v{vL} row_bcast:15 row_mask:0xa bank_mask:0xf
    s_nop 1
    v_add_f32_dpp v{vL}, v{vL}, v{vL} row_bcast:31 row_mask:0xc bank_mask:0xf
    s_mov_b64 exec, {sr(sLO32,2)}
    ds_write_b128 v{vT}, {vr(vACC)} offset:{L_OP}
    s_mov_b64 exec, -1
    v_readlane_b32 s{sT1}, v{vL}, 63
    s_nop 1
    v_mov_b32 v{vT+5}, s{sT1}
    ds_write_b64 v{vT+2}, v[{vT+4}:{vT+5}] offset:{L_ML}
    s_waitcnt vmcnt(0)
    ds_write_b32 v{vT+2}, v{vFLG} offset:{L_ML+32}
    s_waitcnt lgkmcnt(0)
    s_barrier
    s_cmp_lt_u32 s{sH}, {99 if (nocons or noproto) else 28}
    s_cbranch_scc1 L_sdone
    """)
    g.c("=========== consumer: wave w of WG (b, 28+jj) reduces columns jj*128+32w .. +32 of batch b")
    vR = vRING
    g(f"""
    s_lshl_b32 s{sT0}, s{sB}, 16
    s_add_u32 s{SRD_C}, s{sWS}, s{sT0}
    s_addc_u32 s{SRD_C+1}, s{sWS+1}, 0
    s_mov_b32 s{SRD_C+2}, 0x10000
    s_mov_b32 s{SRD_C+3}, 0x20000
    s_sub_u32 s{sT2}, s{sH}, 28
    s_lshl_b32 s{sT2}, s{sT2}, 2
    s_add_u32 s{sT2}, s{sT2}, s{sWAVE}
    v_lshrrev_b32 v{vT}, 3, v{vLANE}
    v_lshlrev_b32 v{vT}, 11, v{vT}
    v_and_b32 v{vT+1}, 7, v{vLANE}
    v_lshl_add_u32 v{vT}, v{vT+1}, 4, v{vT}
    s_lshl_b32 s{sT0}, s{sT2}, 7
    v_add_u32 v{vT}, s{sT0}, v{vT}
    s_lshl_b32 s{sT0}, s{sT2}, 6
    v_lshlrev_b32 v{vT+1}, 3, v{vT+1}
    v_add_u32 v{vT+1}, s{sT0}, v{vT+1}
    s_lshl_b32 s{sT0}, s{sB}, 10
    v_add_u32 v{vT+2}, s{sT0}, v{vT+1}
    global_load_dwordx2 v[{vX}:{vX+1}], v{vT+2}, {sr(sX,2)}
    global_load_dwordx2 v[{vX+2}:{vX+3}], v{vT+1}, {sr(sB2,2)}
    s_mov_b32 s{sIT}, 0
    s_movk_i32 s{sT0}, 0x4000
    s_mov_b32 s{sT1}, 0x8000
    s_mov_b32 s{sT2}, 0xc000
    """)
    sMK = [58, 60, 62, 64]
    soffs = ["0", f"s{sT0}", f"s{sT1}", f"s{sT2}"]
    for i in range(4):
        g(f"s_mov_b64 {sr(sMK[i],2)}, -1")
    g("L_poll:")
    for i in range(4):
        g(f"""
        s_mov_b64 exec, {sr(sMK[i],2)}
        s_cbranch_execz L_pk{i}
        buffer_load_dwordx4 {vr(vR+4*i)}, v{vT}, {sr(SRD_C)}, {soffs[i]} offen sc1
        L_pk{i}:
        """)
    g(f"""
    s_mov_b64 exec, -1
    s_add_u32 s{sIT}, s{sIT}, 1
    s_waitcnt vmcnt(0)
    """)
    for i in range(4):
        g(f"v_max3_u32 v{vA+i}, v{vR+4*i}, v{vR+4*i+1}, v{vR+4*i+2}")
        g(f"v_max_u32 v{vA+i}, v{vA+i}, v{vR+4*i+3}")
    for i in range(4):
        g(f"v_cmp_eq_u32 {sr(sMK[i],2)}, -1, v{vA+i}")
    g(f"""
    s_cmp_gt_u32 s{sIT}, 0x80000
    s_cbranch_scc1 L_pdone
    s_or_b64 vcc, {sr(sMK[0],2)}, {sr(sMK[1],2)}
    s_or_b64 vcc, vcc, {sr(sMK[2],2)}
    s_or_b64 vcc, vcc, {sr(sMK[3],2)}
    s_cbranch_scc1 L_poll
    L_pdone:
    """)
    for e in range(4):
        g(f"v_add_f32 v{vR+e}, v{vR+e}, v{vR+4+e}")
        g(f"v_add_f32 v{vR+8+e}, v{vR+8+e}, v{vR+12+e}")
    for e in range(4):
        g(f"v_add_f32 v{vR+e}, v{vR+e}, v{vR+8+e}")
    g("s_nop 1")
    for e in range(4):
        g(f"v_add_f32_dpp v{vR+e}, v{vR+e}, v{vR+e} row_ror:8 row_mask:0xf bank_mask:0xf")
    for op in ("v_permlane16_swap_b32", "v_permlane32_swap_b32"):
        for e in range(4):
            g(f"v_mov_b32 v{vR+4+e}, v{vR+e}")
        g("s_nop 1")
        for e in range(4):
            g(f"{op} v{vR+e}, v{vR+4+e}")
        g("s_nop 1")
        for e in range(4):
            g(f"v_add_f32 v{vR+e}, v{vR+e}, v{vR+4+e}")
    g.c("+ x + b2")
    for e in range(4):
        src_x = vX + (e >> 1)
        src_b = vX + 2 + (e >> 1)
        if e & 1:
            g(f"v_and_b32 v{vR+8}, 0xffff0000, v{src_x}")
            g(f"v_and_b32 v{vR+9}, 0xffff0000, v{src_b}")
        else:
            g(f"v_lshlrev_b32 v{vR+8}, 16, v{src_x}")
            g(f"v_lshlrev_b32 v{vR+9}, 16, v{src_b}")
        g(f"v_add_f32 v{vR+8}, v{vR+8}, v{vR+9}")
        g(f"v_add_f32 v{vR+e}, v{vR+e}, v{vR+8}")
    g(f"""
    v_cvt_pk_bf16_f32 v{vR+10}, v{vR+0}, v{vR+1}
    v_cvt_pk_bf16_f32 v{vR+11}, v{vR+2}, v{vR+3}
    s_mov_b64 exec, 0xff
    global_store_dwordx2 v{vT+2}, v[{vR+10}:{vR+11}], {sr(sOUT,2)}
    s_mov_b64 exec, -1
    L_sdone:
    """)
    if stamps:
        st(4)
        emit_stamps(g, sST, 14, sWS, sWAVE, vT, sT0)
    g("s_endpgm")

    g.c("=========== helper waves 4..7")
    vACC2 = 28
    vM2 = 32
    vX0, vX1, vXO, vPO, vMB, vSD, vRS, vDL = 36, 37, 38, 39, 40, 41, 42, 43
    vTB, vB1, vH, vF = 44, 46, 47, 48
    xf = 48
    vW1 = 64
    vW = 128
    g(f"""
    L_helper:
    s_setprio {hprio}
    s_sub_u32 s{sJ}, s{sWAVE}, 4
    s_lshl_b32 s{sT0}, s{sB}, 10
    v_lshlrev_b32 v{vT}, 4, v{vLANE}
    v_add_u32 v{vT}, s{sT0}, v{vT}
    s_lshl_b32 s{sT1}, s{sJ}, 8
    s_add_u32 s{sT0}, s{sT0}, s{sT1}
    v_lshlrev_b32 v{vT+1}, 2, v{vLANE}
    v_add_u32 v{vT+1}, s{sT0}, v{vT+1}
    """)
    g.c("wq voffset = (128j + 32s)*8192 + h*256 + c*16")
    g(f"""
    s_lshl_b32 s{sT0}, s{sJ}, 20
    s_lshl_b32 s{sT1}, s{sH}, 8
    s_add_u32 s{sT0}, s{sT0}, s{sT1}
    v_lshlrev_b32 v{vOFF}, 18, v{vS}
    v_lshl_add_u32 v{vOFF}, v{vC}, 4, v{vOFF}
    v_add_u32 v{vOFF}, s{sT0}, v{vOFF}
    s_mul_i32 s{sC0}, s{sH}, 43
    s_add_u32 s{sT0}, s{sC0}, 43
    s_lshr_b32 s{sC0}, s{sC0}, 3
    s_lshr_b32 s{sT0}, s{sT0}, 3
    s_sub_u32 s{sNCH}, s{sT0}, s{sC0}
    s_mov_b32 s{sOFF}, 0
    s_waitcnt lgkmcnt(0)
    global_load_dwordx4 {vr(vX)}, v{vT}, {sr(sX,2)}
    global_load_dword v{vXO}, v{vT+1}, {sr(sX,2)}
    """)
    st(5)
    srd(SRD_A, sWQ, 0 if nowq else 0x400000)
    for t in range(32):
        if not nowq:
            g(f"buffer_load_dwordx4 {vr(vW+4*t)}, v{vOFF}, {sr(SRD_A)}, s{sOFF} offen {wpol}")
        g(f"s_add_u32 s{sOFF}, s{sOFF}, 8192")
    st(6)
    st(7)
    masks(vMASK, False)
    masks(vM2, True)
    g.c("layernorm statistics (whole row per wave)")
    g("s_waitcnt vmcnt(0)" if nowq else "s_waitcnt vmcnt(32)")
    st(8)
    for e in range(4):
        g(f"v_lshlrev_b32 v{xf+2*e}, 16, v{vX+e}")
        g(f"v_and_b32 v{xf+2*e+1}, 0xffff0000, v{vX+e}")
    g(f"""
    v_add_f32 v{vT}, v{xf}, v{xf+1}
    v_add_f32 v{vT+1}, v{xf+2}, v{xf+3}
    v_add_f32 v{vT+2}, v{xf+4}, v{xf+5}
    v_add_f32 v{vT+3}, v{xf+6}, v{xf+7}
    v_add_f32 v{vT}, v{vT}, v{vT+1}
    v_add_f32 v{vT+2}, v{vT+2}, v{vT+3}
    v_add_f32 v{vT}, v{vT}, v{vT+2}
    """)

    def wavesum(v, sdst):
        g(f"""
        s_nop 1
        v_add_f32_dpp v{v}, v{v}, v{v} row_ror:8 row_mask:0xf bank_mask:0xf
        s_nop 1
        v_add_f32_dpp v{v}, v{v}, v{v} row_ror:4 row_mask:0xf bank_mask:0xf
        s_nop 1
        v_add_f32_dpp v{v}, v{v}, v{v} row_ror:2 row_mask:0xf bank_mask:0xf
        s_nop 1
        v_add_f32_dpp v{v}, v{v}, v{v} row_ror:1 row_mask:0xf bank_mask:0xf
        s_nop 1
        v_add_f32_dpp v{v}, v{v}, v{v} row_bcast:15 row_mask:0xa bank_mask:0xf
        s_nop 1
        v_add_f32_dpp v{v}, v{v}, v{v} row_bcast:31 row_mask:0xc bank_mask:0xf
        s_nop 1
        v_readlane_b32 s{sdst}, v{v}, 63
        s_nop 1
        """)

    wavesum(vT, sT0)
    g(f"""
    v_mov_b32 v{vT}, 0x3b000000
    v_mul_f32 v{vT}, s{sT0}, v{vT}
    """)
    for e in range(8):
        g(f"v_sub_f32 v{xf+e}, v{xf+e}, v{vT}")
    g(f"v_mul_f32 v{vT+1}, v{xf}, v{xf}")
    for e in range(1, 8):
        g(f"v_fmac_f32 v{vT+1}, v{xf+e}, v{xf+e}")
    wavesum(vT + 1, sT1)
    g(f"""
    v_mov_b32 v{vT+1}, 0x3b000000
    v_mul_f32 v{vT+1}, s{sT1}, v{vT+1}
    v_cvt_pk_bf16_f32 v{vMB}, v{vT}, v{vT}
    v_lshlrev_b32 v{vMB}, 16, v{vMB}
    v_cvt_pk_bf16_f32 v{vT+1}, v{vT+1}, v{vT+1}
    v_lshlrev_b32 v{vT+1}, 16, v{vT+1}
    v_add_f32 v{vT+1}, 0x3727c5ac, v{vT+1}
    v_cvt_pk_bf16_f32 v{vT+1}, v{vT+1}, v{vT+1}
    v_lshlrev_b32 v{vT+1}, 16, v{vT+1}
    v_sqrt_f32 v{vT+1}, v{vT+1}
    s_nop 0
    v_cvt_pk_bf16_f32 v{vT+1}, v{vT+1}, v{vT+1}
    v_lshlrev_b32 v{vSD}, 16, v{vT+1}
    v_rcp_f32 v{vRS}, v{vSD}
    v_lshlrev_b32 v{vT+4}, 16, v{vXO}
    v_and_b32 v{vT+5}, 0xffff0000, v{vXO}
    """)

    def norm(dst, src):
        g(f"""
        v_sub_f32 v{src}, v{src}, v{vMB}
        v_cvt_pk_bf16_f32 v{src}, v{src}, v{src}
        v_lshlrev_b32 v{src}, 16, v{src}
        v_mul_f32 v{vT+2}, v{src}, v{vRS}
        v_fma_f32 v{vT+3}, -v{vT+2}, v{vSD}, v{src}
        v_fmac_f32 v{vT+2}, v{vT+3}, v{vRS}
        v_cvt_pk_bf16_f32 v{dst}, v{vT+2}, v{vT+2}
        """)

    norm(vX0, vT + 4)
    norm(vX1, vT + 5)
    for e in range(8):
        g(f"v_mov_b32 v{vACC+e}, 0")
    st(9)
    g.c("q partial: tile t=2c'+u rows k = 128j + 32s + t")
    mkA(vA, vX0, 0)
    for t in range(32):
        if t < 31:
            t1 = t + 1
            mkA(vA + 4 * (t1 & 1), vX1 if (t1 & 1) else vX0, t1 >> 1)
        g(f"s_waitcnt vmcnt({31-t})")
        if t == 0:
            st(10)
        g(f"v_mfma_f32_16x16x32_bf16 {vr(vACC)}, {vr(vA+4*(t&1))}, {vr(vW+4*t)}, {vr(vACC)}")
    st(11)
    g(f"""
    v_lshlrev_b32 v{vDL}, 5, v{vC}
    v_lshl_add_u32 v{vDL}, v{vS}, 4, v{vDL}
    s_lshl_b32 s{sT0}, s{sJ}, 9
    v_add_u32 v{vT}, s{sT0}, v{vDL}
    v_mov_b32 v{vT+1}, 0
    v_mov_b32 v{vT+2}, {L_CNT}
    s_nop 2
    s_mov_b64 exec, {sr(sLO32,2)}
    ds_write_b128 v{vT}, {vr(vACC)} offset:{L_QP}
    s_mov_b64 exec, -1
    ds_write_b32 v{vT+2}, v{vT+1}
    s_waitcnt lgkmcnt(0)
    s_barrier
    s_setprio {hprio2}
    """)
    st(13)
    g.c("w1 voffset: (128j + 32s + (c>>3))*2752 + (c0 + (c&7))*16, out of range if (c&7) >= nch")
    g(f"""
    v_lshrrev_b32 v{vT}, 3, v{vC}
    v_lshl_add_u32 v{vT}, v{vS}, 5, v{vT}
    s_lshl_b32 s{sT0}, s{sJ}, 7
    v_add_u32 v{vT}, s{sT0}, v{vT}
    v_mul_u32_u24 v{vT}, 2752, v{vT}
    v_and_b32 v{vT+1}, 7, v{vC}
    v_add_u32 v{vT+2}, s{sC0}, v{vT+1}
    v_lshl_add_u32 v{vOFF2}, v{vT+2}, 4, v{vT}
    v_cmp_gt_u32 vcc, s{sNCH}, v{vT+1}
    v_mov_b32 v{vT+3}, 0x40000000
    s_mov_b32 s{sOFF}, 0
    v_cndmask_b32 v{vOFF2}, v{vT+3}, v{vOFF2}, vcc
    """)
    srd(SRD_B, sW1, 0 if noffn else 512 * 2752)
    for u in range(16):
        if not noffn:
            g(f"buffer_load_dwordx4 {vr(vW1+4*u)}, v{vOFF2}, {sr(SRD_B)}, s{sOFF} offen {wpol}")
        g(f"s_add_u32 s{sOFF}, s{sOFF}, {2*2752}")
    g.c("b1: lane (s,c) -> hidden unit 4c+s")
    vHI = 60
    g(f"""
    s_mov_b32 s{SRD_C}, s{sB1}
    s_mov_b32 s{SRD_C+1}, s{sB1+1}
    s_add_u32 s{sT1}, s{sC0}, s{sNCH}
    s_lshl_b32 s{SRD_C+2}, s{sT1}, 4
    s_mov_b32 s{SRD_C+3}, 0x20000
    v_lshl_add_u32 v{vHI}, v{vC}, 2, v{vS}
    s_lshl_b32 s{sT1}, s{sC0}, 4
    v_lshlrev_b32 v{vT+5}, 1, v{vHI}
    v_add_u32 v{vT+5}, s{sT1}, v{vT+5}
    buffer_load_ushort v{vB1}, v{vT+5}, {sr(SRD_C)}, 0 offen
    """)
    g.c("ffn hidden partial: tile u rows k = 128j + 32s + 2u + (c>>3)")
    for u in range(16):
        a = vA + 4 * (u & 1)
        tb = vTB + (u & 1)
        g(f"v_mov_b32_dpp v{tb}, v{vX0} row_newbcast:{u} row_mask:0xf bank_mask:0x3")
        g(f"v_mov_b32_dpp v{tb}, v{vX1} row_newbcast:{u} row_mask:0xf bank_mask:0xc")
        for t in range(4):
            g(f"v_and_b32 v{a+t}, v{tb}, v{vM2+t}")
        g(f"s_waitcnt vmcnt({16-u})")
        g("s_nop 0")
        g(f"v_mfma_f32_16x16x32_bf16 {vr(vACC2)}, {vr(a)}, {vr(vW1+4*u)}, {vr(vACC2)}")
    st(12)
    g.c("hidden halves to LDS: lanes (s'<2,c'<8) -> [0..64), lanes (s'>=2,c'>=8) -> [64..128)")
    g(f"""
    v_lshrrev_b32 v{vT}, 1, v{vS}
    v_lshrrev_b32 v{vT+1}, 3, v{vC}
    v_cmp_eq_u32 vcc, v{vT}, v{vT+1}
    v_lshlrev_b32 v{vT}, 8, v{vT}
    v_and_b32 v{vT+1}, 7, v{vC}
    v_lshl_add_u32 v{vT}, v{vT+1}, 5, v{vT}
    v_and_b32 v{vT+1}, 1, v{vS}
    v_lshl_add_u32 v{vT}, v{vT+1}, 4, v{vT}
    s_lshl_b32 s{sT0}, s{sJ}, 9
    v_add_u32 v{vT}, s{sT0}, v{vT}
    s_and_saveexec_b64 {sr(sEX,2)}, vcc
    ds_write_b128 v{vT}, {vr(vACC2)} offset:{L_HP}
    s_mov_b64 exec, 1
    v_mov_b32 v{vT+1}, 1
    v_mov_b32 v{vT+2}, {L_CNT}
    s_waitcnt lgkmcnt(0)
    ds_add_u32 v{vT+2}, v{vT+1}
    s_mov_b64 exec, -1
    """)
    g.c("w2 tile t: row = 8c0 + 4t + s, cols j*128 + 8c ; wo tile t=2c'+u: rows d = 32 s + t")
    g(f"""
    s_lshl_b32 s{sT0}, s{sC0}, 13
    s_lshl_b32 s{sT2}, s{sJ}, 8
    v_lshlrev_b32 v{vOFF2}, 10, v{vS}
    v_lshl_add_u32 v{vOFF2}, v{vC}, 4, v{vOFF2}
    v_add_u32 v{vOFF2}, s{sT0}, v{vOFF2}
    v_add_u32 v{vOFF2}, s{sT2}, v{vOFF2}
    s_mov_b32 s{SRD_B}, s{sW2}
    s_mov_b32 s{SRD_B+1}, s{sW2+1}
    s_lshl_b32 s{sT1}, s{sNCH}, 13
    s_add_u32 s{SRD_B+2}, s{sT0}, s{sT1}
    s_mov_b32 s{SRD_B+3}, 0x20000
    s_lshl_b32 s{sT0}, s{sH}, 17
    s_add_u32 s{sT0}, s{sT0}, s{sT2}
    v_lshlrev_b32 v{vOFF}, 15, v{vS}
    v_lshl_add_u32 v{vOFF}, v{vC}, 4, v{vOFF}
    v_add_u32 v{vOFF}, s{sT0}, v{vOFF}
    v_lshlrev_b32 v{vT+5}, 2, v{vHI}
    s_mov_b32 s{sOFF}, 0
    """)
    if noffn:
        g(f"s_mov_b32 s{SRD_B+2}, 0")
    srd(SRD_A, sWO, 0 if nowo else 0x400000)
    hp = 48
    for t in range(12):
        if not noffn:
            g(f"buffer_load_dwordx4 {vr(vW1+4*t)}, v{vOFF2}, {sr(SRD_B)}, s{sOFF} offen {wpol}")
        g(f"s_add_u32 s{sOFF}, s{sOFF}, 4096")
    g(f"s_mov_b32 s{sOFF}, 0")
    for t in range(32):
        if not nowo:
            g(f"buffer_load_dwordx4 {vr(vW+4*t)}, v{vOFF}, {sr(SRD_A)}, s{sOFF} offen offset:{1024*(t&3)} {wpol}")
        if (t & 3) == 3:
            g(f"s_add_u32 s{sOFF}, s{sOFF}, 4096")
    st(2)
    g(f"""
    v_mov_b32 v{vT+2}, {L_CNT}
    L_hwait:
    ds_read_b32 v{vT+1}, v{vT+2}
    s_waitcnt lgkmcnt(0)
    v_readfirstlane_b32 s{sT1}, v{vT+1}
    s_nop 3
    s_cmp_ge_u32 s{sT1}, 4
    s_cbranch_scc1 L_hdone
    s_sleep 2
    s_branch L_hwait
    L_hdone:
    """)
    for j in range(4):
        g(f"ds_read_b32 v{hp+2*j}, v{vT+5} offset:{L_HP+512*j}")
        g(f"ds_read_b32 v{hp+2*j+1}, v{vT+5} offset:{L_HP+512*j+256}")
    g(f"""
    s_waitcnt lgkmcnt(0)
    v_add_f32 v{hp}, v{hp}, v{hp+1}
    v_add_f32 v{hp+2}, v{hp+2}, v{hp+3}
    v_add_f32 v{hp+4}, v{hp+4}, v{hp+5}
    v_add_f32 v{hp+6}, v{hp+6}, v{hp+7}
    v_add_f32 v{hp}, v{hp}, v{hp+2}
    v_add_f32 v{hp+4}, v{hp+4}, v{hp+6}
    v_add_f32 v{vT}, v{hp}, v{hp+4}
    v_cvt_pk_bf16_f32 v{vT}, v{vT}, v{vT}
    v_lshlrev_b32 v{vT}, 16, v{vT}
    s_waitcnt vmcnt(44)
    v_lshlrev_b32 v{vB1}, 16, v{vB1}
    v_add_f32 v{vT}, v{vT}, v{vB1}
    v_cvt_pk_bf16_f32 v{vT}, v{vT}, v{vT}
    v_lshlrev_b32 v{vT}, 16, v{vT}
    v_cmp_lt_f32 vcc, 0, v{vT}
    s_lshl_b32 s{sT1}, s{sNCH}, 3
    v_cmp_gt_u32 {sr(sEX,2)}, s{sT1}, v{vHI}
    s_nop 1
    s_and_b64 vcc, vcc, {sr(sEX,2)}
    s_nop 1
    v_cndmask_b32 v{vT}, 0, v{vT}, vcc
    v_mul_f32 v{vT}, v{vT}, v{vT}
    v_cvt_pk_bf16_f32 v{vH}, v{vT}, v{vT}
    """)
    for e in range(4):
        g(f"v_mov_b32 v{vACC+e}, 0")
    for t in range(12):
        a = vA + 4 * (t & 1)
        mkA(a, vH, t)
        g(f"s_waitcnt vmcnt({43-t})")
        g("s_nop 0")
        g(f"v_mfma_f32_16x16x32_bf16 {vr(vACC)}, {vr(a)}, {vr(vW1+4*t)}, {vr(vACC)}")
    st(3)
    g.c("clearing duty: wave 4 of WG (b, 28+jj) clears column block jj of all 32 slots of batch b")
    g(f"""
    s_cmp_lt_u32 s{sH}, {99 if noproto else 28}
    s_cbranch_scc1 L_noclear
    s_cmp_lg_u32 s{sJ}, 0
    s_cbranch_scc1 L_noclear
    s_lshl_b32 s{sT0}, s{sB}, 16
    s_add_u32 s{SRD_C}, s{sWS}, s{sT0}
    s_addc_u32 s{SRD_C+1}, s{sWS+1}, 0
    s_mov_b32 s{SRD_C+2}, 0x10000
    s_mov_b32 s{SRD_C+3}, 0x20000
    s_sub_u32 s{sT2}, s{sH}, 28
    s_lshl_b32 s{sT0}, s{sT2}, 9
    v_lshrrev_b32 v{vT}, 5, v{vLANE}
    v_lshlrev_b32 v{vT}, 11, v{vT}
    v_and_b32 v{vT+1}, 31, v{vLANE}
    v_lshl_add_u32 v{vT}, v{vT+1}, 4, v{vT}
    v_add_u32 v{vT}, s{sT0}, v{vT}
    v_mov_b32 v{vW1}, -1
    v_mov_b32 v{vW1+1}, -1
    v_mov_b32 v{vW1+2}, -1
    v_mov_b32 v{vW1+3}, -1
    s_mov_b32 s{sOFF}, 0
    """)
    for i in range(16):
        g(f"buffer_store_dwordx4 {vr(vW1)}, v{vT}, {sr(SRD_C)}, s{sOFF} offen sc1")
        g(f"s_add_u32 s{sOFF}, s{sOFF}, 4096")
    g(f"""
    s_lshl_b32 s{sT0}, s{sB}, 2
    s_add_u32 s{sT0}, s{sT0}, s{sT2}
    s_lshl_b32 s{sT0}, s{sT0}, 3
    v_mov_b32 v{vT}, s{sT0}
    v_mov_b32 v{vT+1}, 1
    s_waitcnt vmcnt(0)
    s_mov_b64 exec, 1
    global_store_dword v{vT}, v{vT+1}, {sr(sDBG,2)} sc1
    s_mov_b64 exec, -1
    L_noclear:
    """)
    g(f"""
    s_lshl_b32 s{sT0}, s{sB}, 2
    s_add_u32 s{sT0}, s{sT0}, s{sJ}
    s_lshl_b32 s{sT0}, s{sT0}, 3
    v_mov_b32 v{vT+3}, s{sT0}
    s_lshl_b32 s{sT0}, s{sJ}, 3
    v_mov_b32 v{vT+4}, s{sT0}
    s_waitcnt vmcnt(0)
    s_lshl_b32 s{sT0}, s2, 11
    s_lshl_b32 s{sT1}, s{sJ}, 9
    s_add_u32 s{sT0}, s{sT0}, s{sT1}
    v_add_u32 v{vPO}, s{sT0}, v{vDL}
    v_lshlrev_b32 v{vT}, 7, v{vS}
    v_lshl_add_u32 v{vT}, v{vC}, 3, v{vT}
    v_mov_b32 v{vT+1}, 0
    v_mov_b32 v{vT+2}, -2
    s_mov_b32 s{sT3}, 0x3fb8aa3b
    """)
    st(8)
    g("s_barrier")
    g.c("combine the 4 streamer partials")
    o = 64
    m = 72
    u = 80
    g(f"""
    ds_read_b128 v[{m}:{m+3}], v{vT+1} offset:{L_ML}
    ds_read_b128 v[{m+4}:{m+7}], v{vT+1} offset:{L_ML+16}
    ds_read_b64 v[{o}:{o+1}], v{vT} offset:{L_OP}
    ds_read_b64 v[{o+2}:{o+3}], v{vT} offset:{L_OP+512}
    ds_read_b64 v[{o+4}:{o+5}], v{vT} offset:{L_OP+1024}
    ds_read_b64 v[{o+6}:{o+7}], v{vT} offset:{L_OP+1536}
    ds_read_b32 v{vT+5}, v{vT+4} offset:{L_ML+32}
    s_waitcnt lgkmcnt(5)
    v_max3_f32 v{u}, v{m}, v{m+2}, v{m+4}
    v_max_f32 v{u}, v{u}, v{m+6}
    v_sub_f32 v{m}, v{m}, v{u}
    v_sub_f32 v{m+2}, v{m+2}, v{u}
    v_sub_f32 v{m+4}, v{m+4}, v{u}
    v_sub_f32 v{m+6}, v{m+6}, v{u}
    v_mul_f32 v{m}, s{sT3}, v{m}
    v_mul_f32 v{m+2}, s{sT3}, v{m+2}
    v_mul_f32 v{m+4}, s{sT3}, v{m+4}
    v_mul_f32 v{m+6}, s{sT3}, v{m+6}
    v_exp_f32 v{m}, v{m}
    v_exp_f32 v{m+2}, v{m+2}
    v_exp_f32 v{m+4}, v{m+4}
    v_exp_f32 v{m+6}, v{m+6}
    v_mul_f32 v{u+1}, v{m}, v{m+1}
    v_fmac_f32 v{u+1}, v{m+2}, v{m+3}
    v_fmac_f32 v{u+1}, v{m+4}, v{m+5}
    v_fmac_f32 v{u+1}, v{m+6}, v{m+7}
    v_rcp_f32 v{u+2}, v{u+1}
    s_waitcnt lgkmcnt(0)
    v_mul_f32 v{o}, v{m}, v{o}
    v_mul_f32 v{o+1}, v{m}, v{o+1}
    v_fmac_f32 v{o}, v{m+2}, v{o+2}
    v_fmac_f32 v{o+1}, v{m+2}, v{o+3}
    v_fmac_f32 v{o}, v{m+4}, v{o+4}
    v_fmac_f32 v{o+1}, v{m+4}, v{o+5}
    v_fmac_f32 v{o}, v{m+6}, v{o+6}
    v_fmac_f32 v{o+1}, v{m+6}, v{o+7}
    v_mul_f32 v{u+3}, v{o}, v{u+2}
    v_mul_f32 v{u+4}, v{o+1}, v{u+2}
    v_fma_f32 v{u+5}, -v{u+3}, v{u+1}, v{o}
    v_fma_f32 v{u+6}, -v{u+4}, v{u+1}, v{o+1}
    v_fmac_f32 v{u+3}, v{u+5}, v{u+2}
    v_fmac_f32 v{u+4}, v{u+6}, v{u+2}
    v_cvt_pk_bf16_f32 v{vX0}, v{u+3}, v{u+3}
    v_cvt_pk_bf16_f32 v{vX1}, v{u+4}, v{u+4}
    s_nop 0
    """)
    mkA(vA, vX0, 0)
    for t in range(32):
        if t < 31:
            t1 = t + 1
            mkA(vA + 4 * (t1 & 1), vX1 if (t1 & 1) else vX0, t1 >> 1)
        else:
            g("s_nop 0")
        g(f"v_mfma_f32_16x16x32_bf16 {vr(vACC)}, {vr(vA+4*(t&1))}, {vr(vW+4*t)}, {vr(vACC)}")
    g(f"""
    v_readfirstlane_b32 s{sT1}, v{vT+5}
    s_mov_b32 s{sIT}, 0
    s_nop 2
    s_cmp_lg_u32 s{sT1}, 0
    s_cbranch_scc1 L_fdone
    {'s_branch L_fdone' if noproto else ''}
    L_fwait:
    global_load_dword v{vT+5}, v{vT+3}, {sr(sDBG,2)} sc1
    s_add_u32 s{sIT}, s{sIT}, 1
    s_waitcnt vmcnt(0)
    v_readfirstlane_b32 s{sT1}, v{vT+5}
    s_cmp_gt_u32 s{sIT}, 0x40000
    s_cbranch_scc1 L_fdone
    s_cmp_lg_u32 s{sT1}, 0
    s_cbranch_scc1 L_fdone
    s_sleep 8
    s_branch L_fwait
    L_fdone:
    s_nop 3
    v_min_u32 v{vACC}, v{vT+2}, v{vACC}
    v_min_u32 v{vACC+1}, v{vT+2}, v{vACC+1}
    v_min_u32 v{vACC+2}, v{vT+2}, v{vACC+2}
    v_min_u32 v{vACC+3}, v{vT+2}, v{vACC+3}
    s_mov_b64 exec, {sr(sLO32,2)}
    global_store_dwordx4 v{vPO}, {vr(vACC)}, {sr(sWS,2)} sc1
    s_mov_b64 exec, -1
    """)
    if stamps:
        st(1)
        st(4)
        emit_stamps(g, sST, 14, sWS, sWAVE, vT, sT0)
    g("""
    L_end:
    s_endpgm
    """)

    out = HEADER
    out += f"; @launch grid=(256,1,1) block=(512,1,1) lds={LDS}\n"
    out += f""".amdgcn_target "amdgcn-amd-amdhsa--gfx950"
.text
.globl {KNAME}
.p2align 8
.type {KNAME},@function
{KNAME}:
"""
    out += g.text()
    out += f""".section .rodata,"a"
.p2align 6
.amdhsa_kernel {KNAME}
  .amdhsa_next_free_vgpr 256
  .amdhsa_next_free_sgpr 96
  .amdhsa_accum_offset 256
  .amdhsa_group_segment_fixed_size 0
  .amdhsa_kernarg_size 104
  .amdhsa_user_sgpr_count 2
  .amdhsa_user_sgpr_kernarg_segment_ptr 1
  .amdhsa_system_sgpr_workgroup_id_x 1
  .amdhsa_float_denorm_mode_32 3
.end_amdhsa_kernel
"""
    return out


def emit_stamps(g, sST, n, sWS, sWAVE, vT, sT0):
    g(f"""
    s_lshl_b32 s{sT0}, s2, 3
    s_add_u32 s{sT0}, s{sT0}, s{sWAVE}
    s_lshl_b32 s{sT0}, s{sT0}, 7
    s_add_u32 s{sT0}, s{sT0}, 0x1000000
    v_mov_b32 v{vT}, s{sT0}
    s_getreg_b32 s{sT0}, hwreg(HW_REG_XCC_ID)
    s_waitcnt lgkmcnt(0)
    s_mov_b64 exec, 1
    """)
    for k in range(n):
        g(f"v_mov_b32 v{vT+1}, s{sST+2*k}")
        g(f"global_store_dword v{vT}, v{vT+1}, {sr(sWS,2)} offset:{4*k}")
    g(f"v_mov_b32 v{vT+1}, s{sT0}")
    g(f"global_store_dword v{vT}, v{vT+1}, {sr(sWS,2)} offset:64")
    g("s_mov_b64 exec, -1")


if __name__ == "__main__":
    out = sys.argv[1] if len(sys.argv) > 1 else "cdna_kernels/" + NAME + ".s"
    kw = {}
    for a in sys.argv[2:]:
        k, v = a.split("=")
        kw[k] = eval(v)
    open(out, "w").write(gen(**kw))
    print("wrote", out)
```

```python
import sys, os

NAME = "parallel_sum__gqa_block_cached__dense_activation_squared_relu__decode"
KNAME = NAME + "_kernel"
HEADER = open("cdna_kernels/" + NAME + ".s.ref").read().split("; Override launch")[0]


class G:
    def __init__(self):
        self.L = []

    def __call__(self, s):
        for line in s.strip("\n").split("\n"):
            t = line.strip()
            if not t:
                continue
            self.L.append(t if t.endswith(":") else "  " + t)

    def c(self, s):
        self.L.append("  ; " + s)

    def text(self):
        return "\n".join(self.L) + "\n"


def vr(b, n=4):
    return f"v[{b}:{b+n-1}]"


def sr(b, n=4):
    return f"s[{b}:{b+n-1}]"


def gen(R=32, DS=6, stamps=False, pol="nt", wpol="", hprio=0, hprio2=0, D0=0, slp=64, DK1=0, NK1=0, DV=0, alt=False, noproto=False, early=False, DV2=0, NV2=0, pat=(0,), HD=0, HQ=0, b15=False, nocons=False,
        noffn=False, nowo=False, nowq=False):
    g = G()

    def st(k):
        if stamps:
            g(f"s_memrealtime s[{66+2*k}:{67+2*k}]")

    L_QP = 0
    L_HP = 2048
    L_OP = 4096
    L_ML = 6144
    L_CNT = 6400
    L_SC = 8192
    LDS = 8192 + 16384 + 256
    sX, sK, sV, sWQ, sWO, sBX, sW1, sB1 = 4, 6, 8, 10, 12, 14, 16, 18
    sW2, sB2, sOUT, sDBG, sWS = 20, 22, 24, 26, 28
    sWAVE, sB, sH = 30, 31, 3
    SRD_A, SRD_B, SRD_PF, SRD_C = 32, 36, 40, 44
    sOFF, sIT, sT0, sT1, sT2, sT3 = 48, 49, 50, 51, 52, 53
    sM, sC0, sNCH, sJ = 54, 55, 56, 57
    sMASKC1, sMASKC0, sEX = 58, 60, 62
    sLO32 = 64
    sST = 66
    vTID, vLANE, vS, vC = 0, 1, 2, 3
    vMASK = 4
    vOFF, vOFF2 = 8, 9
    vT = 10
    vA = 16
    vACC = 24
    vQ = 28
    vP = 32
    vMAX, vL, vPP, vSC, vLDS = 48, 49, 50, 51, 52
    vX = 56
    vRING = 256 - 4 * R
    assert vRING >= 64 and R % 16 == 0
    NL = 256
    NIT = NL // R
    NG = R // 16
    DSB = DS

    def mkA(dst, src, lane):
        for t in range(4):
            g(f"v_and_b32_dpp v{dst+t}, v{src}, v{vMASK+t} row_newbcast:{lane} row_mask:0xf bank_mask:0xf")

    def srd(d, base, size):
        g(f"""
        s_mov_b32 s{d}, s{base}
        s_mov_b32 s{d+1}, s{base+1}
        s_mov_b32 s{d+2}, {size}
        s_mov_b32 s{d+3}, 0x20000
        """)

    g(f"""
    s_cmp_ge_u32 s2, 256
    s_cbranch_scc1 L_end
    s_load_dwordx16 s[4:19], s[0:1], 0
    s_load_dwordx8 s[20:27], s[0:1], 64
    s_load_dwordx2 s[28:29], s[0:1], 96
    """)
    st(0)
    g(f"""
    v_lshrrev_b32 v{vT}, 6, v{vTID}
    v_and_b32 v{vLANE}, 63, v{vTID}
    v_readfirstlane_b32 s{sWAVE}, v{vT}
    v_lshrrev_b32 v{vS}, 4, v{vLANE}
    v_and_b32 v{vC}, 15, v{vLANE}
    s_lshr_b32 s{sB}, s2, 5
    s_and_b32 s{sH}, s2, 31
    s_mov_b32 s{sLO32}, -1
    s_mov_b32 s{sLO32+1}, 0
    s_cmp_ge_u32 s{sWAVE}, 4
    s_cbranch_scc1 L_helper
    """)

    def masks(dst, full):
        g(f"""
        v_and_b32 v{vT}, 1, v{vC}
        v_lshlrev_b32 v{vT}, 4, v{vT}
        v_mov_b32 v{vT+1}, 0xffff
        v_lshlrev_b32 v{vT+1}, v{vT}, v{vT+1}
        """)
        if full:
            g(f"v_bfe_u32 v{vT+2}, v{vC}, 1, 2")
        else:
            g(f"v_lshrrev_b32 v{vT+2}, 1, v{vC}")
        for t in range(4):
            g(f"""
            v_cmp_eq_u32 vcc, {t}, v{vT+2}
            s_nop 1
            v_cndmask_b32 v{dst+t}, 0, v{vT+1}, vcc
            """)

    g.c("=========== streamer waves 0..3")
    g(f"""
    s_lshl_b32 s{sT0}, s{sWAVE}, {9 if b15 else 10}
    v_lshlrev_b32 v{vOFF}, 4, v{vLANE}
    {f'v_and_b32 v{vOFF}, 0x1ff, v{vOFF}' if b15 else ''}
    {f'v_lshrrev_b32 v{vT+1}, 5, v{vLANE}' if b15 else ''}
    {f'v_lshl_add_u32 v{vOFF}, v{vT+1}, 15, v{vOFF}' if b15 else ''}
    v_add_u32 v{vOFF}, s{sT0}, v{vOFF}
    s_lshl_b32 s{sT1}, s2, 20
    s_mov_b32 s{sOFF}, 0
    s_mov_b32 s{SRD_PF+2}, 0x100000
    s_mov_b32 s{SRD_PF+3}, 0x20000
    s_waitcnt lgkmcnt(0)
    s_add_u32 s{SRD_PF}, s{sK}, s{sT1}
    s_addc_u32 s{SRD_PF+1}, s{sK+1}, 0
    """)

    def pf(b):
        g(f"buffer_load_dwordx4 {vr(vRING+4*b)}, v{vOFF}, {sr(SRD_PF)}, s{sOFF} offen {pol}")
        g(f"s_add_u32 s{sOFF}, s{sOFF}, {4096 if not b15 else (2048 if b % 16 < 15 else 2048 + 32768)}")

    st(5)
    if not D0:
        D0 = DS
    for b in range(D0):
        pf(b)
    g(f"""
    s_add_u32 s{SRD_B}, s{sV}, s{sT1}
    s_addc_u32 s{SRD_B+1}, s{sV+1}, 0
    """)
    masks(vMASK, False)
    g(f"""
    v_and_b32 v{vT}, 2, v{vC}
    v_cmp_ne_u32 {sr(sMASKC1,2)}, 0, v{vT}
    v_and_b32 v{vT}, 1, v{vC}
    v_cmp_ne_u32 {sr(sMASKC0,2)}, 0, v{vT}
    v_mov_b32 v{vMAX}, 0xff800000
    v_mov_b32 v{vL}, 0
    s_lshl_b32 s{sT0}, s{sWAVE}, 12
    s_add_u32 s{sT0}, s{sT0}, {L_SC}
    v_lshlrev_b32 v{vLDS}, 2, v{vLANE}
    v_add_u32 v{vLDS}, s{sT0}, v{vLDS}
    v_lshlrev_b32 v{vT}, 5, v{vC}
    v_mov_b32 v{vACC}, 0
    v_mov_b32 v{vACC+1}, 0
    v_mov_b32 v{vACC+2}, 0
    v_mov_b32 v{vACC+3}, 0
    s_mov_b32 s{sIT}, 0
    s_mov_b32 s{sT3}, 0x3db504f3
    """)
    for b in range(D0, R):
        g(f"s_waitcnt vmcnt({D0-1})")
        pf(b)
    st(8)
    g("s_barrier")
    g.c("q = sum of 4 partials, lane (s,c) takes q[8c..8c+8)")
    tq = [vP, vP + 8, vA, vX]
    for j in range(4):
        g(f"ds_read_b128 {vr(tq[j])}, v{vT} offset:{L_QP+512*j}")
        g(f"ds_read_b128 {vr(tq[j]+4)}, v{vT} offset:{L_QP+512*j+16}")
    g("s_waitcnt lgkmcnt(4)")
    for e in range(8):
        g(f"v_add_f32 v{tq[0]+e}, v{tq[0]+e}, v{tq[1]+e}")
    g("s_waitcnt lgkmcnt(0)")
    for e in range(8):
        g(f"v_add_f32 v{tq[2]+e}, v{tq[2]+e}, v{tq[3]+e}")
    for e in range(8):
        g(f"v_add_f32 v{tq[0]+e}, v{tq[0]+e}, v{tq[2]+e}")
    for t in range(4):
        g(f"v_cvt_pk_bf16_f32 v{vQ+t}, v{tq[0]+2*t}, v{tq[0]+2*t+1}")
    st(1)

    def kgroup(slot, ldsoff, DS=DS):
        g(f"""
        s_cmp_eq_u32 s{sIT}, {16-NG}
        s_cselect_b32 s{SRD_PF}, s{SRD_B}, s{SRD_PF}
        s_cselect_b32 s{SRD_PF+1}, s{SRD_B+1}, s{SRD_PF+1}
        s_cselect_b32 s{sOFF}, 0, s{sOFF}
        s_add_u32 s{sIT}, s{sIT}, 1
        """)
        for j in range(16):
            b = slot * 16 + j
            rb = vRING + 4 * b
            if DS == R:
                g(f"s_waitcnt vmcnt({DS-1})")
            g(f"v_dot2_f32_bf16 v{vP+j}, v{rb}, v{vQ}, 0")
            for t in range(1, 4):
                g(f"v_dot2_f32_bf16 v{vP+j}, v{rb+t}, v{vQ+t}, v{vP+j}")
            if DS < R:
                g(f"s_waitcnt vmcnt({DS-1+((j&1) if alt else 0)+(pat[j%len(pat)] if DS==DSB else 0)})")
            pf(b)
        g.c("transposing reduction over the 16 lanes of each row")
        g("s_nop 1")
        for j in range(8):
            g(f"v_add_f32_dpp v{vP+j}, v{vP+j}, v{vP+j} row_ror:8 row_mask:0xf bank_mask:0x3")
            g(f"v_add_f32_dpp v{vP+j}, v{vP+j+8}, v{vP+j+8} row_ror:8 row_mask:0xf bank_mask:0xc")
        for j in range(4):
            g(f"v_add_f32_dpp v{vP+j}, v{vP+j}, v{vP+j} row_half_mirror row_mask:0xf bank_mask:0x5")
            g(f"v_add_f32_dpp v{vP+j}, v{vP+j+4}, v{vP+j+4} row_half_mirror row_mask:0xf bank_mask:0xa")
        for j in range(4):
            g(f"v_add_f32_dpp v{vP+j}, v{vP+j}, v{vP+j} quad_perm:[2,3,0,1] row_mask:0xf bank_mask:0xf")
        g(f"v_cndmask_b32 v{vP+0}, v{vP+0}, v{vP+2}, {sr(sMASKC1,2)}")
        g(f"v_cndmask_b32 v{vP+1}, v{vP+1}, v{vP+3}, {sr(sMASKC1,2)}")
        g("s_nop 1")
        g(f"v_add_f32_dpp v{vP+0}, v{vP+0}, v{vP+0} quad_perm:[1,0,3,2] row_mask:0xf bank_mask:0xf")
        g(f"v_add_f32_dpp v{vP+1}, v{vP+1}, v{vP+1} quad_perm:[1,0,3,2] row_mask:0xf bank_mask:0xf")
        g(f"v_cndmask_b32 v{vP+0}, v{vP+0}, v{vP+1}, {sr(sMASKC0,2)}")
        g.c("score = bf16(bf16(q.k) * Dh^-0.5)")
        g(f"""
        v_cvt_pk_bf16_f32 v{vP+0}, v{vP+0}, v{vP+0}
        v_lshlrev_b32 v{vP+0}, 16, v{vP+0}
        v_mul_f32 v{vP+0}, s{sT3}, v{vP+0}
        v_cvt_pk_bf16_f32 v{vP+0}, v{vP+0}, v{vP+0}
        v_lshlrev_b32 v{vSC}, 16, v{vP+0}
        v_max_f32 v{vMAX}, v{vMAX}, v{vSC}
        ds_write_b32 v{vLDS}, v{vSC} offset:{ldsoff}
        """)

    nk = 16 // NG
    if NK1:
        g("L_kloop1:")
        for slot in range(NG):
            kgroup(slot, 256 * slot, DK1)
        g(f"""
        v_add_u32 v{vLDS}, {256*NG}, v{vLDS}
        s_cmp_lt_u32 s{sIT}, {NK1*NG}
        s_cbranch_scc1 L_kloop1
        """)
    g("L_kloop:")
    for slot in range(NG):
        kgroup(slot, 256 * slot)
    g(f"""
    v_add_u32 v{vLDS}, {256*NG}, v{vLDS}
    s_cmp_lt_u32 s{sIT}, {nk*NG}
    s_cbranch_scc1 L_kloop
    """)
    for r in range(16 - nk * NG):
        kgroup(r, 256 * r)
    g.c("wave max")
    g(f"""
    v_subrev_u32 v{vLDS}, {256*NG*nk}, v{vLDS}
    s_nop 0
    v_max_f32_dpp v{vMAX}, v{vMAX}, v{vMAX} row_ror:8 row_mask:0xf bank_mask:0xf
    s_nop 1
    v_max_f32_dpp v{vMAX}, v{vMAX}, v{vMAX} row_ror:4 row_mask:0xf bank_mask:0xf
    s_nop 1
    v_max_f32_dpp v{vMAX}, v{vMAX}, v{vMAX} row_ror:2 row_mask:0xf bank_mask:0xf
    s_nop 1
    v_max_f32_dpp v{vMAX}, v{vMAX}, v{vMAX} row_ror:1 row_mask:0xf bank_mask:0xf
    s_nop 1
    v_max_f32_dpp v{vMAX}, v{vMAX}, v{vMAX} row_bcast:15 row_mask:0xa bank_mask:0xf
    s_nop 1
    v_max_f32_dpp v{vMAX}, v{vMAX}, v{vMAX} row_bcast:31 row_mask:0xc bank_mask:0xf
    s_waitcnt lgkmcnt(0)
    ds_read_b32 v{vSC}, v{vLDS}
    v_readlane_b32 s{sM}, v{vMAX}, 63
    s_mov_b32 s{sT3}, 0x3fb8aa3b
    s_mov_b32 s{sIT}, 0
    """)
    st(2)

    def vgroup(slot, ldsoff, rem, DS=(DV or DS)):
        g(f"""
        s_waitcnt lgkmcnt(0)
        v_subrev_f32 v{vT}, s{sM}, v{vSC}
        v_mul_f32 v{vT}, s{sT3}, v{vT}
        v_exp_f32 v{vT}, v{vT}
        ds_read_b32 v{vSC}, v{vLDS} offset:{ldsoff+256}
        v_add_f32 v{vL}, v{vL}, v{vT}
        v_cvt_pk_bf16_f32 v{vPP}, v{vT}, v{vT}
        s_nop 1
        """)
        mkA(vA, vPP, 0)
        for j in range(16):
            b = slot * 16 + j
            rb = vRING + 4 * b
            if j < 15:
                mkA(vA + 4 * ((j + 1) & 1), vPP, j + 1)
            else:
                g("s_nop 0")
            if rem is not None:
                if rem + 15 - j < DS + 2:
                    g(f"s_waitcnt vmcnt({rem+15-j})")
            elif DS == R:
                g(f"s_waitcnt vmcnt({DS-1})")
            g(f"v_mfma_f32_16x16x32_bf16 {vr(vACC)}, {vr(vA+4*(j&1))}, {vr(rb)}, {vr(vACC)}")
            if rem is None:
                if DS < R:
                    g(f"s_waitcnt vmcnt({DS-1+((j&1) if alt else 0)+(pat[j%len(pat)] if DS==DSB else 0)})")
                pf(b)

    s0 = 16 % NG
    nv = (16 - NG - NV2) // NG
    g("L_vloop:")
    for i in range(NG):
        vgroup((s0 + i) % NG, 256 * i, None)
    g(f"""
    v_add_u32 v{vLDS}, {256*NG}, v{vLDS}
    s_add_u32 s{sIT}, s{sIT}, 1
    s_cmp_lt_u32 s{sIT}, {nv}
    s_cbranch_scc1 L_vloop
    """)
    vFLG, vFLA = 53, 54
    for i, v in enumerate(range(nv * NG, 16)):
        if v == 16 - NG:
            g.c("read the 'slots cleared' flag of column block w (checked by helper w after the barrier)")
            g(f"""
            s_lshl_b32 s{sT0}, s{sB}, 2
            s_add_u32 s{sT0}, s{sT0}, s{sWAVE}
            s_lshl_b32 s{sT0}, s{sT0}, 3
            v_mov_b32 v{vFLA}, s{sT0}
            global_load_dword v{vFLG}, v{vFLA}, {sr(sDBG,2)} sc1
            """)
        vgroup((s0 + v) % NG, 256 * i, None if v < 16 - NG else 16 * (15 - v) + 1,
               DV2 if (NV2 and v >= 16 - NG - NV2) else (DV or DS))
    st(3)
    g.c("l: wave sum ; publish (m,l) and o partial")
    g(f"""
    v_add_f32_dpp v{vL}, v{vL}, v{vL} row_ror:8 row_mask:0xf bank_mask:0xf
    v_lshlrev_b32 v{vT}, 5, v{vC}
    v_lshlrev_b32 v{vT+1}, 4, v{vS}
    v_add_f32_dpp v{vL}, v{vL}, v{vL} row_ror:4 row_mask:0xf bank_mask:0xf
    v_add_u32 v{vT}, v{vT}, v{vT+1}
    s_lshl_b32 s{sT0}, s{sWAVE}, 9
    v_add_f32_dpp v{vL}, v{vL}, v{vL} row_ror:2 row_mask:0xf bank_mask:0xf
    v_add_u32 v{vT}, s{sT0}, v{vT}
    s_lshl_b32 s{sT0}, s{sWAVE}, 3
    v_add_f32_dpp v{vL}, v{vL}, v{vL} row_ror:1 row_mask:0xf bank_mask:0xf
    v_mov_b32 v{vT+2}, s{sT0}
    v_mov_b32 v{vT+4}, s{sM}
    v_add_f32_dpp v{vL}, v{vL}, v{vL} row_bcast:15 row_mask:0xa bank_mask:0xf
    s_nop 1
    v_add_f32_dpp v{vL}, v{vL}, v{vL} row_bcast:31 row_mask:0xc bank_mask:0xf
    s_mov_b64 exec, {sr(sLO32,2)}
    ds_write_b128 v{vT}, {vr(vACC)} offset:{L_OP}
    s_mov_b64 exec, -1
    v_readlane_b32 s{sT1}, v{vL}, 63
    s_nop 1
    v_mov_b32 v{vT+5}, s{sT1}
    ds_write_b64 v{vT+2}, v[{vT+4}:{vT+5}] offset:{L_ML}
    s_waitcnt vmcnt(0)
    ds_write_b32 v{vT+2}, v{vFLG} offset:{L_ML+32}
    s_waitcnt lgkmcnt(0)
    s_barrier
    s_cmp_lt_u32 s{sH}, {99 if (nocons or noproto) else 28}
    s_cbranch_scc1 L_sdone
    """)
    g.c("=========== consumer: wave w of WG (b, 28+jj) reduces columns jj*128+32w .. +32 of batch b")
    vR = vRING
    g(f"""
    s_lshl_b32 s{sT0}, s{sB}, 16
    s_add_u32 s{SRD_C}, s{sWS}, s{sT0}
    s_addc_u32 s{SRD_C+1}, s{sWS+1}, 0
    s_mov_b32 s{SRD_C+2}, 0x10000
    s_mov_b32 s{SRD_C+3}, 0x20000
    s_sub_u32 s{sT2}, s{sH}, 28
    s_lshl_b32 s{sT2}, s{sT2}, 2
    s_add_u32 s{sT2}, s{sT2}, s{sWAVE}
    v_lshrrev_b32 v{vT}, 3, v{vLANE}
    v_lshlrev_b32 v{vT}, 11, v{vT}
    v_and_b32 v{vT+1}, 7, v{vLANE}
    v_lshl_add_u32 v{vT}, v{vT+1}, 4, v{vT}
    s_lshl_b32 s{sT0}, s{sT2}, 7
    v_add_u32 v{vT}, s{sT0}, v{vT}
    s_lshl_b32 s{sT0}, s{sT2}, 6
    v_lshlrev_b32 v{vT+1}, 3, v{vT+1}
    v_add_u32 v{vT+1}, s{sT0}, v{vT+1}
    s_lshl_b32 s{sT0}, s{sB}, 10
    v_add_u32 v{vT+2}, s{sT0}, v{vT+1}
    global_load_dwordx2 v[{vX}:{vX+1}], v{vT+2}, {sr(sX,2)}
    global_load_dwordx2 v[{vX+2}:{vX+3}], v{vT+1}, {sr(sB2,2)}
    s_mov_b32 s{sIT}, 0
    s_movk_i32 s{sT0}, 0x4000
    s_mov_b32 s{sT1}, 0x8000
    s_mov_b32 s{sT2}, 0xc000
    """)
    sMK = [58, 60, 62, 64]
    soffs = ["0", f"s{sT0}", f"s{sT1}", f"s{sT2}"]
    for i in range(4):
        g(f"s_mov_b64 {sr(sMK[i],2)}, -1")
    g("L_poll:")
    for i in range(4):
        g(f"""
        s_mov_b64 exec, {sr(sMK[i],2)}
        s_cbranch_execz L_pk{i}
        buffer_load_dwordx4 {vr(vR+4*i)}, v{vT}, {sr(SRD_C)}, {soffs[i]} offen sc1
        L_pk{i}:
        """)
    g(f"""
    s_mov_b64 exec, -1
    s_add_u32 s{sIT}, s{sIT}, 1
    s_waitcnt vmcnt(0)
    """)
    for i in range(4):
        g(f"v_max3_u32 v{vA+i}, v{vR+4*i}, v{vR+4*i+1}, v{vR+4*i+2}")
        g(f"v_max_u32 v{vA+i}, v{vA+i}, v{vR+4*i+3}")
    for i in range(4):
        g(f"v_cmp_eq_u32 {sr(sMK[i],2)}, -1, v{vA+i}")
    g(f"""
    s_cmp_gt_u32 s{sIT}, 0x80000
    s_cbranch_scc1 L_pdone
    s_or_b64 vcc, {sr(sMK[0],2)}, {sr(sMK[1],2)}
    s_or_b64 vcc, vcc, {sr(sMK[2],2)}
    s_or_b64 vcc, vcc, {sr(sMK[3],2)}
    s_cbranch_scc1 L_poll
    L_pdone:
    """)
    for e in range(4):
        g(f"v_add_f32 v{vR+e}, v{vR+e}, v{vR+4+e}")
        g(f"v_add_f32 v{vR+8+e}, v{vR+8+e}, v{vR+12+e}")
    for e in range(4):
        g(f"v_add_f32 v{vR+e}, v{vR+e}, v{vR+8+e}")
    g("s_nop 1")
    for e in range(4):
        g(f"v_add_f32_dpp v{vR+e}, v{vR+e}, v{vR+e} row_ror:8 row_mask:0xf bank_mask:0xf")
    for op in ("v_permlane16_swap_b32", "v_permlane32_swap_b32"):
        for e in range(4):
            g(f"v_mov_b32 v{vR+4+e}, v{vR+e}")
        g("s_nop 1")
        for e in range(4):
            g(f"{op} v{vR+e}, v{vR+4+e}")
        g("s_nop 1")
        for e in range(4):
            g(f"v_add_f32 v{vR+e}, v{vR+e}, v{vR+4+e}")
    g.c("+ x + b2")
    for e in range(4):
        src_x = vX + (e >> 1)
        src_b = vX + 2 + (e >> 1)
        if e & 1:
            g(f"v_and_b32 v{vR+8}, 0xffff0000, v{src_x}")
            g(f"v_and_b32 v{vR+9}, 0xffff0000, v{src_b}")
        else:
            g(f"v_lshlrev_b32 v{vR+8}, 16, v{src_x}")
            g(f"v_lshlrev_b32 v{vR+9}, 16, v{src_b}")
        g(f"v_add_f32 v{vR+8}, v{vR+8}, v{vR+9}")
        g(f"v_add_f32 v{vR+e}, v{vR+e}, v{vR+8}")
    g(f"""
    v_cvt_pk_bf16_f32 v{vR+10}, v{vR+0}, v{vR+1}
    v_cvt_pk_bf16_f32 v{vR+11}, v{vR+2}, v{vR+3}
    s_mov_b64 exec, 0xff
    global_store_dwordx2 v{vT+2}, v[{vR+10}:{vR+11}], {sr(sOUT,2)}
    s_mov_b64 exec, -1
    L_sdone:
    """)
    if stamps:
        st(4)
        emit_stamps(g, sST, 14, sWS, sWAVE, vT, sT0)
    g("s_endpgm")

    g.c("=========== helper waves 4..7")
    vACC2 = 28
    vM2 = 32
    vX0, vX1, vXO, vPO, vMB, vSD, vRS, vDL = 36, 37, 38, 39, 40, 41, 42, 43
    vTB, vB1, vH, vF = 44, 46, 47, 48
    xf = 48
    vW1 = 64
    vW = 128
    g(f"""
    L_helper:
    s_setprio {hprio}
    s_sub_u32 s{sJ}, s{sWAVE}, 4
    s_lshl_b32 s{sT0}, s{sB}, 10
    v_lshlrev_b32 v{vT}, 4, v{vLANE}
    v_add_u32 v{vT}, s{sT0}, v{vT}
    s_lshl_b32 s{sT1}, s{sJ}, 8
    s_add_u32 s{sT0}, s{sT0}, s{sT1}
    v_lshlrev_b32 v{vT+1}, 2, v{vLANE}
    v_add_u32 v{vT+1}, s{sT0}, v{vT+1}
    """)
    g.c("wq voffset = (128j + 32s)*8192 + h*256 + c*16")
    g(f"""
    s_lshl_b32 s{sT0}, s{sJ}, 20
    s_lshl_b32 s{sT1}, s{sH}, 8
    s_add_u32 s{sT0}, s{sT0}, s{sT1}
    v_lshlrev_b32 v{vOFF}, 18, v{vS}
    v_lshl_add_u32 v{vOFF}, v{vC}, 4, v{vOFF}
    v_add_u32 v{vOFF}, s{sT0}, v{vOFF}
    s_mul_i32 s{sC0}, s{sH}, 43
    s_add_u32 s{sT0}, s{sC0}, 43
    s_lshr_b32 s{sC0}, s{sC0}, 3
    s_lshr_b32 s{sT0}, s{sT0}, 3
    s_sub_u32 s{sNCH}, s{sT0}, s{sC0}
    s_mov_b32 s{sOFF}, 0
    s_waitcnt lgkmcnt(0)
    global_load_dwordx4 {vr(vX)}, v{vT}, {sr(sX,2)}
    global_load_dword v{vXO}, v{vT+1}, {sr(sX,2)}
    """)
    st(5)
    srd(SRD_A, sWQ, 0 if nowq else 0x400000)
    for t in range(32):
        if HQ and t >= HQ:
            g(f"s_waitcnt vmcnt({HQ-1})")
        if not nowq:
            g(f"buffer_load_dwordx4 {vr(vW+4*t)}, v{vOFF}, {sr(SRD_A)}, s{sOFF} offen {wpol}")
        g(f"s_add_u32 s{sOFF}, s{sOFF}, 8192")
    st(6)
    st(7)
    masks(vMASK, False)
    masks(vM2, True)
    g.c("layernorm statistics (whole row per wave)")
    g("s_waitcnt vmcnt(0)" if nowq else "s_waitcnt vmcnt(32)")
    st(8)
    for e in range(4):
        g(f"v_lshlrev_b32 v{xf+2*e}, 16, v{vX+e}")
        g(f"v_and_b32 v{xf+2*e+1}, 0xffff0000, v{vX+e}")
    g(f"""
    v_add_f32 v{vT}, v{xf}, v{xf+1}
    v_add_f32 v{vT+1}, v{xf+2}, v{xf+3}
    v_add_f32 v{vT+2}, v{xf+4}, v{xf+5}
    v_add_f32 v{vT+3}, v{xf+6}, v{xf+7}
    v_add_f32 v{vT}, v{vT}, v{vT+1}
    v_add_f32 v{vT+2}, v{vT+2}, v{vT+3}
    v_add_f32 v{vT}, v{vT}, v{vT+2}
    """)

    def wavesum(v, sdst):
        g(f"""
        s_nop 1
        v_add_f32_dpp v{v}, v{v}, v{v} row_ror:8 row_mask:0xf bank_mask:0xf
        s_nop 1
        v_add_f32_dpp v{v}, v{v}, v{v} row_ror:4 row_mask:0xf bank_mask:0xf
        s_nop 1
        v_add_f32_dpp v{v}, v{v}, v{v} row_ror:2 row_mask:0xf bank_mask:0xf
        s_nop 1
        v_add_f32_dpp v{v}, v{v}, v{v} row_ror:1 row_mask:0xf bank_mask:0xf
        s_nop 1
        v_add_f32_dpp v{v}, v{v}, v{v} row_bcast:15 row_mask:0xa bank_mask:0xf
        s_nop 1
        v_add_f32_dpp v{v}, v{v}, v{v} row_bcast:31 row_mask:0xc bank_mask:0xf
        s_nop 1
        v_readlane_b32 s{sdst}, v{v}, 63
        s_nop 1
        """)

    wavesum(vT, sT0)
    g(f"""
    v_mov_b32 v{vT}, 0x3b000000
    v_mul_f32 v{vT}, s{sT0}, v{vT}
    """)
    for e in range(8):
        g(f"v_sub_f32 v{xf+e}, v{xf+e}, v{vT}")
    g(f"v_mul_f32 v{vT+1}, v{xf}, v{xf}")
    for e in range(1, 8):
        g(f"v_fmac_f32 v{vT+1}, v{xf+e}, v{xf+e}")
    wavesum(vT + 1, sT1)
    g(f"""
    v_mov_b32 v{vT+1}, 0x3b000000
    v_mul_f32 v{vT+1}, s{sT1}, v{vT+1}
    v_cvt_pk_bf16_f32 v{vMB}, v{vT}, v{vT}
    v_lshlrev_b32 v{vMB}, 16, v{vMB}
    v_cvt_pk_bf16_f32 v{vT+1}, v{vT+1}, v{vT+1}
    v_lshlrev_b32 v{vT+1}, 16, v{vT+1}
    v_add_f32 v{vT+1}, 0x3727c5ac, v{vT+1}
    v_cvt_pk_bf16_f32 v{vT+1}, v{vT+1}, v{vT+1}
    v_lshlrev_b32 v{vT+1}, 16, v{vT+1}
    v_sqrt_f32 v{vT+1}, v{vT+1}
    s_nop 0
    v_cvt_pk_bf16_f32 v{vT+1}, v{vT+1}, v{vT+1}
    v_lshlrev_b32 v{vSD}, 16, v{vT+1}
    v_rcp_f32 v{vRS}, v{vSD}
    v_lshlrev_b32 v{vT+4}, 16, v{vXO}
    v_and_b32 v{vT+5}, 0xffff0000, v{vXO}
    """)

    def norm(dst, src):
        g(f"""
        v_sub_f32 v{src}, v{src}, v{vMB}
        v_cvt_pk_bf16_f32 v{src}, v{src}, v{src}
        v_lshlrev_b32 v{src}, 16, v{src}
        v_mul_f32 v{vT+2}, v{src}, v{vRS}
        v_fma_f32 v{vT+3}, -v{vT+2}, v{vSD}, v{src}
        v_fmac_f32 v{vT+2}, v{vT+3}, v{vRS}
        v_cvt_pk_bf16_f32 v{dst}, v{vT+2}, v{vT+2}
        """)

    norm(vX0, vT + 4)
    norm(vX1, vT + 5)
    for e in range(8):
        g(f"v_mov_b32 v{vACC+e}, 0")
    st(9)
    g.c("q partial: tile t=2c'+u rows k = 128j + 32s + t")
    mkA(vA, vX0, 0)
    for t in range(32):
        if t < 31:
            t1 = t + 1
            mkA(vA + 4 * (t1 & 1), vX1 if (t1 & 1) else vX0, t1 >> 1)
        g(f"s_waitcnt vmcnt({31-t})")
        if t == 0:
            st(10)
        g(f"v_mfma_f32_16x16x32_bf16 {vr(vACC)}, {vr(vA+4*(t&1))}, {vr(vW+4*t)}, {vr(vACC)}")
    st(11)
    g(f"""
    v_lshlrev_b32 v{vDL}, 5, v{vC}
    v_lshl_add_u32 v{vDL}, v{vS}, 4, v{vDL}
    s_lshl_b32 s{sT0}, s{sJ}, 9
    v_add_u32 v{vT}, s{sT0}, v{vDL}
    v_mov_b32 v{vT+1}, 0
    v_mov_b32 v{vT+2}, {L_CNT}
    s_nop 2
    s_mov_b64 exec, {sr(sLO32,2)}
    ds_write_b128 v{vT}, {vr(vACC)} offset:{L_QP}
    s_mov_b64 exec, -1
    ds_write_b32 v{vT+2}, v{vT+1}
    s_waitcnt lgkmcnt(0)
    s_barrier
    s_setprio {hprio2}
    """)
    st(13)
    g.c("w1 voffset: (128j + 32s + (c>>3))*2752 + (c0 + (c&7))*16, out of range if (c&7) >= nch")
    g(f"""
    v_lshrrev_b32 v{vT}, 3, v{vC}
    v_lshl_add_u32 v{vT}, v{vS}, 5, v{vT}
    s_lshl_b32 s{sT0}, s{sJ}, 7
    v_add_u32 v{vT}, s{sT0}, v{vT}
    v_mul_u32_u24 v{vT}, 2752, v{vT}
    v_and_b32 v{vT+1}, 7, v{vC}
    v_add_u32 v{vT+2}, s{sC0}, v{vT+1}
    v_lshl_add_u32 v{vOFF2}, v{vT+2}, 4, v{vT}
    v_cmp_gt_u32 vcc, s{sNCH}, v{vT+1}
    v_mov_b32 v{vT+3}, 0x40000000
    s_mov_b32 s{sOFF}, 0
    v_cndmask_b32 v{vOFF2}, v{vT+3}, v{vOFF2}, vcc
    """)
    srd(SRD_B, sW1, 0 if noffn else 512 * 2752)
    for u in range(16):
        if HD:
            g(f"s_waitcnt vmcnt({HD-1})")
        if not noffn:
            g(f"buffer_load_dwordx4 {vr(vW1+4*u)}, v{vOFF2}, {sr(SRD_B)}, s{sOFF} offen {wpol}")
        g(f"s_add_u32 s{sOFF}, s{sOFF}, {2*2752}")
    g.c("b1: lane (s,c) -> hidden unit 4c+s")
    vHI = 60
    g(f"""
    s_mov_b32 s{SRD_C}, s{sB1}
    s_mov_b32 s{SRD_C+1}, s{sB1+1}
    s_add_u32 s{sT1}, s{sC0}, s{sNCH}
    s_lshl_b32 s{SRD_C+2}, s{sT1}, 4
    s_mov_b32 s{SRD_C+3}, 0x20000
    v_lshl_add_u32 v{vHI}, v{vC}, 2, v{vS}
    s_lshl_b32 s{sT1}, s{sC0}, 4
    v_lshlrev_b32 v{vT+5}, 1, v{vHI}
    v_add_u32 v{vT+5}, s{sT1}, v{vT+5}
    buffer_load_ushort v{vB1}, v{vT+5}, {sr(SRD_C)}, 0 offen
    """)
    g.c("ffn hidden partial: tile u rows k = 128j + 32s + 2u + (c>>3)")
    for u in range(16):
        a = vA + 4 * (u & 1)
        tb = vTB + (u & 1)
        g(f"v_mov_b32_dpp v{tb}, v{vX0} row_newbcast:{u} row_mask:0xf bank_mask:0x3")
        g(f"v_mov_b32_dpp v{tb}, v{vX1} row_newbcast:{u} row_mask:0xf bank_mask:0xc")
        for t in range(4):
            g(f"v_and_b32 v{a+t}, v{tb}, v{vM2+t}")
        g(f"s_waitcnt vmcnt({16-u})")
        g("s_nop 0")
        g(f"v_mfma_f32_16x16x32_bf16 {vr(vACC2)}, {vr(a)}, {vr(vW1+4*u)}, {vr(vACC2)}")
    st(12)
    g.c("hidden halves to LDS: lanes (s'<2,c'<8) -> [0..64), lanes (s'>=2,c'>=8) -> [64..128)")
    g(f"""
    v_lshrrev_b32 v{vT}, 1, v{vS}
    v_lshrrev_b32 v{vT+1}, 3, v{vC}
    v_cmp_eq_u32 vcc, v{vT}, v{vT+1}
    v_lshlrev_b32 v{vT}, 8, v{vT}
    v_and_b32 v{vT+1}, 7, v{vC}
    v_lshl_add_u32 v{vT}, v{vT+1}, 5, v{vT}
    v_and_b32 v{vT+1}, 1, v{vS}
    v_lshl_add_u32 v{vT}, v{vT+1}, 4, v{vT}
    s_lshl_b32 s{sT0}, s{sJ}, 9
    v_add_u32 v{vT}, s{sT0}, v{vT}
    s_and_saveexec_b64 {sr(sEX,2)}, vcc
    ds_write_b128 v{vT}, {vr(vACC2)} offset:{L_HP}
    s_mov_b64 exec, 1
    v_mov_b32 v{vT+1}, 1
    v_mov_b32 v{vT+2}, {L_CNT}
    s_waitcnt lgkmcnt(0)
    ds_add_u32 v{vT+2}, v{vT+1}
    s_mov_b64 exec, -1
    """)
    g.c("w2 tile t: row = 8c0 + 4t + s, cols j*128 + 8c ; wo tile t=2c'+u: rows d = 32 s + t")
    g(f"""
    s_lshl_b32 s{sT0}, s{sC0}, 13
    s_lshl_b32 s{sT2}, s{sJ}, 8
    v_lshlrev_b32 v{vOFF2}, 10, v{vS}
    v_lshl_add_u32 v{vOFF2}, v{vC}, 4, v{vOFF2}
    v_add_u32 v{vOFF2}, s{sT0}, v{vOFF2}
    v_add_u32 v{vOFF2}, s{sT2}, v{vOFF2}
    s_mov_b32 s{SRD_B}, s{sW2}
    s_mov_b32 s{SRD_B+1}, s{sW2+1}
    s_lshl_b32 s{sT1}, s{sNCH}, 13
    s_add_u32 s{SRD_B+2}, s{sT0}, s{sT1}
    s_mov_b32 s{SRD_B+3}, 0x20000
    s_lshl_b32 s{sT0}, s{sH}, 17
    s_add_u32 s{sT0}, s{sT0}, s{sT2}
    v_lshlrev_b32 v{vOFF}, 15, v{vS}
    v_lshl_add_u32 v{vOFF}, v{vC}, 4, v{vOFF}
    v_add_u32 v{vOFF}, s{sT0}, v{vOFF}
    v_lshlrev_b32 v{vT+5}, 2, v{vHI}
    s_mov_b32 s{sOFF}, 0
    """)
    if noffn:
        g(f"s_mov_b32 s{SRD_B+2}, 0")
    srd(SRD_A, sWO, 0 if nowo else 0x400000)
    hp = 48
    for t in range(12):
        if HD:
            g(f"s_waitcnt vmcnt({HD-1})")
        if not noffn:
            g(f"buffer_load_dwordx4 {vr(vW1+4*t)}, v{vOFF2}, {sr(SRD_B)}, s{sOFF} offen {wpol}")
        g(f"s_add_u32 s{sOFF}, s{sOFF}, 4096")
    g(f"s_mov_b32 s{sOFF}, 0")
    for t in range(32):
        if HD:
            g(f"s_waitcnt vmcnt({HD-1})")
        if not nowo:
            g(f"buffer_load_dwordx4 {vr(vW+4*t)}, v{vOFF}, {sr(SRD_A)}, s{sOFF} offen offset:{1024*(t&3)} {wpol}")
        if (t & 3) == 3:
            g(f"s_add_u32 s{sOFF}, s{sOFF}, 4096")
    st(2)
    g(f"""
    v_mov_b32 v{vT+2}, {L_CNT}
    L_hwait:
    ds_read_b32 v{vT+1}, v{vT+2}
    s_waitcnt lgkmcnt(0)
    v_readfirstlane_b32 s{sT1}, v{vT+1}
    s_nop 3
    s_cmp_ge_u32 s{sT1}, 4
    s_cbranch_scc1 L_hdone
    s_sleep 2
    s_branch L_hwait
    L_hdone:
    """)
    for j in range(4):
        g(f"ds_read_b32 v{hp+2*j}, v{vT+5} offset:{L_HP+512*j}")
        g(f"ds_read_b32 v{hp+2*j+1}, v{vT+5} offset:{L_HP+512*j+256}")
    g(f"""
    s_waitcnt lgkmcnt(0)
    v_add_f32 v{hp}, v{hp}, v{hp+1}
    v_add_f32 v{hp+2}, v{hp+2}, v{hp+3}
    v_add_f32 v{hp+4}, v{hp+4}, v{hp+5}
    v_add_f32 v{hp+6}, v{hp+6}, v{hp+7}
    v_add_f32 v{hp}, v{hp}, v{hp+2}
    v_add_f32 v{hp+4}, v{hp+4}, v{hp+6}
    v_add_f32 v{vT}, v{hp}, v{hp+4}
    v_cvt_pk_bf16_f32 v{vT}, v{vT}, v{vT}
    v_lshlrev_b32 v{vT}, 16, v{vT}
    s_waitcnt vmcnt(44)
    v_lshlrev_b32 v{vB1}, 16, v{vB1}
    v_add_f32 v{vT}, v{vT}, v{vB1}
    v_cvt_pk_bf16_f32 v{vT}, v{vT}, v{vT}
    v_lshlrev_b32 v{vT}, 16, v{vT}
    v_cmp_lt_f32 vcc, 0, v{vT}
    s_lshl_b32 s{sT1}, s{sNCH}, 3
    v_cmp_gt_u32 {sr(sEX,2)}, s{sT1}, v{vHI}
    s_nop 1
    s_and_b64 vcc, vcc, {sr(sEX,2)}
    s_nop 1
    v_cndmask_b32 v{vT}, 0, v{vT}, vcc
    v_mul_f32 v{vT}, v{vT}, v{vT}
    v_cvt_pk_bf16_f32 v{vH}, v{vT}, v{vT}
    """)
    for e in range(4):
        g(f"v_mov_b32 v{vACC+e}, 0")
    for t in range(12):
        a = vA + 4 * (t & 1)
        mkA(a, vH, t)
        g(f"s_waitcnt vmcnt({43-t})")
        g("s_nop 0")
        g(f"v_mfma_f32_16x16x32_bf16 {vr(vACC)}, {vr(a)}, {vr(vW1+4*t)}, {vr(vACC)}")
    st(3)
    g.c("clearing duty: wave 4 of WG (b, 28+jj) clears column block jj of all 32 slots of batch b")
    g(f"""
    s_cmp_lt_u32 s{sH}, {99 if noproto else 28}
    s_cbranch_scc1 L_noclear
    s_cmp_lg_u32 s{sJ}, 0
    s_cbranch_scc1 L_noclear
    s_lshl_b32 s{sT0}, s{sB}, 16
    s_add_u32 s{SRD_C}, s{sWS}, s{sT0}
    s_addc_u32 s{SRD_C+1}, s{sWS+1}, 0
    s_mov_b32 s{SRD_C+2}, 0x10000
    s_mov_b32 s{SRD_C+3}, 0x20000
    s_sub_u32 s{sT2}, s{sH}, 28
    s_lshl_b32 s{sT0}, s{sT2}, 9
    v_lshrrev_b32 v{vT}, 5, v{vLANE}
    v_lshlrev_b32 v{vT}, 11, v{vT}
    v_and_b32 v{vT+1}, 31, v{vLANE}
    v_lshl_add_u32 v{vT}, v{vT+1}, 4, v{vT}
    v_add_u32 v{vT}, s{sT0}, v{vT}
    v_mov_b32 v{vW1}, -1
    v_mov_b32 v{vW1+1}, -1
    v_mov_b32 v{vW1+2}, -1
    v_mov_b32 v{vW1+3}, -1
    s_mov_b32 s{sOFF}, 0
    """)
    for i in range(16):
        g(f"buffer_store_dwordx4 {vr(vW1)}, v{vT}, {sr(SRD_C)}, s{sOFF} offen sc1")
        g(f"s_add_u32 s{sOFF}, s{sOFF}, 4096")
    g(f"""
    s_lshl_b32 s{sT0}, s{sB}, 2
    s_add_u32 s{sT0}, s{sT0}, s{sT2}
    s_lshl_b32 s{sT0}, s{sT0}, 3
    v_mov_b32 v{vT}, s{sT0}
    v_mov_b32 v{vT+1}, 1
    s_waitcnt vmcnt(0)
    s_mov_b64 exec, 1
    global_store_dword v{vT}, v{vT+1}, {sr(sDBG,2)} sc1
    s_mov_b64 exec, -1
    L_noclear:
    """)
    g(f"""
    s_lshl_b32 s{sT0}, s{sB}, 2
    s_add_u32 s{sT0}, s{sT0}, s{sJ}
    s_lshl_b32 s{sT0}, s{sT0}, 3
    v_mov_b32 v{vT+3}, s{sT0}
    s_lshl_b32 s{sT0}, s{sJ}, 3
    v_mov_b32 v{vT+4}, s{sT0}
    s_waitcnt vmcnt(0)
    s_lshl_b32 s{sT0}, s2, 11
    s_lshl_b32 s{sT1}, s{sJ}, 9
    s_add_u32 s{sT0}, s{sT0}, s{sT1}
    v_add_u32 v{vPO}, s{sT0}, v{vDL}
    v_lshlrev_b32 v{vT}, 7, v{vS}
    v_lshl_add_u32 v{vT}, v{vC}, 3, v{vT}
    v_mov_b32 v{vT+1}, 0
    v_mov_b32 v{vT+2}, -2
    s_mov_b32 s{sT3}, 0x3fb8aa3b
    """)
    st(8)
    g("s_barrier")
    g.c("combine the 4 streamer partials")
    o = 64
    m = 72
    u = 80
    g(f"""
    ds_read_b128 v[{m}:{m+3}], v{vT+1} offset:{L_ML}
    ds_read_b128 v[{m+4}:{m+7}], v{vT+1} offset:{L_ML+16}
    ds_read_b64 v[{o}:{o+1}], v{vT} offset:{L_OP}
    ds_read_b64 v[{o+2}:{o+3}], v{vT} offset:{L_OP+512}
    ds_read_b64 v[{o+4}:{o+5}], v{vT} offset:{L_OP+1024}
    ds_read_b64 v[{o+6}:{o+7}], v{vT} offset:{L_OP+1536}
    ds_read_b32 v{vT+5}, v{vT+4} offset:{L_ML+32}
    s_waitcnt lgkmcnt(5)
    v_max3_f32 v{u}, v{m}, v{m+2}, v{m+4}
    v_max_f32 v{u}, v{u}, v{m+6}
    v_sub_f32 v{m}, v{m}, v{u}
    v_sub_f32 v{m+2}, v{m+2}, v{u}
    v_sub_f32 v{m+4}, v{m+4}, v{u}
    v_sub_f32 v{m+6}, v{m+6}, v{u}
    v_mul_f32 v{m}, s{sT3}, v{m}
    v_mul_f32 v{m+2}, s{sT3}, v{m+2}
    v_mul_f32 v{m+4}, s{sT3}, v{m+4}
    v_mul_f32 v{m+6}, s{sT3}, v{m+6}
    v_exp_f32 v{m}, v{m}
    v_exp_f32 v{m+2}, v{m+2}
    v_exp_f32 v{m+4}, v{m+4}
    v_exp_f32 v{m+6}, v{m+6}
    v_mul_f32 v{u+1}, v{m}, v{m+1}
    v_fmac_f32 v{u+1}, v{m+2}, v{m+3}
    v_fmac_f32 v{u+1}, v{m+4}, v{m+5}
    v_fmac_f32 v{u+1}, v{m+6}, v{m+7}
    v_rcp_f32 v{u+2}, v{u+1}
    s_waitcnt lgkmcnt(0)
    v_mul_f32 v{o}, v{m}, v{o}
    v_mul_f32 v{o+1}, v{m}, v{o+1}
    v_fmac_f32 v{o}, v{m+2}, v{o+2}
    v_fmac_f32 v{o+1}, v{m+2}, v{o+3}
    v_fmac_f32 v{o}, v{m+4}, v{o+4}
    v_fmac_f32 v{o+1}, v{m+4}, v{o+5}
    v_fmac_f32 v{o}, v{m+6}, v{o+6}
    v_fmac_f32 v{o+1}, v{m+6}, v{o+7}
    v_mul_f32 v{u+3}, v{o}, v{u+2}
    v_mul_f32 v{u+4}, v{o+1}, v{u+2}
    v_fma_f32 v{u+5}, -v{u+3}, v{u+1}, v{o}
    v_fma_f32 v{u+6}, -v{u+4}, v{u+1}, v{o+1}
    v_fmac_f32 v{u+3}, v{u+5}, v{u+2}
    v_fmac_f32 v{u+4}, v{u+6}, v{u+2}
    v_cvt_pk_bf16_f32 v{vX0}, v{u+3}, v{u+3}
    v_cvt_pk_bf16_f32 v{vX1}, v{u+4}, v{u+4}
    s_nop 0
    """)
    mkA(vA, vX0, 0)
    for t in range(32):
        if t < 31:
            t1 = t + 1
            mkA(vA + 4 * (t1 & 1), vX1 if (t1 & 1) else vX0, t1 >> 1)
        else:
            g("s_nop 0")
        g(f"v_mfma_f32_16x16x32_bf16 {vr(vACC)}, {vr(vA+4*(t&1))}, {vr(vW+4*t)}, {vr(vACC)}")
    g(f"""
    v_readfirstlane_b32 s{sT1}, v{vT+5}
    s_mov_b32 s{sIT}, 0
    s_nop 2
    s_cmp_lg_u32 s{sT1}, 0
    s_cbranch_scc1 L_fdone
    {'s_branch L_fdone' if noproto else ''}
    L_fwait:
    global_load_dword v{vT+5}, v{vT+3}, {sr(sDBG,2)} sc1
    s_add_u32 s{sIT}, s{sIT}, 1
    s_waitcnt vmcnt(0)
    v_readfirstlane_b32 s{sT1}, v{vT+5}
    s_cmp_gt_u32 s{sIT}, 0x40000
    s_cbranch_scc1 L_fdone
    s_cmp_lg_u32 s{sT1}, 0
    s_cbranch_scc1 L_fdone
    s_sleep 8
    s_branch L_fwait
    L_fdone:
    s_nop 3
    v_min_u32 v{vACC}, v{vT+2}, v{vACC}
    v_min_u32 v{vACC+1}, v{vT+2}, v{vACC+1}
    v_min_u32 v{vACC+2}, v{vT+2}, v{vACC+2}
    v_min_u32 v{vACC+3}, v{vT+2}, v{vACC+3}
    s_mov_b64 exec, {sr(sLO32,2)}
    global_store_dwordx4 v{vPO}, {vr(vACC)}, {sr(sWS,2)} sc1
    s_mov_b64 exec, -1
    """)
    if stamps:
        st(1)
        st(4)
        emit_stamps(g, sST, 14, sWS, sWAVE, vT, sT0)
    g("""
    L_end:
    s_endpgm
    """)

    out = HEADER
    out += f"; @launch grid=(256,1,1) block=(512,1,1) lds={LDS}\n"
    out += f""".amdgcn_target "amdgcn-amd-amdhsa--gfx950"
.text
.globl {KNAME}
.p2align 8
.type {KNAME},@function
{KNAME}:
"""
    out += g.text()
    out += f""".section .rodata,"a"
.p2align 6
.amdhsa_kernel {KNAME}
  .amdhsa_next_free_vgpr 256
  .amdhsa_next_free_sgpr 96
  .amdhsa_accum_offset 256
  .amdhsa_group_segment_fixed_size 0
  .amdhsa_kernarg_size 104
  .amdhsa_user_sgpr_count 2
  .amdhsa_user_sgpr_kernarg_segment_ptr 1
  .amdhsa_system_sgpr_workgroup_id_x 1
  .amdhsa_float_denorm_mode_32 3
.end_amdhsa_kernel
"""
    return out


def emit_stamps(g, sST, n, sWS, sWAVE, vT, sT0):
    g(f"""
    s_lshl_b32 s{sT0}, s2, 3
    s_add_u32 s{sT0}, s{sT0}, s{sWAVE}
    s_lshl_b32 s{sT0}, s{sT0}, 7
    s_add_u32 s{sT0}, s{sT0}, 0x1000000
    v_mov_b32 v{vT}, s{sT0}
    s_getreg_b32 s{sT0}, hwreg(HW_REG_XCC_ID)
    s_waitcnt lgkmcnt(0)
    s_mov_b64 exec, 1
    """)
    for k in range(n):
        g(f"v_mov_b32 v{vT+1}, s{sST+2*k}")
        g(f"global_store_dword v{vT}, v{vT+1}, {sr(sWS,2)} offset:{4*k}")
    g(f"v_mov_b32 v{vT+1}, s{sT0}")
    g(f"global_store_dword v{vT}, v{vT+1}, {sr(sWS,2)} offset:64")
    g("s_mov_b64 exec, -1")


if __name__ == "__main__":
    out = sys.argv[1] if len(sys.argv) > 1 else "cdna_kernels/" + NAME + ".s"
    kw = {}
    for a in sys.argv[2:]:
        k, v = a.split("=")
        kw[k] = eval(v)
    open(out, "w").write(gen(**kw))
    print("wrote", out)
```

```python
import sys, os

NAME = "parallel_sum__gqa_block_cached__dense_activation_squared_relu__decode"
KNAME = NAME + "_kernel"
HEADER = open("cdna_kernels/" + NAME + ".s.ref").read().split("; Override launch")[0]


class G:
    def __init__(self):
        self.L = []

    def __call__(self, s):
        for line in s.strip("\n").split("\n"):
            t = line.strip()
            if not t:
                continue
            self.L.append(t if t.endswith(":") else "  " + t)

    def c(self, s):
        self.L.append("  ; " + s)

    def text(self):
        return "\n".join(self.L) + "\n"


def vr(b, n=4):
    return f"v[{b}:{b+n-1}]"


def sr(b, n=4):
    return f"s[{b}:{b+n-1}]"


def gen(R=48, DS=5, stamps=False, pol="nt", wpol="", hprio=0, hprio2=0, D0=6, slp=64, DK1=0, NK1=0, DV=0, alt=False, noproto=False, early=False, DV2=16, NV2=3, pat=(0,), HD=2, HQ=0, b15=1, opol='', bk=0, bkn=64, noflag=False, noclr=False, noflrd=False, nocons=False,
        noffn=False, nowo=False, nowq=False):
    g = G()

    def st(k):
        if stamps:
            g(f"s_memrealtime s[{66+2*k}:{67+2*k}]")

    L_QP = 0
    L_HP = 2048
    L_OP = 4096
    L_ML = 6144
    L_CNT = 6400
    L_SC = 8192
    LDS = 8192 + 16384 + 256
    sX, sK, sV, sWQ, sWO, sBX, sW1, sB1 = 4, 6, 8, 10, 12, 14, 16, 18
    sW2, sB2, sOUT, sDBG, sWS = 20, 22, 24, 26, 28
    sWAVE, sB, sH = 30, 31, 3
    SRD_A, SRD_B, SRD_PF, SRD_C = 32, 36, 40, 44
    sOFF, sIT, sT0, sT1, sT2, sT3 = 48, 49, 50, 51, 52, 53
    sM, sC0, sNCH, sJ = 54, 55, 56, 57
    sMASKC1, sMASKC0, sEX = 58, 60, 62
    sLO32 = 64
    sST = 66
    vTID, vLANE, vS, vC = 0, 1, 2, 3
    vMASK = 4
    vOFF, vOFF2 = 8, 9
    vT = 10
    vA = 16
    vACC = 24
    vQ = 28
    vP = 32
    vMAX, vL, vPP, vSC, vLDS = 48, 49, 50, 51, 52
    vX = 56
    vRING = 256 - 4 * R
    assert vRING >= 64 and R % 16 == 0
    NL = 256
    NIT = NL // R
    NG = R // 16
    DSB = DS

    def mkA(dst, src, lane):
        for t in range(4):
            g(f"v_and_b32_dpp v{dst+t}, v{src}, v{vMASK+t} row_newbcast:{lane} row_mask:0xf bank_mask:0xf")

    def srd(d, base, size):
        g(f"""
        s_mov_b32 s{d}, s{base}
        s_mov_b32 s{d+1}, s{base+1}
        s_mov_b32 s{d+2}, {size}
        s_mov_b32 s{d+3}, 0x20000
        """)

    g(f"""
    s_cmp_ge_u32 s2, 256
    s_cbranch_scc1 L_end
    s_load_dwordx16 s[4:19], s[0:1], 0
    s_load_dwordx8 s[20:27], s[0:1], 64
    s_load_dwordx2 s[28:29], s[0:1], 96
    """)
    st(0)
    g(f"""
    v_lshrrev_b32 v{vT}, 6, v{vTID}
    v_and_b32 v{vLANE}, 63, v{vTID}
    v_readfirstlane_b32 s{sWAVE}, v{vT}
    v_lshrrev_b32 v{vS}, 4, v{vLANE}
    v_and_b32 v{vC}, 15, v{vLANE}
    s_lshr_b32 s{sB}, s2, 5
    s_and_b32 s{sH}, s2, 31
    s_mov_b32 s{sLO32}, -1
    s_mov_b32 s{sLO32+1}, 0
    s_cmp_ge_u32 s{sWAVE}, 4
    s_cbranch_scc1 L_helper
    """)

    def masks(dst, full):
        g(f"""
        v_and_b32 v{vT}, 1, v{vC}
        v_lshlrev_b32 v{vT}, 4, v{vT}
        v_mov_b32 v{vT+1}, 0xffff
        v_lshlrev_b32 v{vT+1}, v{vT}, v{vT+1}
        """)
        if full:
            g(f"v_bfe_u32 v{vT+2}, v{vC}, 1, 2")
        else:
            g(f"v_lshrrev_b32 v{vT+2}, 1, v{vC}")
        for t in range(4):
            g(f"""
            v_cmp_eq_u32 vcc, {t}, v{vT+2}
            s_nop 1
            v_cndmask_b32 v{dst+t}, 0, v{vT+1}, vcc
            """)

    g.c("=========== streamer waves 0..3")
    g(f"""
    s_lshl_b32 s{sT0}, s{sWAVE}, {9 if b15 == 1 else 10}
    {f's_mul_i32 s{sT0}, s{sWAVE}, 0x4400' if b15 == 2 else ''}
    {f's_and_b32 s{sT0}, s{sT0}, 0x8400' if b15 == 2 else ''}
    v_lshlrev_b32 v{vOFF}, 4, v{vLANE}
    {f'v_and_b32 v{vOFF}, 0x1ff, v{vOFF}' if b15 == 1 else ''}
    {f'v_lshrrev_b32 v{vT+1}, 5, v{vLANE}' if b15 == 1 else ''}
    {f'v_lshl_add_u32 v{vOFF}, v{vT+1}, 15, v{vOFF}' if b15 == 1 else ''}
    v_add_u32 v{vOFF}, s{sT0}, v{vOFF}
    s_lshl_b32 s{sT1}, s2, 20
    s_mov_b32 s{sOFF}, 0
    s_mov_b32 s{SRD_PF+2}, 0x100000
    s_mov_b32 s{SRD_PF+3}, 0x20000
    s_waitcnt lgkmcnt(0)
    s_add_u32 s{SRD_PF}, s{sK}, s{sT1}
    s_addc_u32 s{SRD_PF+1}, s{sK+1}, 0
    """)

    def pf(b):
        g(f"buffer_load_dwordx4 {vr(vRING+4*b)}, v{vOFF}, {sr(SRD_PF)}, s{sOFF} offen {pol}")
        g(f"s_add_u32 s{sOFF}, s{sOFF}, {4096 if not b15 else (2048 if b % 16 < 15 else 2048 + 32768)}")

    st(5)
    if not D0:
        D0 = DS
    for b in range(D0):
        pf(b)
    g(f"""
    s_add_u32 s{SRD_B}, s{sV}, s{sT1}
    s_addc_u32 s{SRD_B+1}, s{sV+1}, 0
    """)
    masks(vMASK, False)
    g(f"""
    v_and_b32 v{vT}, 2, v{vC}
    v_cmp_ne_u32 {sr(sMASKC1,2)}, 0, v{vT}
    v_and_b32 v{vT}, 1, v{vC}
    v_cmp_ne_u32 {sr(sMASKC0,2)}, 0, v{vT}
    v_mov_b32 v{vMAX}, 0xff800000
    v_mov_b32 v{vL}, 0
    s_lshl_b32 s{sT0}, s{sWAVE}, 12
    s_add_u32 s{sT0}, s{sT0}, {L_SC}
    v_lshlrev_b32 v{vLDS}, 2, v{vLANE}
    v_add_u32 v{vLDS}, s{sT0}, v{vLDS}
    v_lshlrev_b32 v{vT}, 5, v{vC}
    v_mov_b32 v{vACC}, 0
    v_mov_b32 v{vACC+1}, 0
    v_mov_b32 v{vACC+2}, 0
    v_mov_b32 v{vACC+3}, 0
    s_mov_b32 s{sIT}, 0
    s_mov_b32 s{sT3}, 0x3db504f3
    """)
    for b in range(D0, R):
        g(f"s_waitcnt vmcnt({D0-1})")
        pf(b)
    st(8)
    g("s_barrier")
    g.c("q = sum of 4 partials, lane (s,c) takes q[8c..8c+8)")
    tq = [vP, vP + 8, vA, vX]
    for j in range(4):
        g(f"ds_read_b128 {vr(tq[j])}, v{vT} offset:{L_QP+512*j}")
        g(f"ds_read_b128 {vr(tq[j]+4)}, v{vT} offset:{L_QP+512*j+16}")
    g("s_waitcnt lgkmcnt(4)")
    for e in range(8):
        g(f"v_add_f32 v{tq[0]+e}, v{tq[0]+e}, v{tq[1]+e}")
    g("s_waitcnt lgkmcnt(0)")
    for e in range(8):
        g(f"v_add_f32 v{tq[2]+e}, v{tq[2]+e}, v{tq[3]+e}")
    for e in range(8):
        g(f"v_add_f32 v{tq[0]+e}, v{tq[0]+e}, v{tq[2]+e}")
    for t in range(4):
        g(f"v_cvt_pk_bf16_f32 v{vQ+t}, v{tq[0]+2*t}, v{tq[0]+2*t+1}")
    st(1)

    def kgroup(slot, ldsoff, DS=DS):
        g(f"""
        s_cmp_eq_u32 s{sIT}, {16-NG}
        s_cselect_b32 s{SRD_PF}, s{SRD_B}, s{SRD_PF}
        s_cselect_b32 s{SRD_PF+1}, s{SRD_B+1}, s{SRD_PF+1}
        s_cselect_b32 s{sOFF}, 0, s{sOFF}
        s_add_u32 s{sIT}, s{sIT}, 1
        """)
        for j in range(16):
            b = slot * 16 + j
            rb = vRING + 4 * b
            if DS == R:
                g(f"s_waitcnt vmcnt({DS-1})")
            g(f"v_dot2_f32_bf16 v{vP+j}, v{rb}, v{vQ}, 0")
            for t in range(1, 4):
                g(f"v_dot2_f32_bf16 v{vP+j}, v{rb+t}, v{vQ+t}, v{vP+j}")
            if DS < R:
                g(f"s_waitcnt vmcnt({DS-1+((j&1) if alt else 0)+(pat[j%len(pat)] if DS==DSB else 0)})")
            pf(b)
        g.c("transposing reduction over the 16 lanes of each row")
        g("s_nop 1")
        for j in range(8):
            g(f"v_add_f32_dpp v{vP+j}, v{vP+j}, v{vP+j} row_ror:8 row_mask:0xf bank_mask:0x3")
            g(f"v_add_f32_dpp v{vP+j}, v{vP+j+8}, v{vP+j+8} row_ror:8 row_mask:0xf bank_mask:0xc")
        for j in range(4):
            g(f"v_add_f32_dpp v{vP+j}, v{vP+j}, v{vP+j} row_half_mirror row_mask:0xf bank_mask:0x5")
            g(f"v_add_f32_dpp v{vP+j}, v{vP+j+4}, v{vP+j+4} row_half_mirror row_mask:0xf bank_mask:0xa")
        for j in range(4):
            g(f"v_add_f32_dpp v{vP+j}, v{vP+j}, v{vP+j} quad_perm:[2,3,0,1] row_mask:0xf bank_mask:0xf")
        g(f"v_cndmask_b32 v{vP+0}, v{vP+0}, v{vP+2}, {sr(sMASKC1,2)}")
        g(f"v_cndmask_b32 v{vP+1}, v{vP+1}, v{vP+3}, {sr(sMASKC1,2)}")
        g("s_nop 1")
        g(f"v_add_f32_dpp v{vP+0}, v{vP+0}, v{vP+0} quad_perm:[1,0,3,2] row_mask:0xf bank_mask:0xf")
        g(f"v_add_f32_dpp v{vP+1}, v{vP+1}, v{vP+1} quad_perm:[1,0,3,2] row_mask:0xf bank_mask:0xf")
        g(f"v_cndmask_b32 v{vP+0}, v{vP+0}, v{vP+1}, {sr(sMASKC0,2)}")
        g.c("score = bf16(bf16(q.k) * Dh^-0.5)")
        g(f"""
        v_cvt_pk_bf16_f32 v{vP+0}, v{vP+0}, v{vP+0}
        v_lshlrev_b32 v{vP+0}, 16, v{vP+0}
        v_mul_f32 v{vP+0}, s{sT3}, v{vP+0}
        v_cvt_pk_bf16_f32 v{vP+0}, v{vP+0}, v{vP+0}
        v_lshlrev_b32 v{vSC}, 16, v{vP+0}
        v_max_f32 v{vMAX}, v{vMAX}, v{vSC}
        ds_write_b32 v{vLDS}, v{vSC} offset:{ldsoff}
        """)

    nk = 16 // NG
    if NK1:
        g("L_kloop1:")
        for slot in range(NG):
            kgroup(slot, 256 * slot, DK1)
        g(f"""
        v_add_u32 v{vLDS}, {256*NG}, v{vLDS}
        s_cmp_lt_u32 s{sIT}, {NK1*NG}
        s_cbranch_scc1 L_kloop1
        """)
    g("L_kloop:")
    for slot in range(NG):
        kgroup(slot, 256 * slot)
    g(f"""
    v_add_u32 v{vLDS}, {256*NG}, v{vLDS}
    s_cmp_lt_u32 s{sIT}, {nk*NG}
    s_cbranch_scc1 L_kloop
    """)
    for r in range(16 - nk * NG):
        kgroup(r, 256 * r)
    g.c("wave max")
    g(f"""
    v_subrev_u32 v{vLDS}, {256*NG*nk}, v{vLDS}
    s_nop 0
    v_max_f32_dpp v{vMAX}, v{vMAX}, v{vMAX} row_ror:8 row_mask:0xf bank_mask:0xf
    s_nop 1
    v_max_f32_dpp v{vMAX}, v{vMAX}, v{vMAX} row_ror:4 row_mask:0xf bank_mask:0xf
    s_nop 1
    v_max_f32_dpp v{vMAX}, v{vMAX}, v{vMAX} row_ror:2 row_mask:0xf bank_mask:0xf
    s_nop 1
    v_max_f32_dpp v{vMAX}, v{vMAX}, v{vMAX} row_ror:1 row_mask:0xf bank_mask:0xf
    s_nop 1
    v_max_f32_dpp v{vMAX}, v{vMAX}, v{vMAX} row_bcast:15 row_mask:0xa bank_mask:0xf
    s_nop 1
    v_max_f32_dpp v{vMAX}, v{vMAX}, v{vMAX} row_bcast:31 row_mask:0xc bank_mask:0xf
    s_waitcnt lgkmcnt(0)
    ds_read_b32 v{vSC}, v{vLDS}
    v_readlane_b32 s{sM}, v{vMAX}, 63
    s_mov_b32 s{sT3}, 0x3fb8aa3b
    s_mov_b32 s{sIT}, 0
    """)
    st(2)

    def vgroup(slot, ldsoff, rem, DS=(DV or DS)):
        g(f"""
        s_waitcnt lgkmcnt(0)
        v_subrev_f32 v{vT}, s{sM}, v{vSC}
        v_mul_f32 v{vT}, s{sT3}, v{vT}
        v_exp_f32 v{vT}, v{vT}
        ds_read_b32 v{vSC}, v{vLDS} offset:{ldsoff+256}
        v_add_f32 v{vL}, v{vL}, v{vT}
        v_cvt_pk_bf16_f32 v{vPP}, v{vT}, v{vT}
        s_nop 1
        """)
        mkA(vA, vPP, 0)
        for j in range(16):
            b = slot * 16 + j
            rb = vRING + 4 * b
            if j < 15:
                mkA(vA + 4 * ((j + 1) & 1), vPP, j + 1)
            else:
                g("s_nop 0")
            if rem is not None:
                if rem + 15 - j < DS + 2:
                    g(f"s_waitcnt vmcnt({rem+15-j})")
            elif DS == R:
                g(f"s_waitcnt vmcnt({DS-1})")
            g(f"v_mfma_f32_16x16x32_bf16 {vr(vACC)}, {vr(vA+4*(j&1))}, {vr(rb)}, {vr(vACC)}")
            if rem is None:
                if DS < R:
                    g(f"s_waitcnt vmcnt({DS-1+((j&1) if alt else 0)+(pat[j%len(pat)] if DS==DSB else 0)})")
                pf(b)

    s0 = 16 % NG
    nv = (16 - NG - NV2) // NG
    g("L_vloop:")
    for i in range(NG):
        vgroup((s0 + i) % NG, 256 * i, None)
    g(f"""
    v_add_u32 v{vLDS}, {256*NG}, v{vLDS}
    s_add_u32 s{sIT}, s{sIT}, 1
    s_cmp_lt_u32 s{sIT}, {nv}
    s_cbranch_scc1 L_vloop
    """)
    vFLG, vFLA = 53, 54
    for i, v in enumerate(range(nv * NG, 16)):
        if v == 16 - NG:
            g.c("read the 'slots cleared' flag of column block w (checked by helper w after the barrier)")
            g(f"""
            s_lshl_b32 s{sT0}, s{sB}, 2
            s_add_u32 s{sT0}, s{sT0}, s{sWAVE}
            s_lshl_b32 s{sT0}, s{sT0}, 3
            v_mov_b32 v{vFLA}, s{sT0}
            global_load_dword v{vFLG}, v{vFLA}, {sr(sX if noflrd else sDBG,2)} sc1
            """)
        vgroup((s0 + v) % NG, 256 * i, None if v < 16 - NG else 16 * (15 - v) + 1,
               DV2 if (NV2 and v >= 16 - NG - NV2) else (DV or DS))
    st(3)
    g.c("l: wave sum ; publish (m,l) and o partial")
    g(f"""
    v_add_f32_dpp v{vL}, v{vL}, v{vL} row_ror:8 row_mask:0xf bank_mask:0xf
    v_lshlrev_b32 v{vT}, 5, v{vC}
    v_lshlrev_b32 v{vT+1}, 4, v{vS}
    v_add_f32_dpp v{vL}, v{vL}, v{vL} row_ror:4 row_mask:0xf bank_mask:0xf
    v_add_u32 v{vT}, v{vT}, v{vT+1}
    s_lshl_b32 s{sT0}, s{sWAVE}, 9
    v_add_f32_dpp v{vL}, v{vL}, v{vL} row_ror:2 row_mask:0xf bank_mask:0xf
    v_add_u32 v{vT}, s{sT0}, v{vT}
    s_lshl_b32 s{sT0}, s{sWAVE}, 3
    v_add_f32_dpp v{vL}, v{vL}, v{vL} row_ror:1 row_mask:0xf bank_mask:0xf
    v_mov_b32 v{vT+2}, s{sT0}
    v_mov_b32 v{vT+4}, s{sM}
    v_add_f32_dpp v{vL}, v{vL}, v{vL} row_bcast:15 row_mask:0xa bank_mask:0xf
    s_nop 1
    v_add_f32_dpp v{vL}, v{vL}, v{vL} row_bcast:31 row_mask:0xc bank_mask:0xf
    s_mov_b64 exec, {sr(sLO32,2)}
    ds_write_b128 v{vT}, {vr(vACC)} offset:{L_OP}
    s_mov_b64 exec, -1
    v_readlane_b32 s{sT1}, v{vL}, 63
    s_nop 1
    v_mov_b32 v{vT+5}, s{sT1}
    ds_write_b64 v{vT+2}, v[{vT+4}:{vT+5}] offset:{L_ML}
    s_waitcnt vmcnt(0)
    ds_write_b32 v{vT+2}, v{vFLG} offset:{L_ML+32}
    s_waitcnt lgkmcnt(0)
    s_barrier
    s_and_b32 s{sT0}, s{sH}, 0x19
    {'s_branch L_sdone' if (nocons or noproto) else 's_cbranch_scc1 L_sdone'}
    """)
    g.c("=========== consumer: wave w of WG (b, 2jj) reduces columns jj*128+32w .. +32 of batch b")
    vR = vRING
    g(f"""
    s_lshl_b32 s{sT0}, s{sB}, 16
    s_add_u32 s{SRD_C}, s{sWS}, s{sT0}
    s_addc_u32 s{SRD_C+1}, s{sWS+1}, 0
    s_mov_b32 s{SRD_C+2}, 0x10000
    s_mov_b32 s{SRD_C+3}, 0x20000
    s_lshr_b32 s{sT2}, s{sH}, 1
    s_lshl_b32 s{sT2}, s{sT2}, 2
    s_add_u32 s{sT2}, s{sT2}, s{sWAVE}
    v_lshrrev_b32 v{vT}, 3, v{vLANE}
    v_lshlrev_b32 v{vT}, 11, v{vT}
    v_and_b32 v{vT+1}, 7, v{vLANE}
    v_lshl_add_u32 v{vT}, v{vT+1}, 4, v{vT}
    s_lshl_b32 s{sT0}, s{sT2}, 7
    v_add_u32 v{vT}, s{sT0}, v{vT}
    s_lshl_b32 s{sT0}, s{sT2}, 6
    v_lshlrev_b32 v{vT+1}, 3, v{vT+1}
    v_add_u32 v{vT+1}, s{sT0}, v{vT+1}
    s_lshl_b32 s{sT0}, s{sB}, 10
    v_add_u32 v{vT+2}, s{sT0}, v{vT+1}
    global_load_dwordx2 v[{vX}:{vX+1}], v{vT+2}, {sr(sX,2)}
    global_load_dwordx2 v[{vX+2}:{vX+3}], v{vT+1}, {sr(sB2,2)}
    s_mov_b32 s{sIT}, 0
    s_movk_i32 s{sT0}, 0x4000
    s_mov_b32 s{sT1}, 0x8000
    s_mov_b32 s{sT2}, 0xc000
    """)
    sMK = [58, 60, 62, 64]
    soffs = ["0", f"s{sT0}", f"s{sT1}", f"s{sT2}"]
    for i in range(4):
        g(f"s_mov_b64 {sr(sMK[i],2)}, -1")
    g("L_poll:")
    for i in range(4):
        g(f"""
        s_mov_b64 exec, {sr(sMK[i],2)}
        s_cbranch_execz L_pk{i}
        buffer_load_dwordx4 {vr(vR+4*i)}, v{vT}, {sr(SRD_C)}, {soffs[i]} offen sc1
        L_pk{i}:
        """)
    g(f"""
    s_mov_b64 exec, -1
    s_add_u32 s{sIT}, s{sIT}, 1
    s_waitcnt vmcnt(0)
    """)
    for i in range(4):
        g(f"v_max3_u32 v{vA+i}, v{vR+4*i}, v{vR+4*i+1}, v{vR+4*i+2}")
        g(f"v_max_u32 v{vA+i}, v{vA+i}, v{vR+4*i+3}")
    for i in range(4):
        g(f"v_cmp_eq_u32 {sr(sMK[i],2)}, -1, v{vA+i}")
    g(f"""
    s_cmp_gt_u32 s{sIT}, 0x80000
    s_cbranch_scc1 L_pdone
    s_or_b64 vcc, {sr(sMK[0],2)}, {sr(sMK[1],2)}
    s_or_b64 vcc, vcc, {sr(sMK[2],2)}
    s_or_b64 vcc, vcc, {sr(sMK[3],2)}
    s_cbranch_scc0 L_pdone
    """)
    if bk:
        g(f"""
        s_bcnt1_i32_b64 s{sM}, {sr(sMK[0],2)}
        s_bcnt1_i32_b64 s{sT3}, {sr(sMK[1],2)}
        s_add_u32 s{sM}, s{sM}, s{sT3}
        s_bcnt1_i32_b64 s{sT3}, {sr(sMK[2],2)}
        s_add_u32 s{sM}, s{sM}, s{sT3}
        s_bcnt1_i32_b64 s{sT3}, {sr(sMK[3],2)}
        s_add_u32 s{sM}, s{sM}, s{sT3}
        s_cmp_lt_u32 s{sM}, {bkn}
        s_cbranch_scc1 L_poll
        s_sleep {bk}
        """)
    g(f"""
    s_branch L_poll
    L_pdone:
    """)
    for e in range(4):
        g(f"v_add_f32 v{vR+e}, v{vR+e}, v{vR+4+e}")
        g(f"v_add_f32 v{vR+8+e}, v{vR+8+e}, v{vR+12+e}")
    for e in range(4):
        g(f"v_add_f32 v{vR+e}, v{vR+e}, v{vR+8+e}")
    g("s_nop 1")
    for e in range(4):
        g(f"v_add_f32_dpp v{vR+e}, v{vR+e}, v{vR+e} row_ror:8 row_mask:0xf bank_mask:0xf")
    for op in ("v_permlane16_swap_b32", "v_permlane32_swap_b32"):
        for e in range(4):
            g(f"v_mov_b32 v{vR+4+e}, v{vR+e}")
        g("s_nop 1")
        for e in range(4):
            g(f"{op} v{vR+e}, v{vR+4+e}")
        g("s_nop 1")
        for e in range(4):
            g(f"v_add_f32 v{vR+e}, v{vR+e}, v{vR+4+e}")
    g.c("+ x + b2")
    for e in range(4):
        src_x = vX + (e >> 1)
        src_b = vX + 2 + (e >> 1)
        if e & 1:
            g(f"v_and_b32 v{vR+8}, 0xffff0000, v{src_x}")
            g(f"v_and_b32 v{vR+9}, 0xffff0000, v{src_b}")
        else:
            g(f"v_lshlrev_b32 v{vR+8}, 16, v{src_x}")
            g(f"v_lshlrev_b32 v{vR+9}, 16, v{src_b}")
        g(f"v_add_f32 v{vR+8}, v{vR+8}, v{vR+9}")
        g(f"v_add_f32 v{vR+e}, v{vR+e}, v{vR+8}")
    g(f"""
    v_cvt_pk_bf16_f32 v{vR+10}, v{vR+0}, v{vR+1}
    v_cvt_pk_bf16_f32 v{vR+11}, v{vR+2}, v{vR+3}
    s_mov_b64 exec, 0xff
    global_store_dwordx2 v{vT+2}, v[{vR+10}:{vR+11}], {sr(sOUT,2)} {opol}
    s_mov_b64 exec, -1
    L_sdone:
    """)
    if stamps:
        st(4)
        emit_stamps(g, sST, 14, sWS, sWAVE, vT, sT0)
    g("s_endpgm")

    g.c("=========== helper waves 4..7")
    vACC2 = 28
    vM2 = 32
    vX0, vX1, vXO, vPO, vMB, vSD, vRS, vDL = 36, 37, 38, 39, 40, 41, 42, 43
    vTB, vB1, vH, vF = 44, 46, 47, 48
    xf = 48
    vW1 = 64
    vW = 128
    g(f"""
    L_helper:
    s_setprio {hprio}
    s_sub_u32 s{sJ}, s{sWAVE}, 4
    s_lshl_b32 s{sT0}, s{sB}, 10
    v_lshlrev_b32 v{vT}, 4, v{vLANE}
    v_add_u32 v{vT}, s{sT0}, v{vT}
    s_lshl_b32 s{sT1}, s{sJ}, 8
    s_add_u32 s{sT0}, s{sT0}, s{sT1}
    v_lshlrev_b32 v{vT+1}, 2, v{vLANE}
    v_add_u32 v{vT+1}, s{sT0}, v{vT+1}
    """)
    g.c("wq voffset = (128j + 32s)*8192 + h*256 + c*16")
    g(f"""
    s_lshl_b32 s{sT0}, s{sJ}, 20
    s_lshl_b32 s{sT1}, s{sH}, 8
    s_add_u32 s{sT0}, s{sT0}, s{sT1}
    v_lshlrev_b32 v{vOFF}, 18, v{vS}
    v_lshl_add_u32 v{vOFF}, v{vC}, 4, v{vOFF}
    v_add_u32 v{vOFF}, s{sT0}, v{vOFF}
    s_mul_i32 s{sC0}, s{sH}, 43
    s_add_u32 s{sT0}, s{sC0}, 43
    s_lshr_b32 s{sC0}, s{sC0}, 3
    s_lshr_b32 s{sT0}, s{sT0}, 3
    s_sub_u32 s{sNCH}, s{sT0}, s{sC0}
    s_mov_b32 s{sOFF}, 0
    s_waitcnt lgkmcnt(0)
    global_load_dwordx4 {vr(vX)}, v{vT}, {sr(sX,2)}
    global_load_dword v{vXO}, v{vT+1}, {sr(sX,2)}
    """)
    st(5)
    srd(SRD_A, sWQ, 0 if nowq else 0x400000)
    for t in range(32):
        if HQ and t >= HQ:
            g(f"s_waitcnt vmcnt({HQ-1})")
        if not nowq:
            g(f"buffer_load_dwordx4 {vr(vW+4*t)}, v{vOFF}, {sr(SRD_A)}, s{sOFF} offen {wpol}")
        g(f"s_add_u32 s{sOFF}, s{sOFF}, 8192")
    st(6)
    st(7)
    masks(vMASK, False)
    masks(vM2, True)
    g.c("layernorm statistics (whole row per wave)")
    g("s_waitcnt vmcnt(0)" if nowq else "s_waitcnt vmcnt(32)")
    st(8)
    for e in range(4):
        g(f"v_lshlrev_b32 v{xf+2*e}, 16, v{vX+e}")
        g(f"v_and_b32 v{xf+2*e+1}, 0xffff0000, v{vX+e}")
    g(f"""
    v_add_f32 v{vT}, v{xf}, v{xf+1}
    v_add_f32 v{vT+1}, v{xf+2}, v{xf+3}
    v_add_f32 v{vT+2}, v{xf+4}, v{xf+5}
    v_add_f32 v{vT+3}, v{xf+6}, v{xf+7}
    v_add_f32 v{vT}, v{vT}, v{vT+1}
    v_add_f32 v{vT+2}, v{vT+2}, v{vT+3}
    v_add_f32 v{vT}, v{vT}, v{vT+2}
    """)

    def wavesum(v, sdst):
        g(f"""
        s_nop 1
        v_add_f32_dpp v{v}, v{v}, v{v} row_ror:8 row_mask:0xf bank_mask:0xf
        s_nop 1
        v_add_f32_dpp v{v}, v{v}, v{v} row_ror:4 row_mask:0xf bank_mask:0xf
        s_nop 1
        v_add_f32_dpp v{v}, v{v}, v{v} row_ror:2 row_mask:0xf bank_mask:0xf
        s_nop 1
        v_add_f32_dpp v{v}, v{v}, v{v} row_ror:1 row_mask:0xf bank_mask:0xf
        s_nop 1
        v_add_f32_dpp v{v}, v{v}, v{v} row_bcast:15 row_mask:0xa bank_mask:0xf
        s_nop 1
        v_add_f32_dpp v{v}, v{v}, v{v} row_bcast:31 row_mask:0xc bank_mask:0xf
        s_nop 1
        v_readlane_b32 s{sdst}, v{v}, 63
        s_nop 1
        """)

    wavesum(vT, sT0)
    g(f"""
    v_mov_b32 v{vT}, 0x3b000000
    v_mul_f32 v{vT}, s{sT0}, v{vT}
    """)
    for e in range(8):
        g(f"v_sub_f32 v{xf+e}, v{xf+e}, v{vT}")
    g(f"v_mul_f32 v{vT+1}, v{xf}, v{xf}")
    for e in range(1, 8):
        g(f"v_fmac_f32 v{vT+1}, v{xf+e}, v{xf+e}")
    wavesum(vT + 1, sT1)
    g(f"""
    v_mov_b32 v{vT+1}, 0x3b000000
    v_mul_f32 v{vT+1}, s{sT1}, v{vT+1}
    v_cvt_pk_bf16_f32 v{vMB}, v{vT}, v{vT}
    v_lshlrev_b32 v{vMB}, 16, v{vMB}
    v_cvt_pk_bf16_f32 v{vT+1}, v{vT+1}, v{vT+1}
    v_lshlrev_b32 v{vT+1}, 16, v{vT+1}
    v_add_f32 v{vT+1}, 0x3727c5ac, v{vT+1}
    v_cvt_pk_bf16_f32 v{vT+1}, v{vT+1}, v{vT+1}
    v_lshlrev_b32 v{vT+1}, 16, v{vT+1}
    v_sqrt_f32 v{vT+1}, v{vT+1}
    s_nop 0
    v_cvt_pk_bf16_f32 v{vT+1}, v{vT+1}, v{vT+1}
    v_lshlrev_b32 v{vSD}, 16, v{vT+1}
    v_rcp_f32 v{vRS}, v{vSD}
    v_lshlrev_b32 v{vT+4}, 16, v{vXO}
    v_and_b32 v{vT+5}, 0xffff0000, v{vXO}
    """)

    def norm(dst, src):
        g(f"""
        v_sub_f32 v{src}, v{src}, v{vMB}
        v_cvt_pk_bf16_f32 v{src}, v{src}, v{src}
        v_lshlrev_b32 v{src}, 16, v{src}
        v_mul_f32 v{vT+2}, v{src}, v{vRS}
        v_fma_f32 v{vT+3}, -v{vT+2}, v{vSD}, v{src}
        v_fmac_f32 v{vT+2}, v{vT+3}, v{vRS}
        v_cvt_pk_bf16_f32 v{dst}, v{vT+2}, v{vT+2}
        """)

    norm(vX0, vT + 4)
    norm(vX1, vT + 5)
    for e in range(8):
        g(f"v_mov_b32 v{vACC+e}, 0")
    st(9)
    g.c("q partial: tile t=2c'+u rows k = 128j + 32s + t")
    mkA(vA, vX0, 0)
    for t in range(32):
        if t < 31:
            t1 = t + 1
            mkA(vA + 4 * (t1 & 1), vX1 if (t1 & 1) else vX0, t1 >> 1)
        g(f"s_waitcnt vmcnt({31-t})")
        if t == 0:
            st(10)
        g(f"v_mfma_f32_16x16x32_bf16 {vr(vACC)}, {vr(vA+4*(t&1))}, {vr(vW+4*t)}, {vr(vACC)}")
    st(11)
    g(f"""
    v_lshlrev_b32 v{vDL}, 5, v{vC}
    v_lshl_add_u32 v{vDL}, v{vS}, 4, v{vDL}
    s_lshl_b32 s{sT0}, s{sJ}, 9
    v_add_u32 v{vT}, s{sT0}, v{vDL}
    v_mov_b32 v{vT+1}, 0
    v_mov_b32 v{vT+2}, {L_CNT}
    s_nop 2
    s_mov_b64 exec, {sr(sLO32,2)}
    ds_write_b128 v{vT}, {vr(vACC)} offset:{L_QP}
    s_mov_b64 exec, -1
    ds_write_b32 v{vT+2}, v{vT+1}
    s_waitcnt lgkmcnt(0)
    s_barrier
    s_setprio {hprio2}
    """)
    st(13)
    g.c("w1 voffset: (128j + 32s + (c>>3))*2752 + (c0 + (c&7))*16, out of range if (c&7) >= nch")
    g(f"""
    v_lshrrev_b32 v{vT}, 3, v{vC}
    v_lshl_add_u32 v{vT}, v{vS}, 5, v{vT}
    s_lshl_b32 s{sT0}, s{sJ}, 7
    v_add_u32 v{vT}, s{sT0}, v{vT}
    v_mul_u32_u24 v{vT}, 2752, v{vT}
    v_and_b32 v{vT+1}, 7, v{vC}
    v_add_u32 v{vT+2}, s{sC0}, v{vT+1}
    v_lshl_add_u32 v{vOFF2}, v{vT+2}, 4, v{vT}
    v_cmp_gt_u32 vcc, s{sNCH}, v{vT+1}
    v_mov_b32 v{vT+3}, 0x40000000
    s_mov_b32 s{sOFF}, 0
    v_cndmask_b32 v{vOFF2}, v{vT+3}, v{vOFF2}, vcc
    """)
    srd(SRD_B, sW1, 0 if noffn else 512 * 2752)
    for u in range(16):
        if HD:
            g(f"s_waitcnt vmcnt({HD-1})")
        if not noffn:
            g(f"buffer_load_dwordx4 {vr(vW1+4*u)}, v{vOFF2}, {sr(SRD_B)}, s{sOFF} offen {wpol}")
        g(f"s_add_u32 s{sOFF}, s{sOFF}, {2*2752}")
    g.c("b1: lane (s,c) -> hidden unit 4c+s")
    vHI = 60
    g(f"""
    s_mov_b32 s{SRD_C}, s{sB1}
    s_mov_b32 s{SRD_C+1}, s{sB1+1}
    s_add_u32 s{sT1}, s{sC0}, s{sNCH}
    s_lshl_b32 s{SRD_C+2}, s{sT1}, 4
    s_mov_b32 s{SRD_C+3}, 0x20000
    v_lshl_add_u32 v{vHI}, v{vC}, 2, v{vS}
    s_lshl_b32 s{sT1}, s{sC0}, 4
    v_lshlrev_b32 v{vT+5}, 1, v{vHI}
    v_add_u32 v{vT+5}, s{sT1}, v{vT+5}
    buffer_load_ushort v{vB1}, v{vT+5}, {sr(SRD_C)}, 0 offen
    """)
    g.c("ffn hidden partial: tile u rows k = 128j + 32s + 2u + (c>>3)")
    for u in range(16):
        a = vA + 4 * (u & 1)
        tb = vTB + (u & 1)
        g(f"v_mov_b32_dpp v{tb}, v{vX0} row_newbcast:{u} row_mask:0xf bank_mask:0x3")
        g(f"v_mov_b32_dpp v{tb}, v{vX1} row_newbcast:{u} row_mask:0xf bank_mask:0xc")
        for t in range(4):
            g(f"v_and_b32 v{a+t}, v{tb}, v{vM2+t}")
        g(f"s_waitcnt vmcnt({16-u})")
        g("s_nop 0")
        g(f"v_mfma_f32_16x16x32_bf16 {vr(vACC2)}, {vr(a)}, {vr(vW1+4*u)}, {vr(vACC2)}")
    st(12)
    g.c("hidden halves to LDS: lanes (s'<2,c'<8) -> [0..64), lanes (s'>=2,c'>=8) -> [64..128)")
    g(f"""
    v_lshrrev_b32 v{vT}, 1, v{vS}
    v_lshrrev_b32 v{vT+1}, 3, v{vC}
    v_cmp_eq_u32 vcc, v{vT}, v{vT+1}
    v_lshlrev_b32 v{vT}, 8, v{vT}
    v_and_b32 v{vT+1}, 7, v{vC}
    v_lshl_add_u32 v{vT}, v{vT+1}, 5, v{vT}
    v_and_b32 v{vT+1}, 1, v{vS}
    v_lshl_add_u32 v{vT}, v{vT+1}, 4, v{vT}
    s_lshl_b32 s{sT0}, s{sJ}, 9
    v_add_u32 v{vT}, s{sT0}, v{vT}
    s_and_saveexec_b64 {sr(sEX,2)}, vcc
    ds_write_b128 v{vT}, {vr(vACC2)} offset:{L_HP}
    s_mov_b64 exec, 1
    v_mov_b32 v{vT+1}, 1
    v_mov_b32 v{vT+2}, {L_CNT}
    s_waitcnt lgkmcnt(0)
    ds_add_u32 v{vT+2}, v{vT+1}
    s_mov_b64 exec, -1
    """)
    g.c("w2 tile t: row = 8c0 + 4t + s, cols j*128 + 8c ; wo tile t=2c'+u: rows d = 32 s + t")
    g(f"""
    s_lshl_b32 s{sT0}, s{sC0}, 13
    s_lshl_b32 s{sT2}, s{sJ}, 8
    v_lshlrev_b32 v{vOFF2}, 10, v{vS}
    v_lshl_add_u32 v{vOFF2}, v{vC}, 4, v{vOFF2}
    v_add_u32 v{vOFF2}, s{sT0}, v{vOFF2}
    v_add_u32 v{vOFF2}, s{sT2}, v{vOFF2}
    s_mov_b32 s{SRD_B}, s{sW2}
    s_mov_b32 s{SRD_B+1}, s{sW2+1}
    s_lshl_b32 s{sT1}, s{sNCH}, 13
    s_add_u32 s{SRD_B+2}, s{sT0}, s{sT1}
    s_mov_b32 s{SRD_B+3}, 0x20000
    s_lshl_b32 s{sT0}, s{sH}, 17
    s_add_u32 s{sT0}, s{sT0}, s{sT2}
    v_lshlrev_b32 v{vOFF}, 15, v{vS}
    v_lshl_add_u32 v{vOFF}, v{vC}, 4, v{vOFF}
    v_add_u32 v{vOFF}, s{sT0}, v{vOFF}
    v_lshlrev_b32 v{vT+5}, 2, v{vHI}
    s_mov_b32 s{sOFF}, 0
    """)
    if noffn:
        g(f"s_mov_b32 s{SRD_B+2}, 0")
    srd(SRD_A, sWO, 0 if nowo else 0x400000)
    hp = 48
    for t in range(12):
        if HD:
            g(f"s_waitcnt vmcnt({HD-1})")
        if not noffn:
            g(f"buffer_load_dwordx4 {vr(vW1+4*t)}, v{vOFF2}, {sr(SRD_B)}, s{sOFF} offen {wpol}")
        g(f"s_add_u32 s{sOFF}, s{sOFF}, 4096")
    g(f"s_mov_b32 s{sOFF}, 0")
    for t in range(32):
        if HD:
            g(f"s_waitcnt vmcnt({HD-1})")
        if not nowo:
            g(f"buffer_load_dwordx4 {vr(vW+4*t)}, v{vOFF}, {sr(SRD_A)}, s{sOFF} offen offset:{1024*(t&3)} {wpol}")
        if (t & 3) == 3:
            g(f"s_add_u32 s{sOFF}, s{sOFF}, 4096")
    st(2)
    g(f"""
    v_mov_b32 v{vT+2}, {L_CNT}
    L_hwait:
    ds_read_b32 v{vT+1}, v{vT+2}
    s_waitcnt lgkmcnt(0)
    v_readfirstlane_b32 s{sT1}, v{vT+1}
    s_nop 3
    s_cmp_ge_u32 s{sT1}, 4
    s_cbranch_scc1 L_hdone
    s_sleep 2
    s_branch L_hwait
    L_hdone:
    """)
    for j in range(4):
        g(f"ds_read_b32 v{hp+2*j}, v{vT+5} offset:{L_HP+512*j}")
        g(f"ds_read_b32 v{hp+2*j+1}, v{vT+5} offset:{L_HP+512*j+256}")
    g(f"""
    s_waitcnt lgkmcnt(0)
    v_add_f32 v{hp}, v{hp}, v{hp+1}
    v_add_f32 v{hp+2}, v{hp+2}, v{hp+3}
    v_add_f32 v{hp+4}, v{hp+4}, v{hp+5}
    v_add_f32 v{hp+6}, v{hp+6}, v{hp+7}
    v_add_f32 v{hp}, v{hp}, v{hp+2}
    v_add_f32 v{hp+4}, v{hp+4}, v{hp+6}
    v_add_f32 v{vT}, v{hp}, v{hp+4}
    v_cvt_pk_bf16_f32 v{vT}, v{vT}, v{vT}
    v_lshlrev_b32 v{vT}, 16, v{vT}
    s_waitcnt vmcnt(44)
    v_lshlrev_b32 v{vB1}, 16, v{vB1}
    v_add_f32 v{vT}, v{vT}, v{vB1}
    v_cvt_pk_bf16_f32 v{vT}, v{vT}, v{vT}
    v_lshlrev_b32 v{vT}, 16, v{vT}
    v_cmp_lt_f32 vcc, 0, v{vT}
    s_lshl_b32 s{sT1}, s{sNCH}, 3
    v_cmp_gt_u32 {sr(sEX,2)}, s{sT1}, v{vHI}
    s_nop 1
    s_and_b64 vcc, vcc, {sr(sEX,2)}
    s_nop 1
    v_cndmask_b32 v{vT}, 0, v{vT}, vcc
    v_mul_f32 v{vT}, v{vT}, v{vT}
    v_cvt_pk_bf16_f32 v{vH}, v{vT}, v{vT}
    """)
    for e in range(4):
        g(f"v_mov_b32 v{vACC+e}, 0")
    for t in range(12):
        a = vA + 4 * (t & 1)
        mkA(a, vH, t)
        g(f"s_waitcnt vmcnt({43-t})")
        g("s_nop 0")
        g(f"v_mfma_f32_16x16x32_bf16 {vr(vACC)}, {vr(a)}, {vr(vW1+4*t)}, {vr(vACC)}")
    st(3)
    g.c("clearing duty: wave 4 of WG (b, 2jj) clears column block jj of all 32 slots of batch b")
    g(f"""
    s_and_b32 s{sT0}, s{sH}, 0x19
    {'s_branch L_noclear' if noproto else 's_cbranch_scc1 L_noclear'}
    s_cmp_lg_u32 s{sJ}, 0
    s_cbranch_scc1 L_noclear
    s_lshl_b32 s{sT0}, s{sB}, 16
    s_add_u32 s{SRD_C}, s{sWS}, s{sT0}
    s_addc_u32 s{SRD_C+1}, s{sWS+1}, 0
    s_mov_b32 s{SRD_C+2}, 0x10000
    s_mov_b32 s{SRD_C+3}, 0x20000
    s_lshr_b32 s{sT2}, s{sH}, 1
    s_lshl_b32 s{sT0}, s{sT2}, 9
    v_lshrrev_b32 v{vT}, 5, v{vLANE}
    v_lshlrev_b32 v{vT}, 11, v{vT}
    v_and_b32 v{vT+1}, 31, v{vLANE}
    v_lshl_add_u32 v{vT}, v{vT+1}, 4, v{vT}
    v_add_u32 v{vT}, s{sT0}, v{vT}
    v_mov_b32 v{vW1}, -1
    v_mov_b32 v{vW1+1}, -1
    v_mov_b32 v{vW1+2}, -1
    v_mov_b32 v{vW1+3}, -1
    s_mov_b32 s{sOFF}, 0
    """)
    for i in range(0 if noclr else 16):
        g(f"buffer_store_dwordx4 {vr(vW1)}, v{vT}, {sr(SRD_C)}, s{sOFF} offen sc1")
        g(f"s_add_u32 s{sOFF}, s{sOFF}, 4096")
    g(f"""
    s_lshl_b32 s{sT0}, s{sB}, 2
    s_add_u32 s{sT0}, s{sT0}, s{sT2}
    s_lshl_b32 s{sT0}, s{sT0}, 3
    v_mov_b32 v{vT}, s{sT0}
    v_mov_b32 v{vT+1}, 1
    s_waitcnt vmcnt(0)
    s_mov_b64 exec, 1
    {'' if noflag else f'global_store_dword v{vT}, v{vT+1}, {sr(sDBG,2)} sc1'}
    s_mov_b64 exec, -1
    L_noclear:
    """)
    g(f"""
    s_lshl_b32 s{sT0}, s{sB}, 2
    s_add_u32 s{sT0}, s{sT0}, s{sJ}
    s_lshl_b32 s{sT0}, s{sT0}, 3
    v_mov_b32 v{vT+3}, s{sT0}
    s_lshl_b32 s{sT0}, s{sJ}, 3
    v_mov_b32 v{vT+4}, s{sT0}
    s_waitcnt vmcnt(0)
    s_lshl_b32 s{sT0}, s2, 11
    s_lshl_b32 s{sT1}, s{sJ}, 9
    s_add_u32 s{sT0}, s{sT0}, s{sT1}
    v_add_u32 v{vPO}, s{sT0}, v{vDL}
    v_lshlrev_b32 v{vT}, 7, v{vS}
    v_lshl_add_u32 v{vT}, v{vC}, 3, v{vT}
    v_mov_b32 v{vT+1}, 0
    v_mov_b32 v{vT+2}, -2
    s_mov_b32 s{sT3}, 0x3fb8aa3b
    """)
    st(8)
    g("s_barrier")
    g.c("combine the 4 streamer partials")
    o = 64
    m = 72
    u = 80
    g(f"""
    ds_read_b128 v[{m}:{m+3}], v{vT+1} offset:{L_ML}
    ds_read_b128 v[{m+4}:{m+7}], v{vT+1} offset:{L_ML+16}
    ds_read_b64 v[{o}:{o+1}], v{vT} offset:{L_OP}
    ds_read_b64 v[{o+2}:{o+3}], v{vT} offset:{L_OP+512}
    ds_read_b64 v[{o+4}:{o+5}], v{vT} offset:{L_OP+1024}
    ds_read_b64 v[{o+6}:{o+7}], v{vT} offset:{L_OP+1536}
    ds_read_b32 v{vT+5}, v{vT+4} offset:{L_ML+32}
    s_waitcnt lgkmcnt(5)
    v_max3_f32 v{u}, v{m}, v{m+2}, v{m+4}
    v_max_f32 v{u}, v{u}, v{m+6}
    v_sub_f32 v{m}, v{m}, v{u}
    v_sub_f32 v{m+2}, v{m+2}, v{u}
    v_sub_f32 v{m+4}, v{m+4}, v{u}
    v_sub_f32 v{m+6}, v{m+6}, v{u}
    v_mul_f32 v{m}, s{sT3}, v{m}
    v_mul_f32 v{m+2}, s{sT3}, v{m+2}
    v_mul_f32 v{m+4}, s{sT3}, v{m+4}
    v_mul_f32 v{m+6}, s{sT3}, v{m+6}
    v_exp_f32 v{m}, v{m}
    v_exp_f32 v{m+2}, v{m+2}
    v_exp_f32 v{m+4}, v{m+4}
    v_exp_f32 v{m+6}, v{m+6}
    v_mul_f32 v{u+1}, v{m}, v{m+1}
    v_fmac_f32 v{u+1}, v{m+2}, v{m+3}
    v_fmac_f32 v{u+1}, v{m+4}, v{m+5}
    v_fmac_f32 v{u+1}, v{m+6}, v{m+7}
    v_rcp_f32 v{u+2}, v{u+1}
    s_waitcnt lgkmcnt(0)
    v_mul_f32 v{o}, v{m}, v{o}
    v_mul_f32 v{o+1}, v{m}, v{o+1}
    v_fmac_f32 v{o}, v{m+2}, v{o+2}
    v_fmac_f32 v{o+1}, v{m+2}, v{o+3}
    v_fmac_f32 v{o}, v{m+4}, v{o+4}
    v_fmac_f32 v{o+1}, v{m+4}, v{o+5}
    v_fmac_f32 v{o}, v{m+6}, v{o+6}
    v_fmac_f32 v{o+1}, v{m+6}, v{o+7}
    v_mul_f32 v{u+3}, v{o}, v{u+2}
    v_mul_f32 v{u+4}, v{o+1}, v{u+2}
    v_fma_f32 v{u+5}, -v{u+3}, v{u+1}, v{o}
    v_fma_f32 v{u+6}, -v{u+4}, v{u+1}, v{o+1}
    v_fmac_f32 v{u+3}, v{u+5}, v{u+2}
    v_fmac_f32 v{u+4}, v{u+6}, v{u+2}
    v_cvt_pk_bf16_f32 v{vX0}, v{u+3}, v{u+3}
    v_cvt_pk_bf16_f32 v{vX1}, v{u+4}, v{u+4}
    s_nop 0
    """)
    mkA(vA, vX0, 0)
    for t in range(32):
        if t < 31:
            t1 = t + 1
            mkA(vA + 4 * (t1 & 1), vX1 if (t1 & 1) else vX0, t1 >> 1)
        else:
            g("s_nop 0")
        g(f"v_mfma_f32_16x16x32_bf16 {vr(vACC)}, {vr(vA+4*(t&1))}, {vr(vW+4*t)}, {vr(vACC)}")
    g(f"""
    v_readfirstlane_b32 s{sT1}, v{vT+5}
    s_mov_b32 s{sIT}, 0
    s_nop 2
    s_cmp_lg_u32 s{sT1}, 0
    s_cbranch_scc1 L_fdone
    {'s_branch L_fdone' if (noproto or noflag or noflrd) else ''}
    L_fwait:
    global_load_dword v{vT+5}, v{vT+3}, {sr(sDBG,2)} sc1
    s_add_u32 s{sIT}, s{sIT}, 1
    s_waitcnt vmcnt(0)
    v_readfirstlane_b32 s{sT1}, v{vT+5}
    s_cmp_gt_u32 s{sIT}, 0x40000
    s_cbranch_scc1 L_fdone
    s_cmp_lg_u32 s{sT1}, 0
    s_cbranch_scc1 L_fdone
    s_sleep 8
    s_branch L_fwait
    L_fdone:
    s_nop 3
    v_min_u32 v{vACC}, v{vT+2}, v{vACC}
    v_min_u32 v{vACC+1}, v{vT+2}, v{vACC+1}
    v_min_u32 v{vACC+2}, v{vT+2}, v{vACC+2}
    v_min_u32 v{vACC+3}, v{vT+2}, v{vACC+3}
    s_mov_b64 exec, {sr(sLO32,2)}
    global_store_dwordx4 v{vPO}, {vr(vACC)}, {sr(sWS,2)} sc1
    s_mov_b64 exec, -1
    """)
    if stamps:
        st(1)
        st(4)
        emit_stamps(g, sST, 14, sWS, sWAVE, vT, sT0)
    g("""
    L_end:
    s_endpgm
    """)

    out = HEADER
    out += f"; @launch grid=(256,1,1) block=(512,1,1) lds={LDS}\n"
    out += f""".amdgcn_target "amdgcn-amd-amdhsa--gfx950"
.text
.globl {KNAME}
.p2align 8
.type {KNAME},@function
{KNAME}:
"""
    out += g.text()
    out += f""".section .rodata,"a"
.p2align 6
.amdhsa_kernel {KNAME}
  .amdhsa_next_free_vgpr 256
  .amdhsa_next_free_sgpr 96
  .amdhsa_accum_offset 256
  .amdhsa_group_segment_fixed_size 0
  .amdhsa_kernarg_size 104
  .amdhsa_user_sgpr_count 2
  .amdhsa_user_sgpr_kernarg_segment_ptr 1
  .amdhsa_system_sgpr_workgroup_id_x 1
  .amdhsa_float_denorm_mode_32 3
.end_amdhsa_kernel
"""
    return out


def emit_stamps(g, sST, n, sWS, sWAVE, vT, sT0):
    g(f"""
    s_lshl_b32 s{sT0}, s2, 3
    s_add_u32 s{sT0}, s{sT0}, s{sWAVE}
    s_lshl_b32 s{sT0}, s{sT0}, 7
    s_add_u32 s{sT0}, s{sT0}, 0x1000000
    v_mov_b32 v{vT}, s{sT0}
    s_getreg_b32 s{sT0}, hwreg(HW_REG_XCC_ID)
    s_waitcnt lgkmcnt(0)
    s_mov_b64 exec, 1
    """)
    for k in range(n):
        g(f"v_mov_b32 v{vT+1}, s{sST+2*k}")
        g(f"global_store_dword v{vT}, v{vT+1}, {sr(sWS,2)} offset:{4*k}")
    g(f"v_mov_b32 v{vT+1}, s{sT0}")
    g(f"global_store_dword v{vT}, v{vT+1}, {sr(sWS,2)} offset:64")
    g("s_mov_b64 exec, -1")


if __name__ == "__main__":
    out = sys.argv[1] if len(sys.argv) > 1 else "cdna_kernels/" + NAME + ".s"
    kw = {}
    for a in sys.argv[2:]:
        k, v = a.split("=")
        kw[k] = eval(v)
    open(out, "w").write(gen(**kw))
    print("wrote", out)
```

```python
import sys, os

NAME = "parallel_sum__gqa_block_cached__dense_activation_squared_relu__decode"
KNAME = NAME + "_kernel"
HEADER = open("cdna_kernels/" + NAME + ".s.ref").read().split("; Override launch")[0]


class G:
    def __init__(self):
        self.L = []

    def __call__(self, s):
        for line in s.strip("\n").split("\n"):
            t = line.strip()
            if not t:
                continue
            self.L.append(t if t.endswith(":") else "  " + t)

    def c(self, s):
        self.L.append("  ; " + s)

    def text(self):
        return "\n".join(self.L) + "\n"


def vr(b, n=4):
    return f"v[{b}:{b+n-1}]"


def sr(b, n=4):
    return f"s[{b}:{b+n-1}]"


def gen(R=48, DS=5, stamps=False, pol="nt", wpol="", hprio=0, hprio2=0, D0=6, slp=64, DK1=0, NK1=0, DV=0, alt=False, noproto=False, early=False, DV2=16, NV2=1, pat=(0,), HD=2, HQ=0, b15=0, opol='', bk=0, bkn=64, noflag=False, noclr=False, noflrd=False, DH=6, DX=9, A0=8100, TA=2400, NA=10, TB=2200, F2=1.046, adapt=True, log=False, anchor=0, nocons=False,
        noffn=False, nowo=False, nowq=False):
    g = G()

    def st(k):
        if stamps:
            g(f"s_memrealtime s[{66+2*k}:{67+2*k}]")

    L_QP = 0
    L_HP = 2048
    L_OP = 4096
    L_ML = 6144
    L_CNT = 6400
    L_SC = 8192
    LDS = 8192 + 16384 + 256
    sX, sK, sV, sWQ, sWO, sBX, sW1, sB1 = 4, 6, 8, 10, 12, 14, 16, 18
    sW2, sB2, sOUT, sDBG, sWS = 20, 22, 24, 26, 28
    sWAVE, sB, sH = 30, 31, 3
    SRD_A, SRD_B, SRD_PF, SRD_C = 32, 36, 40, 44
    sOFF, sIT, sT0, sT1, sT2, sT3 = 48, 49, 50, 51, 52, 53
    sM, sC0, sNCH, sJ = 54, 55, 56, 57
    sMASKC1, sMASKC0, sEX = 58, 60, 62
    sLO32 = 64
    sST = 66
    vTID, vLANE, vS, vC = 0, 1, 2, 3
    vMASK = 4
    vOFF, vOFF2 = 8, 9
    vT = 10
    vA = 16
    vACC = 24
    vQ = 28
    vP = 32
    vMAX, vL, vPP, vSC, vLDS = 48, 49, 50, 51, 52
    vX = 56
    vRING = 256 - 4 * R
    assert vRING >= 64 and R % 16 == 0
    NL = 256
    NIT = NL // R
    NG = R // 16
    DSB = DS

    def mkA(dst, src, lane):
        for t in range(4):
            g(f"v_and_b32_dpp v{dst+t}, v{src}, v{vMASK+t} row_newbcast:{lane} row_mask:0xf bank_mask:0xf")

    def srd(d, base, size):
        g(f"""
        s_mov_b32 s{d}, s{base}
        s_mov_b32 s{d+1}, s{base+1}
        s_mov_b32 s{d+2}, {size}
        s_mov_b32 s{d+3}, 0x20000
        """)

    g(f"""
    s_cmp_ge_u32 s2, 256
    s_cbranch_scc1 L_end
    s_load_dwordx16 s[4:19], s[0:1], 0
    s_load_dwordx8 s[20:27], s[0:1], 64
    s_load_dwordx2 s[28:29], s[0:1], 96
    """)
    st(0)
    sCLK, sD1, sD2, sTA1, sTA2, sGC = 94, 96, 97, 98, 99, 100
    if adapt:
        g(f"s_memrealtime {sr(sCLK,2)}")
    g(f"""
    v_lshrrev_b32 v{vT}, 6, v{vTID}
    v_and_b32 v{vLANE}, 63, v{vTID}
    v_readfirstlane_b32 s{sWAVE}, v{vT}
    v_lshrrev_b32 v{vS}, 4, v{vLANE}
    v_and_b32 v{vC}, 15, v{vLANE}
    s_lshr_b32 s{sB}, s2, 5
    s_and_b32 s{sH}, s2, 31
    s_mov_b32 s{sLO32}, -1
    s_mov_b32 s{sLO32+1}, 0
    s_cmp_ge_u32 s{sWAVE}, 4
    s_cbranch_scc1 L_helper
    """)

    def masks(dst, full):
        g(f"""
        v_and_b32 v{vT}, 1, v{vC}
        v_lshlrev_b32 v{vT}, 4, v{vT}
        v_mov_b32 v{vT+1}, 0xffff
        v_lshlrev_b32 v{vT+1}, v{vT}, v{vT+1}
        """)
        if full:
            g(f"v_bfe_u32 v{vT+2}, v{vC}, 1, 2")
        else:
            g(f"v_lshrrev_b32 v{vT+2}, 1, v{vC}")
        for t in range(4):
            g(f"""
            v_cmp_eq_u32 vcc, {t}, v{vT+2}
            s_nop 1
            v_cndmask_b32 v{dst+t}, 0, v{vT+1}, vcc
            """)

    g.c("=========== streamer waves 0..3")
    g(f"""
    s_lshl_b32 s{sT0}, s{sWAVE}, {9 if b15 == 1 else 10}
    {f's_mul_i32 s{sT0}, s{sWAVE}, 0x4400' if b15 == 2 else ''}
    {f's_and_b32 s{sT0}, s{sT0}, 0x8400' if b15 == 2 else ''}
    v_lshlrev_b32 v{vOFF}, 4, v{vLANE}
    {f'v_and_b32 v{vOFF}, 0x1ff, v{vOFF}' if b15 == 1 else ''}
    {f'v_lshrrev_b32 v{vT+1}, 5, v{vLANE}' if b15 == 1 else ''}
    {f'v_lshl_add_u32 v{vOFF}, v{vT+1}, 15, v{vOFF}' if b15 == 1 else ''}
    v_add_u32 v{vOFF}, s{sT0}, v{vOFF}
    s_lshl_b32 s{sT1}, s2, 20
    s_mov_b32 s{sOFF}, 0
    s_mov_b32 s{SRD_PF+2}, 0x200000
    s_mov_b32 s{SRD_PF+3}, 0x20000
    s_waitcnt lgkmcnt(0)
    s_add_u32 s{SRD_PF}, s{sK}, s{sT1}
    s_addc_u32 s{SRD_PF+1}, s{sK+1}, 0
    """)

    def pf(b):
        g(f"buffer_load_dwordx4 {vr(vRING+4*b)}, v{vOFF}, {sr(SRD_PF)}, 0 offen {pol}")
        g(f"v_add_u32 v{vOFF}, {4096 if not b15 else (2048 if b % 16 < 15 else 2048 + 32768)}, v{vOFF}")

    lab = [0]

    def throttle(D, fixed):
        if fixed or not adapt:
            g(f"s_waitcnt vmcnt({D-1})")
            return
        lab[0] += 1
        g(f"""
        s_waitcnt vmcnt({DX-1})
        s_cbranch_scc1 L_t{lab[0]}
        s_waitcnt vmcnt({DH-1})
        s_cbranch_vccnz L_t{lab[0]}
        s_waitcnt vmcnt({D-1})
        L_t{lab[0]}:
        """)

    def decide():
        if not adapt:
            return
        if log:
            g(f"s_mov_b32 m0, s{sGC}")
            g(f"v_writelane_b32 v9, s{sCLK}, m0")
        g(f"""
        s_mul_i32 s{sT0}, s{sCLK}, 10
        s_sub_i32 s{sT1}, s{sT0}, s{sD1}
        s_sub_i32 s{sT0}, s{sT0}, s{sD2}
        s_add_u32 s{sGC}, s{sGC}, 1
        s_cmp_gt_u32 s{sGC}, {NA}
        s_cselect_b32 s{sTA1}, {TB}, s{sTA1}
        s_cselect_b32 s{sTA2}, {int(TB*F2)}, s{sTA2}
        s_add_u32 s{sD1}, s{sD1}, s{sTA1}
        s_add_u32 s{sD2}, s{sD2}, s{sTA2}
        s_cmp_gt_i32 s{sT1}, 0
        s_cselect_b64 vcc, -1, 0
        s_cmp_gt_i32 s{sT0}, 0
        """)

    st(5)
    if not D0:
        D0 = DS
    for b in range(D0):
        pf(b)
    g(f"""
    s_add_u32 s{SRD_B}, s{sV}, s{sT1}
    s_addc_u32 s{SRD_B+1}, s{sV+1}, 0
    s_sub_u32 s{SRD_B}, s{SRD_B}, 0x100000
    s_subb_u32 s{SRD_B+1}, s{SRD_B+1}, 0
    s_mul_i32 s{sD1}, s{sCLK}, 10
    s_add_u32 s{sD2}, s{sD1}, {int(A0*F2)}
    s_add_u32 s{sD1}, s{sD1}, {A0}
    s_mov_b32 s{sGC}, 0
    s_mov_b32 s{sTA1}, {TA}
    s_mov_b32 s{sTA2}, {int(TA*F2)}
    """)
    masks(vMASK, False)
    g(f"""
    v_and_b32 v{vT}, 2, v{vC}
    v_cmp_ne_u32 {sr(sMASKC1,2)}, 0, v{vT}
    v_and_b32 v{vT}, 1, v{vC}
    v_cmp_ne_u32 {sr(sMASKC0,2)}, 0, v{vT}
    v_mov_b32 v{vMAX}, 0xff800000
    v_mov_b32 v{vL}, 0
    s_lshl_b32 s{sT0}, s{sWAVE}, 12
    s_add_u32 s{sT0}, s{sT0}, {L_SC}
    v_lshlrev_b32 v{vLDS}, 2, v{vLANE}
    v_add_u32 v{vLDS}, s{sT0}, v{vLDS}
    v_lshlrev_b32 v{vT}, 5, v{vC}
    v_mov_b32 v{vACC}, 0
    v_mov_b32 v{vACC+1}, 0
    v_mov_b32 v{vACC+2}, 0
    v_mov_b32 v{vACC+3}, 0
    s_mov_b32 s{sIT}, 0
    s_mov_b32 s{sT3}, 0x3db504f3
    """)
    for b in range(D0, R):
        g(f"s_waitcnt vmcnt({D0-1})")
        pf(b)
    st(8)
    g("s_barrier")
    g.c("q = sum of 4 partials, lane (s,c) takes q[8c..8c+8)")
    tq = [vP, vP + 8, vA, vX]
    for j in range(4):
        g(f"ds_read_b128 {vr(tq[j])}, v{vT} offset:{L_QP+512*j}")
        g(f"ds_read_b128 {vr(tq[j]+4)}, v{vT} offset:{L_QP+512*j+16}")
    g("s_waitcnt lgkmcnt(4)")
    for e in range(8):
        g(f"v_add_f32 v{tq[0]+e}, v{tq[0]+e}, v{tq[1]+e}")
    g("s_waitcnt lgkmcnt(0)")
    if adapt:
        g(f"s_memrealtime {sr(sCLK,2)}")
    for e in range(8):
        g(f"v_add_f32 v{tq[2]+e}, v{tq[2]+e}, v{tq[3]+e}")
    for e in range(8):
        g(f"v_add_f32 v{tq[0]+e}, v{tq[0]+e}, v{tq[2]+e}")
    for t in range(4):
        g(f"v_cvt_pk_bf16_f32 v{vQ+t}, v{tq[0]+2*t}, v{tq[0]+2*t+1}")
    if anchor:
        g(f"""
        s_waitcnt lgkmcnt(0)
        s_mul_i32 s{sD1}, s{sCLK}, 10
        s_add_u32 s{sD2}, s{sD1}, {anchor+int(A0*(F2-1))}
        s_add_u32 s{sD1}, s{sD1}, {anchor}
        """)
    st(1)

    def kgroup(slot, ldsoff, DS=DS):
        g(f"""
        s_cmp_eq_u32 s{sIT}, {16-NG}
        s_cselect_b32 s{SRD_PF}, s{SRD_B}, s{SRD_PF}
        s_cselect_b32 s{SRD_PF+1}, s{SRD_B+1}, s{SRD_PF+1}
        s_add_u32 s{sIT}, s{sIT}, 1
        s_waitcnt lgkmcnt(0)
        """)
        decide()
        for j in range(16):
            b = slot * 16 + j
            rb = vRING + 4 * b
            if DS == R:
                g(f"s_waitcnt vmcnt({DS-1})")
            g(f"v_dot2_f32_bf16 v{vP+j}, v{rb}, v{vQ}, 0")
            for t in range(1, 4):
                g(f"v_dot2_f32_bf16 v{vP+j}, v{rb+t}, v{vQ+t}, v{vP+j}")
            throttle(DS, DS != DSB)
            pf(b)
        if adapt:
            g(f"s_memrealtime {sr(sCLK,2)}")
        g.c("transposing reduction over the 16 lanes of each row")
        g("s_nop 1")
        for j in range(8):
            g(f"v_add_f32_dpp v{vP+j}, v{vP+j}, v{vP+j} row_ror:8 row_mask:0xf bank_mask:0x3")
            g(f"v_add_f32_dpp v{vP+j}, v{vP+j+8}, v{vP+j+8} row_ror:8 row_mask:0xf bank_mask:0xc")
        for j in range(4):
            g(f"v_add_f32_dpp v{vP+j}, v{vP+j}, v{vP+j} row_half_mirror row_mask:0xf bank_mask:0x5")
            g(f"v_add_f32_dpp v{vP+j}, v{vP+j+4}, v{vP+j+4} row_half_mirror row_mask:0xf bank_mask:0xa")
        for j in range(4):
            g(f"v_add_f32_dpp v{vP+j}, v{vP+j}, v{vP+j} quad_perm:[2,3,0,1] row_mask:0xf bank_mask:0xf")
        g(f"v_cndmask_b32 v{vP+0}, v{vP+0}, v{vP+2}, {sr(sMASKC1,2)}")
        g(f"v_cndmask_b32 v{vP+1}, v{vP+1}, v{vP+3}, {sr(sMASKC1,2)}")
        g("s_nop 1")
        g(f"v_add_f32_dpp v{vP+0}, v{vP+0}, v{vP+0} quad_perm:[1,0,3,2] row_mask:0xf bank_mask:0xf")
        g(f"v_add_f32_dpp v{vP+1}, v{vP+1}, v{vP+1} quad_perm:[1,0,3,2] row_mask:0xf bank_mask:0xf")
        g(f"v_cndmask_b32 v{vP+0}, v{vP+0}, v{vP+1}, {sr(sMASKC0,2)}")
        g.c("score = bf16(bf16(q.k) * Dh^-0.5)")
        g(f"""
        v_cvt_pk_bf16_f32 v{vP+0}, v{vP+0}, v{vP+0}
        v_lshlrev_b32 v{vP+0}, 16, v{vP+0}
        v_mul_f32 v{vP+0}, s{sT3}, v{vP+0}
        v_cvt_pk_bf16_f32 v{vP+0}, v{vP+0}, v{vP+0}
        v_lshlrev_b32 v{vSC}, 16, v{vP+0}
        v_max_f32 v{vMAX}, v{vMAX}, v{vSC}
        ds_write_b32 v{vLDS}, v{vSC} offset:{ldsoff}
        """)

    nk = 16 // NG
    if NK1:
        g("L_kloop1:")
        for slot in range(NG):
            kgroup(slot, 256 * slot, DK1)
        g(f"""
        v_add_u32 v{vLDS}, {256*NG}, v{vLDS}
        s_cmp_lt_u32 s{sIT}, {NK1*NG}
        s_cbranch_scc1 L_kloop1
        """)
    g("L_kloop:")
    for slot in range(NG):
        kgroup(slot, 256 * slot)
    g(f"""
    v_add_u32 v{vLDS}, {256*NG}, v{vLDS}
    s_cmp_lt_u32 s{sIT}, {nk*NG}
    s_cbranch_scc1 L_kloop
    """)
    for r in range(16 - nk * NG):
        kgroup(r, 256 * r)
    g.c("wave max")
    g(f"""
    v_subrev_u32 v{vLDS}, {256*NG*nk}, v{vLDS}
    s_nop 0
    v_max_f32_dpp v{vMAX}, v{vMAX}, v{vMAX} row_ror:8 row_mask:0xf bank_mask:0xf
    s_nop 1
    v_max_f32_dpp v{vMAX}, v{vMAX}, v{vMAX} row_ror:4 row_mask:0xf bank_mask:0xf
    s_nop 1
    v_max_f32_dpp v{vMAX}, v{vMAX}, v{vMAX} row_ror:2 row_mask:0xf bank_mask:0xf
    s_nop 1
    v_max_f32_dpp v{vMAX}, v{vMAX}, v{vMAX} row_ror:1 row_mask:0xf bank_mask:0xf
    s_nop 1
    v_max_f32_dpp v{vMAX}, v{vMAX}, v{vMAX} row_bcast:15 row_mask:0xa bank_mask:0xf
    s_nop 1
    v_max_f32_dpp v{vMAX}, v{vMAX}, v{vMAX} row_bcast:31 row_mask:0xc bank_mask:0xf
    s_waitcnt lgkmcnt(0)
    ds_read_b32 v{vSC}, v{vLDS}
    v_readlane_b32 s{sM}, v{vMAX}, 63
    s_mov_b32 s{sT3}, 0x3fb8aa3b
    s_mov_b32 s{sIT}, 0
    """)
    st(2)

    def vgroup(slot, ldsoff, rem, DS=(DV or DS), vPP=vPP):
        if rem is None: g(f"""
        s_waitcnt lgkmcnt(0)
        v_subrev_f32 v{vT}, s{sM}, v{vSC}
        v_mul_f32 v{vT}, s{sT3}, v{vT}
        v_exp_f32 v{vT}, v{vT}
        ds_read_b32 v{vSC}, v{vLDS} offset:{ldsoff+256}
        v_add_f32 v{vL}, v{vL}, v{vT}
        v_cvt_pk_bf16_f32 v{vPP}, v{vT}, v{vT}
        s_nop 1
        """)
        if rem is None and DS == DSB:
            decide()
        mkA(vA, vPP, 0)
        for j in range(16):
            b = slot * 16 + j
            rb = vRING + 4 * b
            if j < 15:
                mkA(vA + 4 * ((j + 1) & 1), vPP, j + 1)
            else:
                g("s_nop 0")
            if rem is not None:
                if rem + 15 - j < max(DS, DX) + 2:
                    g(f"s_waitcnt vmcnt({rem+15-j})")
            elif DS == R:
                g(f"s_waitcnt vmcnt({DS-1})")
            g(f"v_mfma_f32_16x16x32_bf16 {vr(vACC)}, {vr(vA+4*(j&1))}, {vr(rb)}, {vr(vACC)}")
            if rem is None:
                throttle(DS, DS != DSB)
                pf(b)
                if adapt and j == 14:
                    g(f"s_memrealtime {sr(sCLK,2)}")

    s0 = 16 % NG
    nv = (16 - NG - NV2) // NG
    g("L_vloop:")
    for i in range(NG):
        vgroup((s0 + i) % NG, 256 * i, None)
    g(f"""
    v_add_u32 v{vLDS}, {256*NG}, v{vLDS}
    s_add_u32 s{sIT}, s{sIT}, 1
    s_cmp_lt_u32 s{sIT}, {nv}
    s_cbranch_scc1 L_vloop
    """)
    vFLG, vFLA = 53, 54
    vOA = 55
    for i, v in enumerate(range(nv * NG, 16)):
        if v == nv * NG:
            g.c("read the 'slots cleared' flag of column block w (checked by helper w)")
            g(f"""
            s_lshl_b32 s{sT0}, s{sB}, 2
            s_add_u32 s{sT0}, s{sT0}, s{sWAVE}
            s_lshl_b32 s{sT0}, s{sT0}, 3
            v_mov_b32 v{vFLA}, s{sT0}
            global_load_dword v{vFLG}, v{vFLA}, {sr(sDBG,2)} sc1
            s_bfe_u32 s{sT0}, s{sH}, 0x20001
            s_lshl_b32 s{sT0}, s{sT0}, 2
            s_add_u32 s{sT0}, s{sT0}, s{sWAVE}
            s_lshl_b32 s{sT0}, s{sT0}, 6
            v_and_b32 v{vT+1}, 7, v{vLANE}
            v_lshlrev_b32 v{vT+1}, 3, v{vT+1}
            v_add_u32 v{vT+1}, s{sT0}, v{vT+1}
            s_lshl_b32 s{sT0}, s{sB}, 10
            v_add_u32 v{vT+2}, s{sT0}, v{vT+1}
            global_load_dwordx2 v[{vX}:{vX+1}], v{vT+2}, {sr(sX,2)}
            global_load_dwordx2 v[{vX+2}:{vX+3}], v{vT+1}, {sr(sB2,2)}
            """)
            assert v < 16 - NG
        if v == 16 - NG:
            g.c("p of the last groups, final l ; publish (m, l, flag)")
            for k in range(1, NG):
                g(f"ds_read_b32 v{vP+k}, v{vLDS} offset:{256*(i+k)}")
            g(f"""
            s_waitcnt lgkmcnt(0)
            v_mov_b32 v{vP}, v{vSC}
            """)
            for k in range(NG):
                g(f"v_subrev_f32 v{vP+k}, s{sM}, v{vP+k}")
            for k in range(NG):
                g(f"v_mul_f32 v{vP+k}, s{sT3}, v{vP+k}")
            for k in range(NG):
                g(f"v_exp_f32 v{vP+k}, v{vP+k}")
            g("s_nop 0")
            for k in range(NG):
                g(f"v_add_f32 v{vL}, v{vL}, v{vP+k}")
            for k in range(NG):
                g(f"v_cvt_pk_bf16_f32 v{vP+k}, v{vP+k}, v{vP+k}")
            g(f"""
            v_add_f32_dpp v{vL}, v{vL}, v{vL} row_ror:8 row_mask:0xf bank_mask:0xf
            v_lshlrev_b32 v{vOA}, 5, v{vC}
            v_lshlrev_b32 v{vT+1}, 4, v{vS}
            v_add_f32_dpp v{vL}, v{vL}, v{vL} row_ror:4 row_mask:0xf bank_mask:0xf
            v_add_u32 v{vOA}, v{vOA}, v{vT+1}
            s_lshl_b32 s{sT0}, s{sWAVE}, 9
            v_add_f32_dpp v{vL}, v{vL}, v{vL} row_ror:2 row_mask:0xf bank_mask:0xf
            v_add_u32 v{vOA}, s{sT0}, v{vOA}
            s_lshl_b32 s{sT0}, s{sWAVE}, 3
            v_add_f32_dpp v{vL}, v{vL}, v{vL} row_ror:1 row_mask:0xf bank_mask:0xf
            v_mov_b32 v{vT+2}, s{sT0}
            v_mov_b32 v{vT+4}, s{sM}
            v_add_f32_dpp v{vL}, v{vL}, v{vL} row_bcast:15 row_mask:0xa bank_mask:0xf
            v_mov_b32 v{vT}, {L_CNT}
            v_mov_b32 v{vT+1}, 1
            v_add_f32_dpp v{vL}, v{vL}, v{vL} row_bcast:31 row_mask:0xc bank_mask:0xf
            s_waitcnt vmcnt(16)
            ds_write_b32 v{vT+2}, v{vFLG} offset:{L_ML+32}
            v_readlane_b32 s{sT1}, v{vL}, 63
            s_nop 1
            v_mov_b32 v{vT+5}, s{sT1}
            ds_write_b64 v{vT+2}, v[{vT+4}:{vT+5}] offset:{L_ML}
            s_waitcnt lgkmcnt(0)
            s_mov_b64 exec, 1
            ds_add_u32 v{vT}, v{vT+1}
            s_mov_b64 exec, -1
            s_nop 3
            """)
        last = v >= 16 - NG
        vgroup((s0 + v) % NG, 256 * i, 16 * (15 - v) if last else None,
               DV2 if (NV2 and v >= 16 - NG - NV2) else (DV or DS), vP + v - (16 - NG) if last else vPP)
    st(3)
    g.c("publish o partial")
    g(f"""
    s_nop 6
    s_mov_b64 exec, {sr(sLO32,2)}
    ds_write_b128 v{vOA}, {vr(vACC)} offset:{L_OP}
    s_mov_b64 exec, -1
    s_waitcnt lgkmcnt(0)
    s_barrier
    s_and_b32 s{sT0}, s{sH}, 0x19
    {'s_branch L_sdone' if (nocons or noproto) else 's_cbranch_scc1 L_sdone'}
    """)
    g.c("=========== consumer: wave w of WG (b, 2jj) reduces columns jj*128+32w .. +32 of batch b")
    vR = vRING
    g(f"""
    s_lshl_b32 s{sT0}, s{sB}, 16
    s_add_u32 s{SRD_C}, s{sWS}, s{sT0}
    s_addc_u32 s{SRD_C+1}, s{sWS+1}, 0
    s_mov_b32 s{SRD_C+2}, 0x10000
    s_mov_b32 s{SRD_C+3}, 0x20000
    s_lshr_b32 s{sT2}, s{sH}, 1
    s_lshl_b32 s{sT2}, s{sT2}, 2
    s_add_u32 s{sT2}, s{sT2}, s{sWAVE}
    v_lshrrev_b32 v{vT}, 3, v{vLANE}
    v_lshlrev_b32 v{vT}, 11, v{vT}
    v_and_b32 v{vT+1}, 7, v{vLANE}
    v_lshl_add_u32 v{vT}, v{vT+1}, 4, v{vT}
    s_lshl_b32 s{sT0}, s{sT2}, 7
    v_add_u32 v{vT}, s{sT0}, v{vT}
    s_lshl_b32 s{sT0}, s{sT2}, 6
    v_lshlrev_b32 v{vT+1}, 3, v{vT+1}
    v_add_u32 v{vT+1}, s{sT0}, v{vT+1}
    s_lshl_b32 s{sT0}, s{sB}, 10
    v_add_u32 v{vT+2}, s{sT0}, v{vT+1}
    s_mov_b32 s{sIT}, 0
    s_movk_i32 s{sT0}, 0x4000
    s_mov_b32 s{sT1}, 0x8000
    s_mov_b32 s{sT2}, 0xc000
    """)
    sMK = [58, 60, 62, 64]
    soffs = ["0", f"s{sT0}", f"s{sT1}", f"s{sT2}"]
    for i in range(4):
        g(f"s_mov_b64 {sr(sMK[i],2)}, -1")
    g.c("x + b2")
    g("s_waitcnt vmcnt(0)")
    for e in range(4):
        src_x = vX + (e >> 1)
        src_b = vX + 2 + (e >> 1)
        if e & 1:
            g(f"v_and_b32 v{vQ+e}, 0xffff0000, v{src_x}")
            g(f"v_and_b32 v{vR+9}, 0xffff0000, v{src_b}")
        else:
            g(f"v_lshlrev_b32 v{vQ+e}, 16, v{src_x}")
            g(f"v_lshlrev_b32 v{vR+9}, 16, v{src_b}")
        g(f"v_add_f32 v{vQ+e}, v{vQ+e}, v{vR+9}")
    g("L_poll:")
    for i in range(4):
        g(f"""
        s_mov_b64 exec, {sr(sMK[i],2)}
        s_cbranch_execz L_pk{i}
        buffer_load_dwordx4 {vr(vR+4*i)}, v{vT}, {sr(SRD_C)}, {soffs[i]} offen sc1
        L_pk{i}:
        """)
    g(f"""
    s_mov_b64 exec, -1
    s_add_u32 s{sIT}, s{sIT}, 1
    s_waitcnt vmcnt(0)
    """)
    for i in range(4):
        g(f"v_max3_u32 v{vA+i}, v{vR+4*i}, v{vR+4*i+1}, v{vR+4*i+2}")
        g(f"v_max_u32 v{vA+i}, v{vA+i}, v{vR+4*i+3}")
    for i in range(4):
        g(f"v_cmp_eq_u32 {sr(sMK[i],2)}, -1, v{vA+i}")
    g(f"""
    s_cmp_gt_u32 s{sIT}, 0x80000
    s_cbranch_scc1 L_pdone
    s_or_b64 vcc, {sr(sMK[0],2)}, {sr(sMK[1],2)}
    s_or_b64 vcc, vcc, {sr(sMK[2],2)}
    s_or_b64 vcc, vcc, {sr(sMK[3],2)}
    s_cbranch_scc0 L_pdone
    """)
    if bk:
        g(f"""
        s_bcnt1_i32_b64 s{sM}, {sr(sMK[0],2)}
        s_bcnt1_i32_b64 s{sT3}, {sr(sMK[1],2)}
        s_add_u32 s{sM}, s{sM}, s{sT3}
        s_bcnt1_i32_b64 s{sT3}, {sr(sMK[2],2)}
        s_add_u32 s{sM}, s{sM}, s{sT3}
        s_bcnt1_i32_b64 s{sT3}, {sr(sMK[3],2)}
        s_add_u32 s{sM}, s{sM}, s{sT3}
        s_cmp_lt_u32 s{sM}, {bkn}
        s_cbranch_scc1 L_poll
        s_sleep {bk}
        """)
    g(f"""
    s_branch L_poll
    L_pdone:
    """)
    for e in range(4):
        g(f"v_add_f32 v{vR+e}, v{vR+e}, v{vR+4+e}")
        g(f"v_add_f32 v{vR+8+e}, v{vR+8+e}, v{vR+12+e}")
    for e in range(4):
        g(f"v_add_f32 v{vR+e}, v{vR+e}, v{vR+8+e}")
    g("s_nop 1")
    for e in range(4):
        g(f"v_add_f32_dpp v{vR+e}, v{vR+e}, v{vR+e} row_ror:8 row_mask:0xf bank_mask:0xf")
    for op in ("v_permlane16_swap_b32", "v_permlane32_swap_b32"):
        for e in range(4):
            g(f"v_mov_b32 v{vR+4+e}, v{vR+e}")
        g("s_nop 1")
        for e in range(4):
            g(f"{op} v{vR+e}, v{vR+4+e}")
        g("s_nop 1")
        for e in range(4):
            g(f"v_add_f32 v{vR+e}, v{vR+e}, v{vR+4+e}")
    for e in range(4):
        g(f"v_add_f32 v{vR+e}, v{vR+e}, v{vQ+e}")
    g(f"""
    v_cvt_pk_bf16_f32 v{vR+10}, v{vR+0}, v{vR+1}
    v_cvt_pk_bf16_f32 v{vR+11}, v{vR+2}, v{vR+3}
    s_mov_b64 exec, 0xff
    global_store_dwordx2 v{vT+2}, v[{vR+10}:{vR+11}], {sr(sOUT,2)} {opol}
    s_mov_b64 exec, -1
    L_sdone:
    """)
    if log:
        g(f"""
        s_lshl_b32 s{sT0}, s2, 2
        s_add_u32 s{sT0}, s{sT0}, s{sWAVE}
        s_lshl_b32 s{sT0}, s{sT0}, 8
        s_add_u32 s{sT0}, s{sT0}, 0x3000000
        v_lshlrev_b32 v{vT}, 2, v{vLANE}
        v_add_u32 v{vT}, s{sT0}, v{vT}
        global_store_dword v{vT}, v9, {sr(sWS,2)}
        """)
    if stamps:
        st(4)
        emit_stamps(g, sST, 14, sWS, sWAVE, vT, sT0)
    g("s_endpgm")

    g.c("=========== helper waves 4..7")
    vACC2 = 28
    vM2 = 32
    vX0, vX1, vXO, vPO, vMB, vSD, vRS, vDL = 36, 37, 38, 39, 40, 41, 42, 43
    vTB, vB1, vH, vF = 44, 46, 47, 48
    xf = 48
    vW1 = 64
    vW = 128
    g(f"""
    L_helper:
    s_setprio {hprio}
    s_sub_u32 s{sJ}, s{sWAVE}, 4
    s_lshl_b32 s{sT0}, s{sB}, 10
    v_lshlrev_b32 v{vT}, 4, v{vLANE}
    v_add_u32 v{vT}, s{sT0}, v{vT}
    s_lshl_b32 s{sT1}, s{sJ}, 8
    s_add_u32 s{sT0}, s{sT0}, s{sT1}
    v_lshlrev_b32 v{vT+1}, 2, v{vLANE}
    v_add_u32 v{vT+1}, s{sT0}, v{vT+1}
    """)
    g.c("wq voffset = (128j + 32s)*8192 + h*256 + c*16")
    g(f"""
    s_lshl_b32 s{sT0}, s{sJ}, 20
    s_lshl_b32 s{sT1}, s{sH}, 8
    s_add_u32 s{sT0}, s{sT0}, s{sT1}
    v_lshlrev_b32 v{vOFF}, 18, v{vS}
    v_lshl_add_u32 v{vOFF}, v{vC}, 4, v{vOFF}
    v_add_u32 v{vOFF}, s{sT0}, v{vOFF}
    s_mul_i32 s{sC0}, s{sH}, 43
    s_add_u32 s{sT0}, s{sC0}, 43
    s_lshr_b32 s{sC0}, s{sC0}, 3
    s_lshr_b32 s{sT0}, s{sT0}, 3
    s_sub_u32 s{sNCH}, s{sT0}, s{sC0}
    s_mov_b32 s{sOFF}, 0
    s_waitcnt lgkmcnt(0)
    global_load_dwordx4 {vr(vX)}, v{vT}, {sr(sX,2)}
    global_load_dword v{vXO}, v{vT+1}, {sr(sX,2)}
    """)
    st(5)
    srd(SRD_A, sWQ, 0 if nowq else 0x400000)
    for t in range(32):
        if HQ and t >= HQ:
            g(f"s_waitcnt vmcnt({HQ-1})")
        if not nowq:
            g(f"buffer_load_dwordx4 {vr(vW+4*t)}, v{vOFF}, {sr(SRD_A)}, s{sOFF} offen {wpol}")
        g(f"s_add_u32 s{sOFF}, s{sOFF}, 8192")
    st(6)
    st(7)
    masks(vMASK, False)
    masks(vM2, True)
    g.c("layernorm statistics (whole row per wave)")
    g("s_waitcnt vmcnt(0)" if nowq else "s_waitcnt vmcnt(32)")
    st(8)
    for e in range(4):
        g(f"v_lshlrev_b32 v{xf+2*e}, 16, v{vX+e}")
        g(f"v_and_b32 v{xf+2*e+1}, 0xffff0000, v{vX+e}")
    g(f"""
    v_add_f32 v{vT}, v{xf}, v{xf+1}
    v_add_f32 v{vT+1}, v{xf+2}, v{xf+3}
    v_add_f32 v{vT+2}, v{xf+4}, v{xf+5}
    v_add_f32 v{vT+3}, v{xf+6}, v{xf+7}
    v_add_f32 v{vT}, v{vT}, v{vT+1}
    v_add_f32 v{vT+2}, v{vT+2}, v{vT+3}
    v_add_f32 v{vT}, v{vT}, v{vT+2}
    """)

    def wavesum(v, sdst):
        g(f"""
        s_nop 1
        v_add_f32_dpp v{v}, v{v}, v{v} row_ror:8 row_mask:0xf bank_mask:0xf
        s_nop 1
        v_add_f32_dpp v{v}, v{v}, v{v} row_ror:4 row_mask:0xf bank_mask:0xf
        s_nop 1
        v_add_f32_dpp v{v}, v{v}, v{v} row_ror:2 row_mask:0xf bank_mask:0xf
        s_nop 1
        v_add_f32_dpp v{v}, v{v}, v{v} row_ror:1 row_mask:0xf bank_mask:0xf
        s_nop 1
        v_add_f32_dpp v{v}, v{v}, v{v} row_bcast:15 row_mask:0xa bank_mask:0xf
        s_nop 1
        v_add_f32_dpp v{v}, v{v}, v{v} row_bcast:31 row_mask:0xc bank_mask:0xf
        s_nop 1
        v_readlane_b32 s{sdst}, v{v}, 63
        s_nop 1
        """)

    wavesum(vT, sT0)
    g(f"""
    v_mov_b32 v{vT}, 0x3b000000
    v_mul_f32 v{vT}, s{sT0}, v{vT}
    """)
    for e in range(8):
        g(f"v_sub_f32 v{xf+e}, v{xf+e}, v{vT}")
    g(f"v_mul_f32 v{vT+1}, v{xf}, v{xf}")
    for e in range(1, 8):
        g(f"v_fmac_f32 v{vT+1}, v{xf+e}, v{xf+e}")
    wavesum(vT + 1, sT1)
    g(f"""
    v_mov_b32 v{vT+1}, 0x3b000000
    v_mul_f32 v{vT+1}, s{sT1}, v{vT+1}
    v_cvt_pk_bf16_f32 v{vMB}, v{vT}, v{vT}
    v_lshlrev_b32 v{vMB}, 16, v{vMB}
    v_cvt_pk_bf16_f32 v{vT+1}, v{vT+1}, v{vT+1}
    v_lshlrev_b32 v{vT+1}, 16, v{vT+1}
    v_add_f32 v{vT+1}, 0x3727c5ac, v{vT+1}
    v_cvt_pk_bf16_f32 v{vT+1}, v{vT+1}, v{vT+1}
    v_lshlrev_b32 v{vT+1}, 16, v{vT+1}
    v_sqrt_f32 v{vT+1}, v{vT+1}
    s_nop 0
    v_cvt_pk_bf16_f32 v{vT+1}, v{vT+1}, v{vT+1}
    v_lshlrev_b32 v{vSD}, 16, v{vT+1}
    v_rcp_f32 v{vRS}, v{vSD}
    v_lshlrev_b32 v{vT+4}, 16, v{vXO}
    v_and_b32 v{vT+5}, 0xffff0000, v{vXO}
    """)

    def norm(dst, src):
        g(f"""
        v_sub_f32 v{src}, v{src}, v{vMB}
        v_cvt_pk_bf16_f32 v{src}, v{src}, v{src}
        v_lshlrev_b32 v{src}, 16, v{src}
        v_mul_f32 v{vT+2}, v{src}, v{vRS}
        v_fma_f32 v{vT+3}, -v{vT+2}, v{vSD}, v{src}
        v_fmac_f32 v{vT+2}, v{vT+3}, v{vRS}
        v_cvt_pk_bf16_f32 v{dst}, v{vT+2}, v{vT+2}
        """)

    norm(vX0, vT + 4)
    norm(vX1, vT + 5)
    for e in range(8):
        g(f"v_mov_b32 v{vACC+e}, 0")
    st(9)
    g.c("q partial: tile t=2c'+u rows k = 128j + 32s + t")
    mkA(vA, vX0, 0)
    for t in range(32):
        if t < 31:
            t1 = t + 1
            mkA(vA + 4 * (t1 & 1), vX1 if (t1 & 1) else vX0, t1 >> 1)
        g(f"s_waitcnt vmcnt({31-t})")
        if t == 0:
            st(10)
        g(f"v_mfma_f32_16x16x32_bf16 {vr(vACC)}, {vr(vA+4*(t&1))}, {vr(vW+4*t)}, {vr(vACC)}")
    st(11)
    g(f"""
    v_lshlrev_b32 v{vDL}, 5, v{vC}
    v_lshl_add_u32 v{vDL}, v{vS}, 4, v{vDL}
    s_lshl_b32 s{sT0}, s{sJ}, 9
    v_add_u32 v{vT}, s{sT0}, v{vDL}
    v_mov_b32 v{vT+1}, 0
    v_mov_b32 v{vT+2}, {L_CNT}
    s_nop 2
    s_mov_b64 exec, {sr(sLO32,2)}
    ds_write_b128 v{vT}, {vr(vACC)} offset:{L_QP}
    s_mov_b64 exec, -1
    ds_write_b32 v{vT+2}, v{vT+1}
    s_waitcnt lgkmcnt(0)
    s_barrier
    s_setprio {hprio2}
    """)
    st(13)
    g.c("w1 voffset: (128j + 32s + (c>>3))*2752 + (c0 + (c&7))*16, out of range if (c&7) >= nch")
    g(f"""
    v_lshrrev_b32 v{vT}, 3, v{vC}
    v_lshl_add_u32 v{vT}, v{vS}, 5, v{vT}
    s_lshl_b32 s{sT0}, s{sJ}, 7
    v_add_u32 v{vT}, s{sT0}, v{vT}
    v_mul_u32_u24 v{vT}, 2752, v{vT}
    v_and_b32 v{vT+1}, 7, v{vC}
    v_add_u32 v{vT+2}, s{sC0}, v{vT+1}
    v_lshl_add_u32 v{vOFF2}, v{vT+2}, 4, v{vT}
    v_cmp_gt_u32 vcc, s{sNCH}, v{vT+1}
    v_mov_b32 v{vT+3}, 0x40000000
    s_mov_b32 s{sOFF}, 0
    v_cndmask_b32 v{vOFF2}, v{vT+3}, v{vOFF2}, vcc
    """)
    srd(SRD_B, sW1, 0 if noffn else 512 * 2752)
    for u in range(16):
        if HD:
            g(f"s_waitcnt vmcnt({HD-1})")
        if not noffn:
            g(f"buffer_load_dwordx4 {vr(vW1+4*u)}, v{vOFF2}, {sr(SRD_B)}, s{sOFF} offen {wpol}")
        g(f"s_add_u32 s{sOFF}, s{sOFF}, {2*2752}")
    g.c("b1: lane (s,c) -> hidden unit 4c+s")
    vHI = 60
    g(f"""
    s_mov_b32 s{SRD_C}, s{sB1}
    s_mov_b32 s{SRD_C+1}, s{sB1+1}
    s_add_u32 s{sT1}, s{sC0}, s{sNCH}
    s_lshl_b32 s{SRD_C+2}, s{sT1}, 4
    s_mov_b32 s{SRD_C+3}, 0x20000
    v_lshl_add_u32 v{vHI}, v{vC}, 2, v{vS}
    s_lshl_b32 s{sT1}, s{sC0}, 4
    v_lshlrev_b32 v{vT+5}, 1, v{vHI}
    v_add_u32 v{vT+5}, s{sT1}, v{vT+5}
    buffer_load_ushort v{vB1}, v{vT+5}, {sr(SRD_C)}, 0 offen
    """)
    g.c("ffn hidden partial: tile u rows k = 128j + 32s + 2u + (c>>3)")
    for u in range(16):
        a = vA + 4 * (u & 1)
        tb = vTB + (u & 1)
        g(f"v_mov_b32_dpp v{tb}, v{vX0} row_newbcast:{u} row_mask:0xf bank_mask:0x3")
        g(f"v_mov_b32_dpp v{tb}, v{vX1} row_newbcast:{u} row_mask:0xf bank_mask:0xc")
        for t in range(4):
            g(f"v_and_b32 v{a+t}, v{tb}, v{vM2+t}")
        g(f"s_waitcnt vmcnt({16-u})")
        g("s_nop 0")
        g(f"v_mfma_f32_16x16x32_bf16 {vr(vACC2)}, {vr(a)}, {vr(vW1+4*u)}, {vr(vACC2)}")
    st(12)
    g.c("hidden halves to LDS: lanes (s'<2,c'<8) -> [0..64), lanes (s'>=2,c'>=8) -> [64..128)")
    g(f"""
    v_lshrrev_b32 v{vT}, 1, v{vS}
    v_lshrrev_b32 v{vT+1}, 3, v{vC}
    v_cmp_eq_u32 vcc, v{vT}, v{vT+1}
    v_lshlrev_b32 v{vT}, 8, v{vT}
    v_and_b32 v{vT+1}, 7, v{vC}
    v_lshl_add_u32 v{vT}, v{vT+1}, 5, v{vT}
    v_and_b32 v{vT+1}, 1, v{vS}
    v_lshl_add_u32 v{vT}, v{vT+1}, 4, v{vT}
    s_lshl_b32 s{sT0}, s{sJ}, 9
    v_add_u32 v{vT}, s{sT0}, v{vT}
    s_and_saveexec_b64 {sr(sEX,2)}, vcc
    ds_write_b128 v{vT}, {vr(vACC2)} offset:{L_HP}
    s_mov_b64 exec, 1
    v_mov_b32 v{vT+1}, 1
    v_mov_b32 v{vT+2}, {L_CNT}
    s_waitcnt lgkmcnt(0)
    ds_add_u32 v{vT+2}, v{vT+1}
    s_mov_b64 exec, -1
    """)
    g.c("w2 tile t: row = 8c0 + 4t + s, cols j*128 + 8c ; wo tile t=2c'+u: rows d = 32 s + t")
    g(f"""
    s_lshl_b32 s{sT0}, s{sC0}, 13
    s_lshl_b32 s{sT2}, s{sJ}, 8
    v_lshlrev_b32 v{vOFF2}, 10, v{vS}
    v_lshl_add_u32 v{vOFF2}, v{vC}, 4, v{vOFF2}
    v_add_u32 v{vOFF2}, s{sT0}, v{vOFF2}
    v_add_u32 v{vOFF2}, s{sT2}, v{vOFF2}
    s_mov_b32 s{SRD_B}, s{sW2}
    s_mov_b32 s{SRD_B+1}, s{sW2+1}
    s_lshl_b32 s{sT1}, s{sNCH}, 13
    s_add_u32 s{SRD_B+2}, s{sT0}, s{sT1}
    s_mov_b32 s{SRD_B+3}, 0x20000
    s_lshl_b32 s{sT0}, s{sH}, 17
    s_add_u32 s{sT0}, s{sT0}, s{sT2}
    v_lshlrev_b32 v{vOFF}, 15, v{vS}
    v_lshl_add_u32 v{vOFF}, v{vC}, 4, v{vOFF}
    v_add_u32 v{vOFF}, s{sT0}, v{vOFF}
    v_lshlrev_b32 v{vT+5}, 2, v{vHI}
    s_mov_b32 s{sOFF}, 0
    """)
    if noffn:
        g(f"s_mov_b32 s{SRD_B+2}, 0")
    srd(SRD_A, sWO, 0 if nowo else 0x400000)
    hp = 48
    for t in range(12):
        if HD:
            g(f"s_waitcnt vmcnt({HD-1})")
        if not noffn:
            g(f"buffer_load_dwordx4 {vr(vW1+4*t)}, v{vOFF2}, {sr(SRD_B)}, s{sOFF} offen {wpol}")
        g(f"s_add_u32 s{sOFF}, s{sOFF}, 4096")
    g(f"s_mov_b32 s{sOFF}, 0")
    for t in range(32):
        if HD:
            g(f"s_waitcnt vmcnt({HD-1})")
        if not nowo:
            g(f"buffer_load_dwordx4 {vr(vW+4*t)}, v{vOFF}, {sr(SRD_A)}, s{sOFF} offen offset:{1024*(t&3)} {wpol}")
        if (t & 3) == 3:
            g(f"s_add_u32 s{sOFF}, s{sOFF}, 4096")
    st(2)
    g(f"""
    v_mov_b32 v{vT+2}, {L_CNT}
    L_hwait:
    ds_read_b32 v{vT+1}, v{vT+2}
    s_waitcnt lgkmcnt(0)
    v_readfirstlane_b32 s{sT1}, v{vT+1}
    s_nop 3
    s_cmp_ge_u32 s{sT1}, 4
    s_cbranch_scc1 L_hdone
    s_sleep 2
    s_branch L_hwait
    L_hdone:
    """)
    for j in range(4):
        g(f"ds_read_b32 v{hp+2*j}, v{vT+5} offset:{L_HP+512*j}")
        g(f"ds_read_b32 v{hp+2*j+1}, v{vT+5} offset:{L_HP+512*j+256}")
    g(f"""
    s_waitcnt lgkmcnt(0)
    v_add_f32 v{hp}, v{hp}, v{hp+1}
    v_add_f32 v{hp+2}, v{hp+2}, v{hp+3}
    v_add_f32 v{hp+4}, v{hp+4}, v{hp+5}
    v_add_f32 v{hp+6}, v{hp+6}, v{hp+7}
    v_add_f32 v{hp}, v{hp}, v{hp+2}
    v_add_f32 v{hp+4}, v{hp+4}, v{hp+6}
    v_add_f32 v{vT}, v{hp}, v{hp+4}
    v_cvt_pk_bf16_f32 v{vT}, v{vT}, v{vT}
    v_lshlrev_b32 v{vT}, 16, v{vT}
    s_waitcnt vmcnt(44)
    v_lshlrev_b32 v{vB1}, 16, v{vB1}
    v_add_f32 v{vT}, v{vT}, v{vB1}
    v_cvt_pk_bf16_f32 v{vT}, v{vT}, v{vT}
    v_lshlrev_b32 v{vT}, 16, v{vT}
    v_cmp_lt_f32 vcc, 0, v{vT}
    s_lshl_b32 s{sT1}, s{sNCH}, 3
    v_cmp_gt_u32 {sr(sEX,2)}, s{sT1}, v{vHI}
    s_nop 1
    s_and_b64 vcc, vcc, {sr(sEX,2)}
    s_nop 1
    v_cndmask_b32 v{vT}, 0, v{vT}, vcc
    v_mul_f32 v{vT}, v{vT}, v{vT}
    v_cvt_pk_bf16_f32 v{vH}, v{vT}, v{vT}
    """)
    for e in range(4):
        g(f"v_mov_b32 v{vACC+e}, 0")
    for t in range(12):
        a = vA + 4 * (t & 1)
        mkA(a, vH, t)
        g(f"s_waitcnt vmcnt({43-t})")
        g("s_nop 0")
        g(f"v_mfma_f32_16x16x32_bf16 {vr(vACC)}, {vr(a)}, {vr(vW1+4*t)}, {vr(vACC)}")
    st(3)
    g.c("clearing duty: wave 4 of WG (b, 2jj) clears column block jj of all 32 slots of batch b")
    g(f"""
    s_and_b32 s{sT0}, s{sH}, 0x19
    {'s_branch L_noclear' if noproto else 's_cbranch_scc1 L_noclear'}
    s_cmp_lg_u32 s{sJ}, 0
    s_cbranch_scc1 L_noclear
    s_lshl_b32 s{sT0}, s{sB}, 16
    s_add_u32 s{SRD_C}, s{sWS}, s{sT0}
    s_addc_u32 s{SRD_C+1}, s{sWS+1}, 0
    s_mov_b32 s{SRD_C+2}, 0x10000
    s_mov_b32 s{SRD_C+3}, 0x20000
    s_lshr_b32 s{sT2}, s{sH}, 1
    s_lshl_b32 s{sT0}, s{sT2}, 9
    v_lshrrev_b32 v{vT}, 5, v{vLANE}
    v_lshlrev_b32 v{vT}, 11, v{vT}
    v_and_b32 v{vT+1}, 31, v{vLANE}
    v_lshl_add_u32 v{vT}, v{vT+1}, 4, v{vT}
    v_add_u32 v{vT}, s{sT0}, v{vT}
    v_mov_b32 v{vW1}, -1
    v_mov_b32 v{vW1+1}, -1
    v_mov_b32 v{vW1+2}, -1
    v_mov_b32 v{vW1+3}, -1
    s_mov_b32 s{sOFF}, 0
    """)
    for i in range(0 if noclr else 16):
        g(f"buffer_store_dwordx4 {vr(vW1)}, v{vT}, {sr(SRD_C)}, s{sOFF} offen sc1")
        g(f"s_add_u32 s{sOFF}, s{sOFF}, 4096")
    g(f"""
    s_lshl_b32 s{sT0}, s{sB}, 2
    s_add_u32 s{sT0}, s{sT0}, s{sT2}
    s_lshl_b32 s{sT0}, s{sT0}, 3
    v_mov_b32 v{vT}, s{sT0}
    v_mov_b32 v{vT+1}, 1
    s_waitcnt vmcnt(0)
    s_mov_b64 exec, 1
    {'' if noflag else f'global_store_dword v{vT}, v{vT+1}, {sr(sDBG,2)} sc1'}
    s_mov_b64 exec, -1
    L_noclear:
    """)
    g(f"""
    s_lshl_b32 s{sT0}, s{sB}, 2
    s_add_u32 s{sT0}, s{sT0}, s{sJ}
    s_lshl_b32 s{sT0}, s{sT0}, 3
    v_mov_b32 v{vT+3}, s{sT0}
    s_lshl_b32 s{sT0}, s{sJ}, 3
    v_mov_b32 v{vT+4}, s{sT0}
    s_waitcnt vmcnt(0)
    s_lshl_b32 s{sT0}, s2, 11
    s_lshl_b32 s{sT1}, s{sJ}, 9
    s_add_u32 s{sT0}, s{sT0}, s{sT1}
    v_add_u32 v{vPO}, s{sT0}, v{vDL}
    v_lshlrev_b32 v{vT}, 7, v{vS}
    v_lshl_add_u32 v{vT}, v{vC}, 3, v{vT}
    v_mov_b32 v{vT+1}, 0
    v_mov_b32 v{vT+2}, -2
    s_mov_b32 s{sT3}, 0x3fb8aa3b
    """)
    o = 64
    m = 72
    u = 80
    g.c("wait for the four (m, l, flag) records, softmax scale of each streamer partial")
    g(f"""
    v_mov_b32 v{u+7}, {L_CNT}
    s_mov_b32 s{sIT}, 0
    L_mwait:
    ds_read_b32 v{u+6}, v{u+7}
    s_add_u32 s{sIT}, s{sIT}, 1
    s_waitcnt lgkmcnt(0)
    v_readfirstlane_b32 s{sT1}, v{u+6}
    s_cmp_gt_u32 s{sIT}, 0x400000
    s_cbranch_scc1 L_mdone
    s_cmp_ge_u32 s{sT1}, 8
    s_cbranch_scc1 L_mdone
    s_sleep 4
    s_branch L_mwait
    L_mdone:
    ds_read_b128 v[{m}:{m+3}], v{vT+1} offset:{L_ML}
    ds_read_b128 v[{m+4}:{m+7}], v{vT+1} offset:{L_ML+16}
    ds_read_b32 v{vT+5}, v{vT+4} offset:{L_ML+32}
    s_waitcnt lgkmcnt(0)
    v_max3_f32 v{u}, v{m}, v{m+2}, v{m+4}
    v_max_f32 v{u}, v{u}, v{m+6}
    v_sub_f32 v{m}, v{m}, v{u}
    v_sub_f32 v{m+2}, v{m+2}, v{u}
    v_sub_f32 v{m+4}, v{m+4}, v{u}
    v_sub_f32 v{m+6}, v{m+6}, v{u}
    v_mul_f32 v{m}, s{sT3}, v{m}
    v_mul_f32 v{m+2}, s{sT3}, v{m+2}
    v_mul_f32 v{m+4}, s{sT3}, v{m+4}
    v_mul_f32 v{m+6}, s{sT3}, v{m+6}
    v_exp_f32 v{m}, v{m}
    v_exp_f32 v{m+2}, v{m+2}
    v_exp_f32 v{m+4}, v{m+4}
    v_exp_f32 v{m+6}, v{m+6}
    v_mul_f32 v{u+1}, v{m}, v{m+1}
    v_fmac_f32 v{u+1}, v{m+2}, v{m+3}
    v_fmac_f32 v{u+1}, v{m+4}, v{m+5}
    v_fmac_f32 v{u+1}, v{m+6}, v{m+7}
    v_rcp_f32 v{u+2}, v{u+1}
    v_readfirstlane_b32 s{sT1}, v{vT+5}
    v_fma_f32 v{u+3}, -v{u+1}, v{u+2}, 1.0
    v_fmac_f32 v{u+2}, v{u+3}, v{u+2}
    v_mul_f32 v{m}, v{m}, v{u+2}
    v_mul_f32 v{m+2}, v{m+2}, v{u+2}
    v_mul_f32 v{m+4}, v{m+4}, v{u+2}
    v_mul_f32 v{m+6}, v{m+6}, v{u+2}
    s_mov_b32 s{sIT}, 0
    s_cmp_lg_u32 s{sT1}, 0
    s_cbranch_scc1 L_fdone
    {'s_branch L_fdone' if noproto else ''}
    L_fwait:
    global_load_dword v{vT+5}, v{vT+3}, {sr(sDBG,2)} sc1
    s_add_u32 s{sIT}, s{sIT}, 1
    s_waitcnt vmcnt(0)
    v_readfirstlane_b32 s{sT1}, v{vT+5}
    s_cmp_gt_u32 s{sIT}, 0x40000
    s_cbranch_scc1 L_fdone
    s_cmp_lg_u32 s{sT1}, 0
    s_cbranch_scc1 L_fdone
    s_sleep 8
    s_branch L_fwait
    L_fdone:
    """)
    st(8)
    g("s_barrier")
    g.c("combine the 4 streamer partials")
    g(f"""
    ds_read_b64 v[{o}:{o+1}], v{vT} offset:{L_OP}
    ds_read_b64 v[{o+2}:{o+3}], v{vT} offset:{L_OP+512}
    ds_read_b64 v[{o+4}:{o+5}], v{vT} offset:{L_OP+1024}
    ds_read_b64 v[{o+6}:{o+7}], v{vT} offset:{L_OP+1536}
    s_waitcnt lgkmcnt(3)
    v_mul_f32 v{o}, v{m}, v{o}
    v_mul_f32 v{o+1}, v{m}, v{o+1}
    s_waitcnt lgkmcnt(2)
    v_fmac_f32 v{o}, v{m+2}, v{o+2}
    v_fmac_f32 v{o+1}, v{m+2}, v{o+3}
    s_waitcnt lgkmcnt(1)
    v_fmac_f32 v{o}, v{m+4}, v{o+4}
    v_fmac_f32 v{o+1}, v{m+4}, v{o+5}
    s_waitcnt lgkmcnt(0)
    v_fmac_f32 v{o}, v{m+6}, v{o+6}
    v_fmac_f32 v{o+1}, v{m+6}, v{o+7}
    v_cvt_pk_bf16_f32 v{vX0}, v{o}, v{o}
    v_cvt_pk_bf16_f32 v{vX1}, v{o+1}, v{o+1}
    s_nop 0
    """)
    mkA(vA, vX0, 0)
    for t in range(32):
        if t < 31:
            t1 = t + 1
            mkA(vA + 4 * (t1 & 1), vX1 if (t1 & 1) else vX0, t1 >> 1)
        else:
            g("s_nop 0")
        g(f"v_mfma_f32_16x16x32_bf16 {vr(vACC)}, {vr(vA+4*(t&1))}, {vr(vW+4*t)}, {vr(vACC)}")
    g(f"""
    s_nop 7
    v_min_u32 v{vACC}, v{vT+2}, v{vACC}
    v_min_u32 v{vACC+1}, v{vT+2}, v{vACC+1}
    v_min_u32 v{vACC+2}, v{vT+2}, v{vACC+2}
    v_min_u32 v{vACC+3}, v{vT+2}, v{vACC+3}
    s_mov_b64 exec, {sr(sLO32,2)}
    global_store_dwordx4 v{vPO}, {vr(vACC)}, {sr(sWS,2)} sc1
    s_mov_b64 exec, -1
    """)
    if stamps:
        st(1)
        st(4)
        emit_stamps(g, sST, 14, sWS, sWAVE, vT, sT0)
    g("""
    L_end:
    s_endpgm
    """)

    out = HEADER
    out += f"; @launch grid=(256,1,1) block=(512,1,1) lds={LDS}\n"
    out += f""".amdgcn_target "amdgcn-amd-amdhsa--gfx950"
.text
.globl {KNAME}
.p2align 8
.type {KNAME},@function
{KNAME}:
"""
    out += g.text()
    out += f""".section .rodata,"a"
.p2align 6
.amdhsa_kernel {KNAME}
  .amdhsa_next_free_vgpr 256
  .amdhsa_next_free_sgpr 102
  .amdhsa_accum_offset 256
  .amdhsa_group_segment_fixed_size 0
  .amdhsa_kernarg_size 104
  .amdhsa_user_sgpr_count 2
  .amdhsa_user_sgpr_kernarg_segment_ptr 1
  .amdhsa_system_sgpr_workgroup_id_x 1
  .amdhsa_float_denorm_mode_32 3
.end_amdhsa_kernel
"""
    return out


def emit_stamps(g, sST, n, sWS, sWAVE, vT, sT0):
    g(f"""
    s_lshl_b32 s{sT0}, s2, 3
    s_add_u32 s{sT0}, s{sT0}, s{sWAVE}
    s_lshl_b32 s{sT0}, s{sT0}, 7
    s_add_u32 s{sT0}, s{sT0}, 0x1000000
    v_mov_b32 v{vT}, s{sT0}
    s_getreg_b32 s{sT0}, hwreg(HW_REG_XCC_ID)
    s_waitcnt lgkmcnt(0)
    s_mov_b64 exec, 1
    """)
    for k in range(n):
        g(f"v_mov_b32 v{vT+1}, s{sST+2*k}")
        g(f"global_store_dword v{vT}, v{vT+1}, {sr(sWS,2)} offset:{4*k}")
    g(f"v_mov_b32 v{vT+1}, s{sT0}")
    g(f"global_store_dword v{vT}, v{vT+1}, {sr(sWS,2)} offset:64")
    g("s_mov_b64 exec, -1")


if __name__ == "__main__":
    out = sys.argv[1] if len(sys.argv) > 1 else "cdna_kernels/" + NAME + ".s"
    kw = {}
    for a in sys.argv[2:]:
        k, v = a.split("=")
        kw[k] = eval(v)
    open(out, "w").write(gen(**kw))
    print("wrote", out)
```

```python
import sys, os

NAME = "parallel_sum__gqa_block_cached__dense_activation_squared_relu__decode"
KNAME = NAME + "_kernel"
HEADER = open("cdna_kernels/" + NAME + ".s.ref").read().split("; Override launch")[0]


DOC = r'''; ---------------------------------------------------------------------------------------------
; ---------------------------------------------------------------------------------------------
'''


class G:
    def __init__(self):
        self.L = []

    def __call__(self, s):
        for line in s.strip("\n").split("\n"):
            t = line.strip()
            if not t:
                continue
            self.L.append(t if t.endswith(":") else "  " + t)

    def c(self, s):
        self.L.append("  ; " + s)

    def text(self):
        return "\n".join(self.L) + "\n"


def vr(b, n=4):
    return f"v[{b}:{b+n-1}]"


def sr(b, n=4):
    return f"s[{b}:{b+n-1}]"


def gen(R=48, DS=5, stamps=False, pol="nt", wpol="", hprio=0, hprio2=0, D0=6, slp=64, DK1=0, NK1=0, DV=0, alt=False, noproto=False, early=False, DV2=16, NV2=1, pat=(0,), HD=2, HQ=0, b15=0, opol='', bk=0, bkn=64, noflag=False, noclr=False, noflrd=False, DH=6, DX=9, A0=8100, TA=2400, NA=10, TB=2200, F2=1.046, adapt=True, log=False, anchor=300, fmap=True, nocons=False,
        noffn=False, nowo=False, nowq=False):
    g = G()

    def st(k):
        if stamps:
            g(f"s_memrealtime s[{66+2*k}:{67+2*k}]")

    L_QP = 0
    L_HP = 2048
    L_OP = 4096
    L_ML = 6144
    L_CNT = 6400
    L_SC = 8192
    LDS = 8192 + 16384 + 256
    sX, sK, sV, sWQ, sWO, sBX, sW1, sB1 = 4, 6, 8, 10, 12, 14, 16, 18
    sW2, sB2, sOUT, sDBG, sWS = 20, 22, 24, 26, 28
    sWAVE, sB, sH = 30, 31, 3
    SRD_A, SRD_B, SRD_PF, SRD_C = 32, 36, 40, 44
    sOFF, sIT, sT0, sT1, sT2, sT3 = 48, 49, 50, 51, 52, 53
    sM, sC0, sNCH, sJ = 54, 55, 56, 57
    sMASKC1, sMASKC0, sEX = 58, 60, 62
    sLO32 = 64
    sST = 66
    vTID, vLANE, vS, vC = 0, 1, 2, 3
    vMASK = 4
    vOFF, vOFF2 = 8, 9
    vT = 10
    vA = 16
    vACC = 24
    vQ = 28
    vP = 32
    vMAX, vL, vPP, vSC, vLDS = 48, 49, 50, 51, 52
    vX = 56
    vRING = 256 - 4 * R
    assert vRING >= 64 and R % 16 == 0
    NL = 256
    NIT = NL // R
    NG = R // 16
    DSB = DS

    def mkA(dst, src, lane):
        for t in range(4):
            g(f"v_and_b32_dpp v{dst+t}, v{src}, v{vMASK+t} row_newbcast:{lane} row_mask:0xf bank_mask:0xf")

    def srd(d, base, size):
        g(f"""
        s_mov_b32 s{d}, s{base}
        s_mov_b32 s{d+1}, s{base+1}
        s_mov_b32 s{d+2}, {size}
        s_mov_b32 s{d+3}, 0x20000
        """)

    g(f"""
    s_cmp_ge_u32 s2, 256
    s_cbranch_scc1 L_end
    s_load_dwordx16 s[4:19], s[0:1], 0
    s_load_dwordx8 s[20:27], s[0:1], 64
    s_load_dwordx2 s[28:29], s[0:1], 96
    """)
    st(0)
    sCLK, sD1, sD2, sTA1, sTA2, sGC = 94, 96, 97, 98, 99, 100
    if adapt:
        g(f"s_memrealtime {sr(sCLK,2)}")
    g(f"""
    v_lshrrev_b32 v{vT}, 6, v{vTID}
    v_and_b32 v{vLANE}, 63, v{vTID}
    v_readfirstlane_b32 s{sWAVE}, v{vT}
    v_lshrrev_b32 v{vS}, 4, v{vLANE}
    v_and_b32 v{vC}, 15, v{vLANE}
    s_lshr_b32 s{sB}, s2, 5
    s_and_b32 s{sH}, s2, 31
    s_mov_b32 s{sLO32}, -1
    s_mov_b32 s{sLO32+1}, 0
    s_cmp_ge_u32 s{sWAVE}, 4
    s_cbranch_scc1 L_helper
    """)

    def masks(dst, full):
        g(f"""
        v_and_b32 v{vT}, 1, v{vC}
        v_lshlrev_b32 v{vT}, 4, v{vT}
        v_mov_b32 v{vT+1}, 0xffff
        v_lshlrev_b32 v{vT+1}, v{vT}, v{vT+1}
        """)
        if full:
            g(f"v_bfe_u32 v{vT+2}, v{vC}, 1, 2")
        else:
            g(f"v_lshrrev_b32 v{vT+2}, 1, v{vC}")
        for t in range(4):
            g(f"""
            v_cmp_eq_u32 vcc, {t}, v{vT+2}
            s_nop 1
            v_cndmask_b32 v{dst+t}, 0, v{vT+1}, vcc
            """)

    g.c("=========== streamer waves 0..3")
    g(f"""
    s_lshl_b32 s{sT0}, s{sWAVE}, {9 if b15 == 1 else 10}
    {f's_mul_i32 s{sT0}, s{sWAVE}, 0x4400' if b15 == 2 else ''}
    {f's_and_b32 s{sT0}, s{sT0}, 0x8400' if b15 == 2 else ''}
    v_lshlrev_b32 v{vOFF}, 4, v{vLANE}
    {f'v_and_b32 v{vOFF}, 0x1ff, v{vOFF}' if b15 == 1 else ''}
    {f'v_lshrrev_b32 v{vT+1}, 5, v{vLANE}' if b15 == 1 else ''}
    {f'v_lshl_add_u32 v{vOFF}, v{vT+1}, 15, v{vOFF}' if b15 == 1 else ''}
    v_add_u32 v{vOFF}, s{sT0}, v{vOFF}
    s_lshl_b32 s{sT1}, s2, 20
    s_mov_b32 s{sOFF}, 0
    s_mov_b32 s{SRD_PF+2}, 0x200000
    s_mov_b32 s{SRD_PF+3}, 0x20000
    s_waitcnt lgkmcnt(0)
    s_add_u32 s{SRD_PF}, s{sK}, s{sT1}
    s_addc_u32 s{SRD_PF+1}, s{sK+1}, 0
    """)

    def pf(b):
        g(f"buffer_load_dwordx4 {vr(vRING+4*b)}, v{vOFF}, {sr(SRD_PF)}, 0 offen {pol}")
        g(f"v_add_u32 v{vOFF}, {4096 if not b15 else (2048 if b % 16 < 15 else 2048 + 32768)}, v{vOFF}")

    lab = [0]

    def throttle(D, fixed):
        if fixed or not adapt:
            g(f"s_waitcnt vmcnt({D-1})")
            return
        lab[0] += 1
        g(f"""
        s_waitcnt vmcnt({DX-1})
        s_cbranch_scc1 L_t{lab[0]}
        s_waitcnt vmcnt({DH-1})
        s_cbranch_vccnz L_t{lab[0]}
        s_waitcnt vmcnt({D-1})
        L_t{lab[0]}:
        """)

    def decide():
        if not adapt:
            return
        if log:
            g(f"s_mov_b32 m0, s{sGC}")
            g(f"v_writelane_b32 v9, s{sCLK}, m0")
        g(f"""
        s_mul_i32 s{sT0}, s{sCLK}, 10
        s_sub_i32 s{sT1}, s{sT0}, s{sD1}
        s_sub_i32 s{sT0}, s{sT0}, s{sD2}
        s_add_u32 s{sGC}, s{sGC}, 1
        s_cmp_gt_u32 s{sGC}, {NA}
        s_cselect_b32 s{sTA1}, {TB}, s{sTA1}
        s_cselect_b32 s{sTA2}, {int(TB*F2)}, s{sTA2}
        s_add_u32 s{sD1}, s{sD1}, s{sTA1}
        s_add_u32 s{sD2}, s{sD2}, s{sTA2}
        s_cmp_gt_i32 s{sT1}, 0
        s_cselect_b64 vcc, -1, 0
        s_cmp_gt_i32 s{sT0}, 0
        """)

    st(5)
    if not D0:
        D0 = DS
    for b in range(D0):
        pf(b)
    g(f"""
    s_add_u32 s{SRD_B}, s{sV}, s{sT1}
    s_addc_u32 s{SRD_B+1}, s{sV+1}, 0
    s_sub_u32 s{SRD_B}, s{SRD_B}, 0x100000
    s_subb_u32 s{SRD_B+1}, s{SRD_B+1}, 0
    s_mul_i32 s{sD1}, s{sCLK}, 10
    s_add_u32 s{sD2}, s{sD1}, {int(A0*F2)}
    s_add_u32 s{sD1}, s{sD1}, {A0}
    s_mov_b32 s{sGC}, 0
    s_mov_b32 s{sTA1}, {TA}
    s_mov_b32 s{sTA2}, {int(TA*F2)}
    """)
    masks(vMASK, False)
    g(f"""
    v_and_b32 v{vT}, 2, v{vC}
    v_cmp_ne_u32 {sr(sMASKC1,2)}, 0, v{vT}
    v_and_b32 v{vT}, 1, v{vC}
    v_cmp_ne_u32 {sr(sMASKC0,2)}, 0, v{vT}
    v_mov_b32 v{vMAX}, 0xff800000
    v_mov_b32 v{vL}, 0
    s_lshl_b32 s{sT0}, s{sWAVE}, 12
    s_add_u32 s{sT0}, s{sT0}, {L_SC}
    v_lshlrev_b32 v{vLDS}, 2, v{vLANE}
    v_add_u32 v{vLDS}, s{sT0}, v{vLDS}
    v_lshlrev_b32 v{vT}, 5, v{vC}
    v_mov_b32 v{vACC}, 0
    v_mov_b32 v{vACC+1}, 0
    v_mov_b32 v{vACC+2}, 0
    v_mov_b32 v{vACC+3}, 0
    s_mov_b32 s{sIT}, 0
    s_mov_b32 s{sT3}, 0x3db504f3
    """)
    for b in range(D0, R):
        g(f"s_waitcnt vmcnt({D0-1})")
        pf(b)
    st(8)
    g("s_barrier")
    g.c("q = sum of 4 partials, lane (s,c) takes q[8c..8c+8)")
    tq = [vP, vP + 8, vA, vX]
    for j in range(4):
        g(f"ds_read_b128 {vr(tq[j])}, v{vT} offset:{L_QP+512*j}")
        g(f"ds_read_b128 {vr(tq[j]+4)}, v{vT} offset:{L_QP+512*j+16}")
    g("s_waitcnt lgkmcnt(4)")
    for e in range(8):
        g(f"v_add_f32 v{tq[0]+e}, v{tq[0]+e}, v{tq[1]+e}")
    g("s_waitcnt lgkmcnt(0)")
    if adapt:
        g(f"s_memrealtime {sr(sCLK,2)}")
    for e in range(8):
        g(f"v_add_f32 v{tq[2]+e}, v{tq[2]+e}, v{tq[3]+e}")
    for e in range(8):
        g(f"v_add_f32 v{tq[0]+e}, v{tq[0]+e}, v{tq[2]+e}")
    for t in range(4):
        g(f"v_cvt_pk_bf16_f32 v{vQ+t}, v{tq[0]+2*t}, v{tq[0]+2*t+1}")
    if anchor:
        g(f"""
        s_waitcnt lgkmcnt(0)
        s_mul_i32 s{sD1}, s{sCLK}, 10
        s_add_u32 s{sD2}, s{sD1}, {anchor+int(A0*(F2-1))}
        s_add_u32 s{sD1}, s{sD1}, {anchor}
        """)
    st(1)

    def kgroup(slot, ldsoff, DS=DS):
        g(f"""
        s_cmp_eq_u32 s{sIT}, {16-NG}
        s_cselect_b32 s{SRD_PF}, s{SRD_B}, s{SRD_PF}
        s_cselect_b32 s{SRD_PF+1}, s{SRD_B+1}, s{SRD_PF+1}
        s_add_u32 s{sIT}, s{sIT}, 1
        s_waitcnt lgkmcnt(0)
        """)
        decide()
        for j in range(16):
            b = slot * 16 + j
            rb = vRING + 4 * b
            if DS == R:
                g(f"s_waitcnt vmcnt({DS-1})")
            g(f"v_dot2_f32_bf16 v{vP+j}, v{rb}, v{vQ}, 0")
            for t in range(1, 4):
                g(f"v_dot2_f32_bf16 v{vP+j}, v{rb+t}, v{vQ+t}, v{vP+j}")
            throttle(DS, DS != DSB)
            pf(b)
        if adapt:
            g(f"s_memrealtime {sr(sCLK,2)}")
        g.c("transposing reduction over the 16 lanes of each row")
        g("s_nop 1")
        for j in range(8):
            g(f"v_add_f32_dpp v{vP+j}, v{vP+j}, v{vP+j} row_ror:8 row_mask:0xf bank_mask:0x3")
            g(f"v_add_f32_dpp v{vP+j}, v{vP+j+8}, v{vP+j+8} row_ror:8 row_mask:0xf bank_mask:0xc")
        for j in range(4):
            g(f"v_add_f32_dpp v{vP+j}, v{vP+j}, v{vP+j} row_half_mirror row_mask:0xf bank_mask:0x5")
            g(f"v_add_f32_dpp v{vP+j}, v{vP+j+4}, v{vP+j+4} row_half_mirror row_mask:0xf bank_mask:0xa")
        for j in range(4):
            g(f"v_add_f32_dpp v{vP+j}, v{vP+j}, v{vP+j} quad_perm:[2,3,0,1] row_mask:0xf bank_mask:0xf")
        g(f"v_cndmask_b32 v{vP+0}, v{vP+0}, v{vP+2}, {sr(sMASKC1,2)}")
        g(f"v_cndmask_b32 v{vP+1}, v{vP+1}, v{vP+3}, {sr(sMASKC1,2)}")
        g("s_nop 1")
        g(f"v_add_f32_dpp v{vP+0}, v{vP+0}, v{vP+0} quad_perm:[1,0,3,2] row_mask:0xf bank_mask:0xf")
        g(f"v_add_f32_dpp v{vP+1}, v{vP+1}, v{vP+1} quad_perm:[1,0,3,2] row_mask:0xf bank_mask:0xf")
        g(f"v_cndmask_b32 v{vP+0}, v{vP+0}, v{vP+1}, {sr(sMASKC0,2)}")
        g.c("score = bf16(bf16(q.k) * Dh^-0.5)")
        g(f"""
        v_cvt_pk_bf16_f32 v{vP+0}, v{vP+0}, v{vP+0}
        v_lshlrev_b32 v{vP+0}, 16, v{vP+0}
        v_mul_f32 v{vP+0}, s{sT3}, v{vP+0}
        v_cvt_pk_bf16_f32 v{vP+0}, v{vP+0}, v{vP+0}
        v_lshlrev_b32 v{vSC}, 16, v{vP+0}
        v_max_f32 v{vMAX}, v{vMAX}, v{vSC}
        ds_write_b32 v{vLDS}, v{vSC} offset:{ldsoff}
        """)

    nk = 16 // NG
    if NK1:
        g("L_kloop1:")
        for slot in range(NG):
            kgroup(slot, 256 * slot, DK1)
        g(f"""
        v_add_u32 v{vLDS}, {256*NG}, v{vLDS}
        s_cmp_lt_u32 s{sIT}, {NK1*NG}
        s_cbranch_scc1 L_kloop1
        """)
    g("L_kloop:")
    for slot in range(NG):
        kgroup(slot, 256 * slot)
    g(f"""
    v_add_u32 v{vLDS}, {256*NG}, v{vLDS}
    s_cmp_lt_u32 s{sIT}, {nk*NG}
    s_cbranch_scc1 L_kloop
    """)
    for r in range(16 - nk * NG):
        kgroup(r, 256 * r)
    g.c("wave max")
    g(f"""
    v_subrev_u32 v{vLDS}, {256*NG*nk}, v{vLDS}
    s_nop 0
    v_max_f32_dpp v{vMAX}, v{vMAX}, v{vMAX} row_ror:8 row_mask:0xf bank_mask:0xf
    s_nop 1
    v_max_f32_dpp v{vMAX}, v{vMAX}, v{vMAX} row_ror:4 row_mask:0xf bank_mask:0xf
    s_nop 1
    v_max_f32_dpp v{vMAX}, v{vMAX}, v{vMAX} row_ror:2 row_mask:0xf bank_mask:0xf
    s_nop 1
    v_max_f32_dpp v{vMAX}, v{vMAX}, v{vMAX} row_ror:1 row_mask:0xf bank_mask:0xf
    s_nop 1
    v_max_f32_dpp v{vMAX}, v{vMAX}, v{vMAX} row_bcast:15 row_mask:0xa bank_mask:0xf
    s_nop 1
    v_max_f32_dpp v{vMAX}, v{vMAX}, v{vMAX} row_bcast:31 row_mask:0xc bank_mask:0xf
    s_waitcnt lgkmcnt(0)
    ds_read_b32 v{vSC}, v{vLDS}
    v_readlane_b32 s{sM}, v{vMAX}, 63
    s_mov_b32 s{sT3}, 0x3fb8aa3b
    s_mov_b32 s{sIT}, 0
    """)
    st(2)

    def vgroup(slot, ldsoff, rem, DS=(DV or DS), vPP=vPP):
        if rem is None: g(f"""
        s_waitcnt lgkmcnt(0)
        v_subrev_f32 v{vT}, s{sM}, v{vSC}
        v_mul_f32 v{vT}, s{sT3}, v{vT}
        v_exp_f32 v{vT}, v{vT}
        ds_read_b32 v{vSC}, v{vLDS} offset:{ldsoff+256}
        v_add_f32 v{vL}, v{vL}, v{vT}
        v_cvt_pk_bf16_f32 v{vPP}, v{vT}, v{vT}
        s_nop 1
        """)
        if rem is None and DS == DSB:
            decide()
        mkA(vA, vPP, 0)
        for j in range(16):
            b = slot * 16 + j
            rb = vRING + 4 * b
            if j < 15:
                mkA(vA + 4 * ((j + 1) & 1), vPP, j + 1)
            else:
                g("s_nop 0")
            if rem is not None:
                if rem + 15 - j < max(DS, DX) + 2:
                    g(f"s_waitcnt vmcnt({rem+15-j})")
            elif DS == R:
                g(f"s_waitcnt vmcnt({DS-1})")
            g(f"v_mfma_f32_16x16x32_bf16 {vr(vACC)}, {vr(vA+4*(j&1))}, {vr(rb)}, {vr(vACC)}")
            if rem is None:
                throttle(DS, DS != DSB)
                pf(b)
                if adapt and j == 14:
                    g(f"s_memrealtime {sr(sCLK,2)}")

    s0 = 16 % NG
    nv = (16 - NG - NV2) // NG
    g("L_vloop:")
    for i in range(NG):
        vgroup((s0 + i) % NG, 256 * i, None)
    g(f"""
    v_add_u32 v{vLDS}, {256*NG}, v{vLDS}
    s_add_u32 s{sIT}, s{sIT}, 1
    s_cmp_lt_u32 s{sIT}, {nv}
    s_cbranch_scc1 L_vloop
    """)
    vFLG, vFLA = 53, 54
    vOA = 55
    for i, v in enumerate(range(nv * NG, 16)):
        if v == nv * NG:
            g.c("read the 'slots cleared' flag of column block w (checked by helper w)")
            g(f"""
            s_lshl_b32 s{sT0}, s{sB}, 2
            s_add_u32 s{sT0}, s{sT0}, s{sWAVE}
            s_lshl_b32 s{sT0}, s{sT0}, 3
            v_mov_b32 v{vFLA}, s{sT0}
            global_load_dword v{vFLG}, v{vFLA}, {sr(sDBG,2)} sc1
            s_bfe_u32 s{sT0}, s{sH}, 0x20001
            s_lshl_b32 s{sT0}, s{sT0}, 2
            s_add_u32 s{sT0}, s{sT0}, s{sWAVE}
            s_lshl_b32 s{sT0}, s{sT0}, 6
            v_and_b32 v{vT+1}, 7, v{vLANE}
            v_lshlrev_b32 v{vT+1}, 3, v{vT+1}
            v_add_u32 v{vT+1}, s{sT0}, v{vT+1}
            s_lshl_b32 s{sT0}, s{sB}, 10
            v_add_u32 v{vT+2}, s{sT0}, v{vT+1}
            global_load_dwordx2 v[{vX}:{vX+1}], v{vT+2}, {sr(sX,2)}
            global_load_dwordx2 v[{vX+2}:{vX+3}], v{vT+1}, {sr(sB2,2)}
            """)
            assert v < 16 - NG
        if v == 16 - NG:
            g.c("p of the last groups, final l ; publish (m, l, flag)")
            for k in range(1, NG):
                g(f"ds_read_b32 v{vP+k}, v{vLDS} offset:{256*(i+k)}")
            g(f"""
            s_waitcnt lgkmcnt(0)
            v_mov_b32 v{vP}, v{vSC}
            """)
            for k in range(NG):
                g(f"v_subrev_f32 v{vP+k}, s{sM}, v{vP+k}")
            for k in range(NG):
                g(f"v_mul_f32 v{vP+k}, s{sT3}, v{vP+k}")
            for k in range(NG):
                g(f"v_exp_f32 v{vP+k}, v{vP+k}")
            g("s_nop 0")
            for k in range(NG):
                g(f"v_add_f32 v{vL}, v{vL}, v{vP+k}")
            for k in range(NG):
                g(f"v_cvt_pk_bf16_f32 v{vP+k}, v{vP+k}, v{vP+k}")
            g(f"""
            v_add_f32_dpp v{vL}, v{vL}, v{vL} row_ror:8 row_mask:0xf bank_mask:0xf
            v_lshlrev_b32 v{vOA}, 5, v{vC}
            v_lshlrev_b32 v{vT+1}, 4, v{vS}
            v_add_f32_dpp v{vL}, v{vL}, v{vL} row_ror:4 row_mask:0xf bank_mask:0xf
            v_add_u32 v{vOA}, v{vOA}, v{vT+1}
            s_lshl_b32 s{sT0}, s{sWAVE}, 9
            v_add_f32_dpp v{vL}, v{vL}, v{vL} row_ror:2 row_mask:0xf bank_mask:0xf
            v_add_u32 v{vOA}, s{sT0}, v{vOA}
            s_lshl_b32 s{sT0}, s{sWAVE}, 3
            v_add_f32_dpp v{vL}, v{vL}, v{vL} row_ror:1 row_mask:0xf bank_mask:0xf
            v_mov_b32 v{vT+2}, s{sT0}
            v_mov_b32 v{vT+4}, s{sM}
            v_add_f32_dpp v{vL}, v{vL}, v{vL} row_bcast:15 row_mask:0xa bank_mask:0xf
            v_mov_b32 v{vT}, {L_CNT}
            v_mov_b32 v{vT+1}, 1
            v_add_f32_dpp v{vL}, v{vL}, v{vL} row_bcast:31 row_mask:0xc bank_mask:0xf
            s_waitcnt vmcnt(16)
            ds_write_b32 v{vT+2}, v{vFLG} offset:{L_ML+32}
            v_readlane_b32 s{sT1}, v{vL}, 63
            s_nop 1
            v_mov_b32 v{vT+5}, s{sT1}
            ds_write_b64 v{vT+2}, v[{vT+4}:{vT+5}] offset:{L_ML}
            s_waitcnt lgkmcnt(0)
            s_mov_b64 exec, 1
            ds_add_u32 v{vT}, v{vT+1}
            s_mov_b64 exec, -1
            s_nop 3
            """)
        last = v >= 16 - NG
        vgroup((s0 + v) % NG, 256 * i, 16 * (15 - v) if last else None,
               DV2 if (NV2 and v >= 16 - NG - NV2) else (DV or DS), vP + v - (16 - NG) if last else vPP)
    st(3)
    g.c("publish o partial")
    g(f"""
    s_nop 6
    s_mov_b64 exec, {sr(sLO32,2)}
    ds_write_b128 v{vOA}, {vr(vACC)} offset:{L_OP}
    s_mov_b64 exec, -1
    s_waitcnt lgkmcnt(0)
    s_barrier
    s_and_b32 s{sT0}, s{sH}, 0x19
    {'s_branch L_sdone' if (nocons or noproto) else 's_cbranch_scc1 L_sdone'}
    """)
    g.c("=========== consumer: wave w of WG (b, 2jj) reduces columns jj*128+32w .. +32 of batch b")
    vR = vRING
    g(f"""
    s_lshl_b32 s{sT0}, s{sB}, 16
    s_add_u32 s{SRD_C}, s{sWS}, s{sT0}
    s_addc_u32 s{SRD_C+1}, s{sWS+1}, 0
    s_mov_b32 s{SRD_C+2}, 0x10000
    s_mov_b32 s{SRD_C+3}, 0x20000
    s_lshr_b32 s{sT2}, s{sH}, 1
    s_lshl_b32 s{sT2}, s{sT2}, 2
    s_add_u32 s{sT2}, s{sT2}, s{sWAVE}
    v_lshrrev_b32 v{vT}, 3, v{vLANE}
    v_lshlrev_b32 v{vT}, 11, v{vT}
    v_and_b32 v{vT+1}, 7, v{vLANE}
    v_lshl_add_u32 v{vT}, v{vT+1}, 4, v{vT}
    s_lshl_b32 s{sT0}, s{sT2}, 7
    v_add_u32 v{vT}, s{sT0}, v{vT}
    s_lshl_b32 s{sT0}, s{sT2}, 6
    v_lshlrev_b32 v{vT+1}, 3, v{vT+1}
    v_add_u32 v{vT+1}, s{sT0}, v{vT+1}
    s_lshl_b32 s{sT0}, s{sB}, 10
    v_add_u32 v{vT+2}, s{sT0}, v{vT+1}
    s_mov_b32 s{sIT}, 0
    s_movk_i32 s{sT0}, 0x4000
    s_mov_b32 s{sT1}, 0x8000
    s_mov_b32 s{sT2}, 0xc000
    """)
    sMK = [58, 60, 62, 64]
    soffs = ["0", f"s{sT0}", f"s{sT1}", f"s{sT2}"]
    for i in range(4):
        g(f"s_mov_b64 {sr(sMK[i],2)}, -1")
    g.c("x + b2")
    g("s_waitcnt vmcnt(0)")
    for e in range(4):
        src_x = vX + (e >> 1)
        src_b = vX + 2 + (e >> 1)
        if e & 1:
            g(f"v_and_b32 v{vQ+e}, 0xffff0000, v{src_x}")
            g(f"v_and_b32 v{vR+9}, 0xffff0000, v{src_b}")
        else:
            g(f"v_lshlrev_b32 v{vQ+e}, 16, v{src_x}")
            g(f"v_lshlrev_b32 v{vR+9}, 16, v{src_b}")
        g(f"v_add_f32 v{vQ+e}, v{vQ+e}, v{vR+9}")
    g("L_poll:")
    for i in range(4):
        g(f"""
        s_mov_b64 exec, {sr(sMK[i],2)}
        s_cbranch_execz L_pk{i}
        buffer_load_dwordx4 {vr(vR+4*i)}, v{vT}, {sr(SRD_C)}, {soffs[i]} offen sc1
        L_pk{i}:
        """)
    g(f"""
    s_mov_b64 exec, -1
    s_add_u32 s{sIT}, s{sIT}, 1
    s_waitcnt vmcnt(0)
    """)
    for i in range(4):
        g(f"v_max3_u32 v{vA+i}, v{vR+4*i}, v{vR+4*i+1}, v{vR+4*i+2}")
        g(f"v_max_u32 v{vA+i}, v{vA+i}, v{vR+4*i+3}")
    for i in range(4):
        g(f"v_cmp_eq_u32 {sr(sMK[i],2)}, -1, v{vA+i}")
    g(f"""
    s_cmp_gt_u32 s{sIT}, 0x80000
    s_cbranch_scc1 L_pdone
    s_or_b64 vcc, {sr(sMK[0],2)}, {sr(sMK[1],2)}
    s_or_b64 vcc, vcc, {sr(sMK[2],2)}
    s_or_b64 vcc, vcc, {sr(sMK[3],2)}
    s_cbranch_scc0 L_pdone
    """)
    if bk:
        g(f"""
        s_bcnt1_i32_b64 s{sM}, {sr(sMK[0],2)}
        s_bcnt1_i32_b64 s{sT3}, {sr(sMK[1],2)}
        s_add_u32 s{sM}, s{sM}, s{sT3}
        s_bcnt1_i32_b64 s{sT3}, {sr(sMK[2],2)}
        s_add_u32 s{sM}, s{sM}, s{sT3}
        s_bcnt1_i32_b64 s{sT3}, {sr(sMK[3],2)}
        s_add_u32 s{sM}, s{sM}, s{sT3}
        s_cmp_lt_u32 s{sM}, {bkn}
        s_cbranch_scc1 L_poll
        s_sleep {bk}
        """)
    g(f"""
    s_branch L_poll
    L_pdone:
    """)
    for e in range(4):
        g(f"v_add_f32 v{vR+e}, v{vR+e}, v{vR+4+e}")
        g(f"v_add_f32 v{vR+8+e}, v{vR+8+e}, v{vR+12+e}")
    for e in range(4):
        g(f"v_add_f32 v{vR+e}, v{vR+e}, v{vR+8+e}")
    g("s_nop 1")
    for e in range(4):
        g(f"v_add_f32_dpp v{vR+e}, v{vR+e}, v{vR+e} row_ror:8 row_mask:0xf bank_mask:0xf")
    for op in ("v_permlane16_swap_b32", "v_permlane32_swap_b32"):
        for e in range(4):
            g(f"v_mov_b32 v{vR+4+e}, v{vR+e}")
        g("s_nop 1")
        for e in range(4):
            g(f"{op} v{vR+e}, v{vR+4+e}")
        g("s_nop 1")
        for e in range(4):
            g(f"v_add_f32 v{vR+e}, v{vR+e}, v{vR+4+e}")
    for e in range(4):
        g(f"v_add_f32 v{vR+e}, v{vR+e}, v{vQ+e}")
    g(f"""
    v_cvt_pk_bf16_f32 v{vR+10}, v{vR+0}, v{vR+1}
    v_cvt_pk_bf16_f32 v{vR+11}, v{vR+2}, v{vR+3}
    s_mov_b64 exec, 0xff
    global_store_dwordx2 v{vT+2}, v[{vR+10}:{vR+11}], {sr(sOUT,2)} {opol}
    s_mov_b64 exec, -1
    L_sdone:
    """)
    if log:
        g(f"""
        s_lshl_b32 s{sT0}, s2, 2
        s_add_u32 s{sT0}, s{sT0}, s{sWAVE}
        s_lshl_b32 s{sT0}, s{sT0}, 8
        s_add_u32 s{sT0}, s{sT0}, 0x3000000
        v_lshlrev_b32 v{vT}, 2, v{vLANE}
        v_add_u32 v{vT}, s{sT0}, v{vT}
        global_store_dword v{vT}, v9, {sr(sWS,2)}
        """)
    if stamps:
        st(4)
        emit_stamps(g, sST, 14, sWS, sWAVE, vT, sT0)
    g("s_endpgm")

    g.c("=========== helper waves 4..7")
    vACC2 = 28
    vM2 = 32
    vX0, vX1, vXO, vPO, vMB, vSD, vRS, vDL = 36, 37, 38, 39, 40, 41, 42, 43
    vTB, vB1, vH, vF = 44, 46, 47, 48
    xf = 48
    vW1 = 64
    vW = 128
    g(f"""
    L_helper:
    s_setprio {hprio}
    s_sub_u32 s{sJ}, s{sWAVE}, 4
    s_lshl_b32 s{sT0}, s{sB}, 10
    v_lshlrev_b32 v{vT}, 4, v{vLANE}
    v_add_u32 v{vT}, s{sT0}, v{vT}
    s_lshl_b32 s{sT1}, s{sJ}, 8
    s_add_u32 s{sT0}, s{sT0}, s{sT1}
    v_lshlrev_b32 v{vT+1}, 2, v{vLANE}
    v_add_u32 v{vT+1}, s{sT0}, v{vT+1}
    """)
    g.c("wq voffset = (128j + 32s)*8192 + h*256 + c*16")
    g(f"""
    s_lshl_b32 s{sT0}, s{sJ}, 20
    s_lshl_b32 s{sT1}, s{sH}, 8
    s_add_u32 s{sT0}, s{sT0}, s{sT1}
    v_lshlrev_b32 v{vOFF}, 18, v{vS}
    v_lshl_add_u32 v{vOFF}, v{vC}, 4, v{vOFF}
    v_add_u32 v{vOFF}, s{sT0}, v{vOFF}
    s_and_b32 s{sC0}, s{sH}, 7
    s_lshl_b32 s{sC0}, s{sC0}, 2
    s_lshr_b32 s{sT0}, s{sH}, 3
    s_or_b32 s{sC0}, s{sC0}, s{sT0}
    {'' if fmap else f's_mov_b32 s{sC0}, s{sH}'}
    s_mul_i32 s{sC0}, s{sC0}, 43
    s_add_u32 s{sT0}, s{sC0}, 43
    s_lshr_b32 s{sC0}, s{sC0}, 3
    s_lshr_b32 s{sT0}, s{sT0}, 3
    s_sub_u32 s{sNCH}, s{sT0}, s{sC0}
    s_mov_b32 s{sOFF}, 0
    s_waitcnt lgkmcnt(0)
    global_load_dwordx4 {vr(vX)}, v{vT}, {sr(sX,2)}
    global_load_dword v{vXO}, v{vT+1}, {sr(sX,2)}
    """)
    st(5)
    srd(SRD_A, sWQ, 0 if nowq else 0x400000)
    for t in range(32):
        if HQ and t >= HQ:
            g(f"s_waitcnt vmcnt({HQ-1})")
        if not nowq:
            g(f"buffer_load_dwordx4 {vr(vW+4*t)}, v{vOFF}, {sr(SRD_A)}, s{sOFF} offen {wpol}")
        g(f"s_add_u32 s{sOFF}, s{sOFF}, 8192")
    st(6)
    st(7)
    masks(vMASK, False)
    masks(vM2, True)
    g.c("layernorm statistics (whole row per wave)")
    g("s_waitcnt vmcnt(0)" if nowq else "s_waitcnt vmcnt(32)")
    st(8)
    for e in range(4):
        g(f"v_lshlrev_b32 v{xf+2*e}, 16, v{vX+e}")
        g(f"v_and_b32 v{xf+2*e+1}, 0xffff0000, v{vX+e}")
    g(f"""
    v_add_f32 v{vT}, v{xf}, v{xf+1}
    v_add_f32 v{vT+1}, v{xf+2}, v{xf+3}
    v_add_f32 v{vT+2}, v{xf+4}, v{xf+5}
    v_add_f32 v{vT+3}, v{xf+6}, v{xf+7}
    v_add_f32 v{vT}, v{vT}, v{vT+1}
    v_add_f32 v{vT+2}, v{vT+2}, v{vT+3}
    v_add_f32 v{vT}, v{vT}, v{vT+2}
    """)

    def wavesum(v, sdst):
        g(f"""
        s_nop 1
        v_add_f32_dpp v{v}, v{v}, v{v} row_ror:8 row_mask:0xf bank_mask:0xf
        s_nop 1
        v_add_f32_dpp v{v}, v{v}, v{v} row_ror:4 row_mask:0xf bank_mask:0xf
        s_nop 1
        v_add_f32_dpp v{v}, v{v}, v{v} row_ror:2 row_mask:0xf bank_mask:0xf
        s_nop 1
        v_add_f32_dpp v{v}, v{v}, v{v} row_ror:1 row_mask:0xf bank_mask:0xf
        s_nop 1
        v_add_f32_dpp v{v}, v{v}, v{v} row_bcast:15 row_mask:0xa bank_mask:0xf
        s_nop 1
        v_add_f32_dpp v{v}, v{v}, v{v} row_bcast:31 row_mask:0xc bank_mask:0xf
        s_nop 1
        v_readlane_b32 s{sdst}, v{v}, 63
        s_nop 1
        """)

    wavesum(vT, sT0)
    g(f"""
    v_mov_b32 v{vT}, 0x3b000000
    v_mul_f32 v{vT}, s{sT0}, v{vT}
    """)
    for e in range(8):
        g(f"v_sub_f32 v{xf+e}, v{xf+e}, v{vT}")
    g(f"v_mul_f32 v{vT+1}, v{xf}, v{xf}")
    for e in range(1, 8):
        g(f"v_fmac_f32 v{vT+1}, v{xf+e}, v{xf+e}")
    wavesum(vT + 1, sT1)
    g(f"""
    v_mov_b32 v{vT+1}, 0x3b000000
    v_mul_f32 v{vT+1}, s{sT1}, v{vT+1}
    v_cvt_pk_bf16_f32 v{vMB}, v{vT}, v{vT}
    v_lshlrev_b32 v{vMB}, 16, v{vMB}
    v_cvt_pk_bf16_f32 v{vT+1}, v{vT+1}, v{vT+1}
    v_lshlrev_b32 v{vT+1}, 16, v{vT+1}
    v_add_f32 v{vT+1}, 0x3727c5ac, v{vT+1}
    v_cvt_pk_bf16_f32 v{vT+1}, v{vT+1}, v{vT+1}
    v_lshlrev_b32 v{vT+1}, 16, v{vT+1}
    v_sqrt_f32 v{vT+1}, v{vT+1}
    s_nop 0
    v_cvt_pk_bf16_f32 v{vT+1}, v{vT+1}, v{vT+1}
    v_lshlrev_b32 v{vSD}, 16, v{vT+1}
    v_rcp_f32 v{vRS}, v{vSD}
    v_lshlrev_b32 v{vT+4}, 16, v{vXO}
    v_and_b32 v{vT+5}, 0xffff0000, v{vXO}
    """)

    def norm(dst, src):
        g(f"""
        v_sub_f32 v{src}, v{src}, v{vMB}
        v_cvt_pk_bf16_f32 v{src}, v{src}, v{src}
        v_lshlrev_b32 v{src}, 16, v{src}
        v_mul_f32 v{vT+2}, v{src}, v{vRS}
        v_fma_f32 v{vT+3}, -v{vT+2}, v{vSD}, v{src}
        v_fmac_f32 v{vT+2}, v{vT+3}, v{vRS}
        v_cvt_pk_bf16_f32 v{dst}, v{vT+2}, v{vT+2}
        """)

    norm(vX0, vT + 4)
    norm(vX1, vT + 5)
    for e in range(8):
        g(f"v_mov_b32 v{vACC+e}, 0")
    st(9)
    g.c("q partial: tile t=2c'+u rows k = 128j + 32s + t")
    mkA(vA, vX0, 0)
    for t in range(32):
        if t < 31:
            t1 = t + 1
            mkA(vA + 4 * (t1 & 1), vX1 if (t1 & 1) else vX0, t1 >> 1)
        g(f"s_waitcnt vmcnt({31-t})")
        if t == 0:
            st(10)
        g(f"v_mfma_f32_16x16x32_bf16 {vr(vACC)}, {vr(vA+4*(t&1))}, {vr(vW+4*t)}, {vr(vACC)}")
    st(11)
    g(f"""
    v_lshlrev_b32 v{vDL}, 5, v{vC}
    v_lshl_add_u32 v{vDL}, v{vS}, 4, v{vDL}
    s_lshl_b32 s{sT0}, s{sJ}, 9
    v_add_u32 v{vT}, s{sT0}, v{vDL}
    v_mov_b32 v{vT+1}, 0
    v_mov_b32 v{vT+2}, {L_CNT}
    s_nop 2
    s_mov_b64 exec, {sr(sLO32,2)}
    ds_write_b128 v{vT}, {vr(vACC)} offset:{L_QP}
    s_mov_b64 exec, -1
    ds_write_b32 v{vT+2}, v{vT+1}
    s_waitcnt lgkmcnt(0)
    s_barrier
    s_setprio {hprio2}
    """)
    st(13)
    g.c("w1 voffset: (128j + 32s + (c>>3))*2752 + (c0 + (c&7))*16, out of range if (c&7) >= nch")
    g(f"""
    v_lshrrev_b32 v{vT}, 3, v{vC}
    v_lshl_add_u32 v{vT}, v{vS}, 5, v{vT}
    s_lshl_b32 s{sT0}, s{sJ}, 7
    v_add_u32 v{vT}, s{sT0}, v{vT}
    v_mul_u32_u24 v{vT}, 2752, v{vT}
    v_and_b32 v{vT+1}, 7, v{vC}
    v_add_u32 v{vT+2}, s{sC0}, v{vT+1}
    v_lshl_add_u32 v{vOFF2}, v{vT+2}, 4, v{vT}
    v_cmp_gt_u32 vcc, s{sNCH}, v{vT+1}
    v_mov_b32 v{vT+3}, 0x40000000
    s_mov_b32 s{sOFF}, 0
    v_cndmask_b32 v{vOFF2}, v{vT+3}, v{vOFF2}, vcc
    """)
    srd(SRD_B, sW1, 0 if noffn else 512 * 2752)
    for u in range(16):
        if HD:
            g(f"s_waitcnt vmcnt({HD-1})")
        if not noffn:
            g(f"buffer_load_dwordx4 {vr(vW1+4*u)}, v{vOFF2}, {sr(SRD_B)}, s{sOFF} offen {wpol}")
        g(f"s_add_u32 s{sOFF}, s{sOFF}, {2*2752}")
    g.c("b1: lane (s,c) -> hidden unit 4c+s")
    vHI = 60
    g(f"""
    s_mov_b32 s{SRD_C}, s{sB1}
    s_mov_b32 s{SRD_C+1}, s{sB1+1}
    s_add_u32 s{sT1}, s{sC0}, s{sNCH}
    s_lshl_b32 s{SRD_C+2}, s{sT1}, 4
    s_mov_b32 s{SRD_C+3}, 0x20000
    v_lshl_add_u32 v{vHI}, v{vC}, 2, v{vS}
    s_lshl_b32 s{sT1}, s{sC0}, 4
    v_lshlrev_b32 v{vT+5}, 1, v{vHI}
    v_add_u32 v{vT+5}, s{sT1}, v{vT+5}
    buffer_load_ushort v{vB1}, v{vT+5}, {sr(SRD_C)}, 0 offen
    """)
    g.c("ffn hidden partial: tile u rows k = 128j + 32s + 2u + (c>>3)")
    for u in range(16):
        a = vA + 4 * (u & 1)
        tb = vTB + (u & 1)
        g(f"v_mov_b32_dpp v{tb}, v{vX0} row_newbcast:{u} row_mask:0xf bank_mask:0x3")
        g(f"v_mov_b32_dpp v{tb}, v{vX1} row_newbcast:{u} row_mask:0xf bank_mask:0xc")
        for t in range(4):
            g(f"v_and_b32 v{a+t}, v{tb}, v{vM2+t}")
        g(f"s_waitcnt vmcnt({16-u})")
        g("s_nop 0")
        g(f"v_mfma_f32_16x16x32_bf16 {vr(vACC2)}, {vr(a)}, {vr(vW1+4*u)}, {vr(vACC2)}")
    st(12)
    g.c("hidden halves to LDS: lanes (s'<2,c'<8) -> [0..64), lanes (s'>=2,c'>=8) -> [64..128)")
    g(f"""
    v_lshrrev_b32 v{vT}, 1, v{vS}
    v_lshrrev_b32 v{vT+1}, 3, v{vC}
    v_cmp_eq_u32 vcc, v{vT}, v{vT+1}
    v_lshlrev_b32 v{vT}, 8, v{vT}
    v_and_b32 v{vT+1}, 7, v{vC}
    v_lshl_add_u32 v{vT}, v{vT+1}, 5, v{vT}
    v_and_b32 v{vT+1}, 1, v{vS}
    v_lshl_add_u32 v{vT}, v{vT+1}, 4, v{vT}
    s_lshl_b32 s{sT0}, s{sJ}, 9
    v_add_u32 v{vT}, s{sT0}, v{vT}
    s_and_saveexec_b64 {sr(sEX,2)}, vcc
    ds_write_b128 v{vT}, {vr(vACC2)} offset:{L_HP}
    s_mov_b64 exec, 1
    v_mov_b32 v{vT+1}, 1
    v_mov_b32 v{vT+2}, {L_CNT}
    s_waitcnt lgkmcnt(0)
    ds_add_u32 v{vT+2}, v{vT+1}
    s_mov_b64 exec, -1
    """)
    g.c("w2 tile t: row = 8c0 + 4t + s, cols j*128 + 8c ; wo tile t=2c'+u: rows d = 32 s + t")
    g(f"""
    s_lshl_b32 s{sT0}, s{sC0}, 13
    s_lshl_b32 s{sT2}, s{sJ}, 8
    v_lshlrev_b32 v{vOFF2}, 10, v{vS}
    v_lshl_add_u32 v{vOFF2}, v{vC}, 4, v{vOFF2}
    v_add_u32 v{vOFF2}, s{sT0}, v{vOFF2}
    v_add_u32 v{vOFF2}, s{sT2}, v{vOFF2}
    s_mov_b32 s{SRD_B}, s{sW2}
    s_mov_b32 s{SRD_B+1}, s{sW2+1}
    s_lshl_b32 s{sT1}, s{sNCH}, 13
    s_add_u32 s{SRD_B+2}, s{sT0}, s{sT1}
    s_mov_b32 s{SRD_B+3}, 0x20000
    s_lshl_b32 s{sT0}, s{sH}, 17
    s_add_u32 s{sT0}, s{sT0}, s{sT2}
    v_lshlrev_b32 v{vOFF}, 15, v{vS}
    v_lshl_add_u32 v{vOFF}, v{vC}, 4, v{vOFF}
    v_add_u32 v{vOFF}, s{sT0}, v{vOFF}
    v_lshlrev_b32 v{vT+5}, 2, v{vHI}
    s_mov_b32 s{sOFF}, 0
    """)
    if noffn:
        g(f"s_mov_b32 s{SRD_B+2}, 0")
    srd(SRD_A, sWO, 0 if nowo else 0x400000)
    hp = 48
    for t in range(12):
        if HD:
            g(f"s_waitcnt vmcnt({HD-1})")
        if not noffn:
            g(f"buffer_load_dwordx4 {vr(vW1+4*t)}, v{vOFF2}, {sr(SRD_B)}, s{sOFF} offen {wpol}")
        g(f"s_add_u32 s{sOFF}, s{sOFF}, 4096")
    g(f"s_mov_b32 s{sOFF}, 0")
    for t in range(32):
        if HD:
            g(f"s_waitcnt vmcnt({HD-1})")
        if not nowo:
            g(f"buffer_load_dwordx4 {vr(vW+4*t)}, v{vOFF}, {sr(SRD_A)}, s{sOFF} offen offset:{1024*(t&3)} {wpol}")
        if (t & 3) == 3:
            g(f"s_add_u32 s{sOFF}, s{sOFF}, 4096")
    st(2)
    g(f"""
    v_mov_b32 v{vT+2}, {L_CNT}
    L_hwait:
    ds_read_b32 v{vT+1}, v{vT+2}
    s_waitcnt lgkmcnt(0)
    v_readfirstlane_b32 s{sT1}, v{vT+1}
    s_nop 3
    s_cmp_ge_u32 s{sT1}, 4
    s_cbranch_scc1 L_hdone
    s_sleep 2
    s_branch L_hwait
    L_hdone:
    """)
    for j in range(4):
        g(f"ds_read_b32 v{hp+2*j}, v{vT+5} offset:{L_HP+512*j}")
        g(f"ds_read_b32 v{hp+2*j+1}, v{vT+5} offset:{L_HP+512*j+256}")
    g(f"""
    s_waitcnt lgkmcnt(0)
    v_add_f32 v{hp}, v{hp}, v{hp+1}
    v_add_f32 v{hp+2}, v{hp+2}, v{hp+3}
    v_add_f32 v{hp+4}, v{hp+4}, v{hp+5}
    v_add_f32 v{hp+6}, v{hp+6}, v{hp+7}
    v_add_f32 v{hp}, v{hp}, v{hp+2}
    v_add_f32 v{hp+4}, v{hp+4}, v{hp+6}
    v_add_f32 v{vT}, v{hp}, v{hp+4}
    v_cvt_pk_bf16_f32 v{vT}, v{vT}, v{vT}
    v_lshlrev_b32 v{vT}, 16, v{vT}
    s_waitcnt vmcnt(44)
    v_lshlrev_b32 v{vB1}, 16, v{vB1}
    v_add_f32 v{vT}, v{vT}, v{vB1}
    v_cvt_pk_bf16_f32 v{vT}, v{vT}, v{vT}
    v_lshlrev_b32 v{vT}, 16, v{vT}
    v_cmp_lt_f32 vcc, 0, v{vT}
    s_lshl_b32 s{sT1}, s{sNCH}, 3
    v_cmp_gt_u32 {sr(sEX,2)}, s{sT1}, v{vHI}
    s_nop 1
    s_and_b64 vcc, vcc, {sr(sEX,2)}
    s_nop 1
    v_cndmask_b32 v{vT}, 0, v{vT}, vcc
    v_mul_f32 v{vT}, v{vT}, v{vT}
    v_cvt_pk_bf16_f32 v{vH}, v{vT}, v{vT}
    """)
    for e in range(4):
        g(f"v_mov_b32 v{vACC+e}, 0")
    for t in range(12):
        a = vA + 4 * (t & 1)
        mkA(a, vH, t)
        g(f"s_waitcnt vmcnt({43-t})")
        g("s_nop 0")
        g(f"v_mfma_f32_16x16x32_bf16 {vr(vACC)}, {vr(a)}, {vr(vW1+4*t)}, {vr(vACC)}")
    st(3)
    g.c("clearing duty: wave 4 of WG (b, 2jj) clears column block jj of all 32 slots of batch b")
    g(f"""
    s_and_b32 s{sT0}, s{sH}, 0x19
    {'s_branch L_noclear' if noproto else 's_cbranch_scc1 L_noclear'}
    s_cmp_lg_u32 s{sJ}, 0
    s_cbranch_scc1 L_noclear
    s_lshl_b32 s{sT0}, s{sB}, 16
    s_add_u32 s{SRD_C}, s{sWS}, s{sT0}
    s_addc_u32 s{SRD_C+1}, s{sWS+1}, 0
    s_mov_b32 s{SRD_C+2}, 0x10000
    s_mov_b32 s{SRD_C+3}, 0x20000
    s_lshr_b32 s{sT2}, s{sH}, 1
    s_lshl_b32 s{sT0}, s{sT2}, 9
    v_lshrrev_b32 v{vT}, 5, v{vLANE}
    v_lshlrev_b32 v{vT}, 11, v{vT}
    v_and_b32 v{vT+1}, 31, v{vLANE}
    v_lshl_add_u32 v{vT}, v{vT+1}, 4, v{vT}
    v_add_u32 v{vT}, s{sT0}, v{vT}
    v_mov_b32 v{vW1}, -1
    v_mov_b32 v{vW1+1}, -1
    v_mov_b32 v{vW1+2}, -1
    v_mov_b32 v{vW1+3}, -1
    s_mov_b32 s{sOFF}, 0
    """)
    for i in range(0 if noclr else 16):
        g(f"buffer_store_dwordx4 {vr(vW1)}, v{vT}, {sr(SRD_C)}, s{sOFF} offen sc1")
        g(f"s_add_u32 s{sOFF}, s{sOFF}, 4096")
    g(f"""
    s_lshl_b32 s{sT0}, s{sB}, 2
    s_add_u32 s{sT0}, s{sT0}, s{sT2}
    s_lshl_b32 s{sT0}, s{sT0}, 3
    v_mov_b32 v{vT}, s{sT0}
    v_mov_b32 v{vT+1}, 1
    s_waitcnt vmcnt(0)
    s_mov_b64 exec, 1
    {'' if noflag else f'global_store_dword v{vT}, v{vT+1}, {sr(sDBG,2)} sc1'}
    s_mov_b64 exec, -1
    L_noclear:
    """)
    g(f"""
    s_lshl_b32 s{sT0}, s{sB}, 2
    s_add_u32 s{sT0}, s{sT0}, s{sJ}
    s_lshl_b32 s{sT0}, s{sT0}, 3
    v_mov_b32 v{vT+3}, s{sT0}
    s_lshl_b32 s{sT0}, s{sJ}, 3
    v_mov_b32 v{vT+4}, s{sT0}
    s_waitcnt vmcnt(0)
    s_lshl_b32 s{sT0}, s2, 11
    s_lshl_b32 s{sT1}, s{sJ}, 9
    s_add_u32 s{sT0}, s{sT0}, s{sT1}
    v_add_u32 v{vPO}, s{sT0}, v{vDL}
    v_lshlrev_b32 v{vT}, 7, v{vS}
    v_lshl_add_u32 v{vT}, v{vC}, 3, v{vT}
    v_mov_b32 v{vT+1}, 0
    v_mov_b32 v{vT+2}, -2
    s_mov_b32 s{sT3}, 0x3fb8aa3b
    """)
    o = 64
    m = 72
    u = 80
    g.c("wait for the four (m, l, flag) records, softmax scale of each streamer partial")
    g(f"""
    v_mov_b32 v{u+7}, {L_CNT}
    s_mov_b32 s{sIT}, 0
    L_mwait:
    ds_read_b32 v{u+6}, v{u+7}
    s_add_u32 s{sIT}, s{sIT}, 1
    s_waitcnt lgkmcnt(0)
    v_readfirstlane_b32 s{sT1}, v{u+6}
    s_cmp_gt_u32 s{sIT}, 0x400000
    s_cbranch_scc1 L_mdone
    s_cmp_ge_u32 s{sT1}, 8
    s_cbranch_scc1 L_mdone
    s_sleep 4
    s_branch L_mwait
    L_mdone:
    ds_read_b128 v[{m}:{m+3}], v{vT+1} offset:{L_ML}
    ds_read_b128 v[{m+4}:{m+7}], v{vT+1} offset:{L_ML+16}
    ds_read_b32 v{vT+5}, v{vT+4} offset:{L_ML+32}
    s_waitcnt lgkmcnt(0)
    v_max3_f32 v{u}, v{m}, v{m+2}, v{m+4}
    v_max_f32 v{u}, v{u}, v{m+6}
    v_sub_f32 v{m}, v{m}, v{u}
    v_sub_f32 v{m+2}, v{m+2}, v{u}
    v_sub_f32 v{m+4}, v{m+4}, v{u}
    v_sub_f32 v{m+6}, v{m+6}, v{u}
    v_mul_f32 v{m}, s{sT3}, v{m}
    v_mul_f32 v{m+2}, s{sT3}, v{m+2}
    v_mul_f32 v{m+4}, s{sT3}, v{m+4}
    v_mul_f32 v{m+6}, s{sT3}, v{m+6}
    v_exp_f32 v{m}, v{m}
    v_exp_f32 v{m+2}, v{m+2}
    v_exp_f32 v{m+4}, v{m+4}
    v_exp_f32 v{m+6}, v{m+6}
    v_mul_f32 v{u+1}, v{m}, v{m+1}
    v_fmac_f32 v{u+1}, v{m+2}, v{m+3}
    v_fmac_f32 v{u+1}, v{m+4}, v{m+5}
    v_fmac_f32 v{u+1}, v{m+6}, v{m+7}
    v_rcp_f32 v{u+2}, v{u+1}
    v_readfirstlane_b32 s{sT1}, v{vT+5}
    v_fma_f32 v{u+3}, -v{u+1}, v{u+2}, 1.0
    v_fmac_f32 v{u+2}, v{u+3}, v{u+2}
    v_mul_f32 v{m}, v{m}, v{u+2}
    v_mul_f32 v{m+2}, v{m+2}, v{u+2}
    v_mul_f32 v{m+4}, v{m+4}, v{u+2}
    v_mul_f32 v{m+6}, v{m+6}, v{u+2}
    s_mov_b32 s{sIT}, 0
    s_cmp_lg_u32 s{sT1}, 0
    s_cbranch_scc1 L_fdone
    {'s_branch L_fdone' if noproto else ''}
    L_fwait:
    global_load_dword v{vT+5}, v{vT+3}, {sr(sDBG,2)} sc1
    s_add_u32 s{sIT}, s{sIT}, 1
    s_waitcnt vmcnt(0)
    v_readfirstlane_b32 s{sT1}, v{vT+5}
    s_cmp_gt_u32 s{sIT}, 0x40000
    s_cbranch_scc1 L_fdone
    s_cmp_lg_u32 s{sT1}, 0
    s_cbranch_scc1 L_fdone
    s_sleep 8
    s_branch L_fwait
    L_fdone:
    """)
    st(8)
    g("s_barrier")
    g.c("combine the 4 streamer partials")
    g(f"""
    ds_read_b64 v[{o}:{o+1}], v{vT} offset:{L_OP}
    ds_read_b64 v[{o+2}:{o+3}], v{vT} offset:{L_OP+512}
    ds_read_b64 v[{o+4}:{o+5}], v{vT} offset:{L_OP+1024}
    ds_read_b64 v[{o+6}:{o+7}], v{vT} offset:{L_OP+1536}
    s_waitcnt lgkmcnt(3)
    v_mul_f32 v{o}, v{m}, v{o}
    v_mul_f32 v{o+1}, v{m}, v{o+1}
    s_waitcnt lgkmcnt(2)
    v_fmac_f32 v{o}, v{m+2}, v{o+2}
    v_fmac_f32 v{o+1}, v{m+2}, v{o+3}
    s_waitcnt lgkmcnt(1)
    v_fmac_f32 v{o}, v{m+4}, v{o+4}
    v_fmac_f32 v{o+1}, v{m+4}, v{o+5}
    s_waitcnt lgkmcnt(0)
    v_fmac_f32 v{o}, v{m+6}, v{o+6}
    v_fmac_f32 v{o+1}, v{m+6}, v{o+7}
    v_cvt_pk_bf16_f32 v{vX0}, v{o}, v{o}
    v_cvt_pk_bf16_f32 v{vX1}, v{o+1}, v{o+1}
    s_nop 0
    """)
    mkA(vA, vX0, 0)
    for t in range(32):
        if t < 31:
            t1 = t + 1
            mkA(vA + 4 * (t1 & 1), vX1 if (t1 & 1) else vX0, t1 >> 1)
        else:
            g("s_nop 0")
        g(f"v_mfma_f32_16x16x32_bf16 {vr(vACC)}, {vr(vA+4*(t&1))}, {vr(vW+4*t)}, {vr(vACC)}")
    g(f"""
    s_nop 7
    v_min_u32 v{vACC}, v{vT+2}, v{vACC}
    v_min_u32 v{vACC+1}, v{vT+2}, v{vACC+1}
    v_min_u32 v{vACC+2}, v{vT+2}, v{vACC+2}
    v_min_u32 v{vACC+3}, v{vT+2}, v{vACC+3}
    s_mov_b64 exec, {sr(sLO32,2)}
    global_store_dwordx4 v{vPO}, {vr(vACC)}, {sr(sWS,2)} sc1
    s_mov_b64 exec, -1
    """)
    if stamps:
        st(1)
        st(4)
        emit_stamps(g, sST, 14, sWS, sWAVE, vT, sT0)
    g("""
    L_end:
    s_endpgm
    """)

    out = HEADER + DOC
    out += f"; @launch grid=(256,1,1) block=(512,1,1) lds={LDS}\n"
    out += f""".amdgcn_target "amdgcn-amd-amdhsa--gfx950"
.text
.globl {KNAME}
.p2align 8
.type {KNAME},@function
{KNAME}:
"""
    out += g.text()
    out += f""".section .rodata,"a"
.p2align 6
.amdhsa_kernel {KNAME}
  .amdhsa_next_free_vgpr 256
  .amdhsa_next_free_sgpr 102
  .amdhsa_accum_offset 256
  .amdhsa_group_segment_fixed_size 0
  .amdhsa_kernarg_size 104
  .amdhsa_user_sgpr_count 2
  .amdhsa_user_sgpr_kernarg_segment_ptr 1
  .amdhsa_system_sgpr_workgroup_id_x 1
  .amdhsa_float_denorm_mode_32 3
.end_amdhsa_kernel
"""
    return out


def emit_stamps(g, sST, n, sWS, sWAVE, vT, sT0):
    g(f"""
    s_lshl_b32 s{sT0}, s2, 3
    s_add_u32 s{sT0}, s{sT0}, s{sWAVE}
    s_lshl_b32 s{sT0}, s{sT0}, 7
    s_add_u32 s{sT0}, s{sT0}, 0x1000000
    v_mov_b32 v{vT}, s{sT0}
    s_getreg_b32 s{sT0}, hwreg(HW_REG_XCC_ID)
    s_waitcnt lgkmcnt(0)
    s_mov_b64 exec, 1
    """)
    for k in range(n):
        g(f"v_mov_b32 v{vT+1}, s{sST+2*k}")
        g(f"global_store_dword v{vT}, v{vT+1}, {sr(sWS,2)} offset:{4*k}")
    g(f"v_mov_b32 v{vT+1}, s{sT0}")
    g(f"global_store_dword v{vT}, v{vT+1}, {sr(sWS,2)} offset:64")
    g("s_mov_b64 exec, -1")


if __name__ == "__main__":
    out = sys.argv[1] if len(sys.argv) > 1 else "cdna_kernels/" + NAME + ".s"
    kw = {}
    for a in sys.argv[2:]:
        k, v = a.split("=")
        kw[k] = eval(v)
    open(out, "w").write(gen(**kw))
    print("wrote", out)
```

```python
import sys, os

NAME = "parallel_sum__gqa_block_cached__dense_activation_squared_relu__decode"
KNAME = NAME + "_kernel"
HEADER = open("cdna_kernels/" + NAME + ".s.ref").read().split("; Override launch")[0]


DOC = r'''; ---------------------------------------------------------------------------------------------
; ---------------------------------------------------------------------------------------------
'''


class G:
    def __init__(self):
        self.L = []

    def __call__(self, s):
        for line in s.strip("\n").split("\n"):
            t = line.strip()
            if not t:
                continue
            self.L.append(t if t.endswith(":") else "  " + t)

    def c(self, s):
        self.L.append("  ; " + s)

    def text(self):
        return "\n".join(self.L) + "\n"


def vr(b, n=4):
    return f"v[{b}:{b+n-1}]"


def sr(b, n=4):
    return f"s[{b}:{b+n-1}]"


def gen(R=48, DS=5, stamps=False, pol="nt", wpol="", hprio=0, hprio2=0, D0=6, slp=64, DK1=0, NK1=0, DV=0, alt=False, noproto=False, early=False, DV2=16, NV2=1, pat=(0,), HD=2, HQ=0, b15=0, opol='', bk=0, bkn=64, noflag=False, noclr=False, noflrd=False, DH=6, DX=9, A0=8100, TA=2400, NA=10, TB=2200, F2=1.046, adapt=True, log=False, anchor=300, fmap=True, gorg=0, nocons=False,
        noffn=False, nowo=False, nowq=False):
    g = G()

    def st(k):
        if stamps:
            g(f"s_memrealtime s[{66+2*k}:{67+2*k}]")

    L_QP = 0
    L_HP = 2048
    L_OP = 4096
    L_ML = 6144
    L_CNT = 6400
    L_SC = 8192
    LDS = 8192 + 16384 + 256
    sX, sK, sV, sWQ, sWO, sBX, sW1, sB1 = 4, 6, 8, 10, 12, 14, 16, 18
    sW2, sB2, sOUT, sDBG, sWS = 20, 22, 24, 26, 28
    sWAVE, sB, sH = 30, 31, 3
    SRD_A, SRD_B, SRD_PF, SRD_C = 32, 36, 40, 44
    sOFF, sIT, sT0, sT1, sT2, sT3 = 48, 49, 50, 51, 52, 53
    sM, sC0, sNCH, sJ = 54, 55, 56, 57
    sMASKC1, sMASKC0, sEX = 58, 60, 62
    sLO32 = 64
    sST = 66
    vTID, vLANE, vS, vC = 0, 1, 2, 3
    vMASK = 4
    vOFF, vOFF2 = 8, 9
    vT = 10
    vA = 16
    vACC = 24
    vQ = 28
    vP = 32
    vMAX, vL, vPP, vSC, vLDS = 48, 49, 50, 51, 52
    vX = 56
    vRING = 256 - 4 * R
    assert vRING >= 64 and R % 16 == 0
    NL = 256
    NIT = NL // R
    NG = R // 16
    DSB = DS

    def mkA(dst, src, lane):
        for t in range(4):
            g(f"v_and_b32_dpp v{dst+t}, v{src}, v{vMASK+t} row_newbcast:{lane} row_mask:0xf bank_mask:0xf")

    def srd(d, base, size):
        g(f"""
        s_mov_b32 s{d}, s{base}
        s_mov_b32 s{d+1}, s{base+1}
        s_mov_b32 s{d+2}, {size}
        s_mov_b32 s{d+3}, 0x20000
        """)

    g(f"""
    s_cmp_ge_u32 s2, 256
    s_cbranch_scc1 L_end
    s_load_dwordx16 s[4:19], s[0:1], 0
    s_load_dwordx8 s[20:27], s[0:1], 64
    s_load_dwordx2 s[28:29], s[0:1], 96
    """)
    st(0)
    sCLK, sD1, sD2, sTA1, sTA2, sGC = 94, 96, 97, 98, 99, 100
    if adapt:
        g(f"s_memrealtime {sr(sCLK,2)}")
    g(f"""
    v_lshrrev_b32 v{vT}, 6, v{vTID}
    v_and_b32 v{vLANE}, 63, v{vTID}
    v_readfirstlane_b32 s{sWAVE}, v{vT}
    v_lshrrev_b32 v{vS}, 4, v{vLANE}
    v_and_b32 v{vC}, 15, v{vLANE}
    s_lshr_b32 s{sB}, s2, 5
    s_and_b32 s{sH}, s2, 31
    s_mov_b32 s{sLO32}, -1
    s_mov_b32 s{sLO32+1}, 0
    s_cmp_ge_u32 s{sWAVE}, 4
    s_cbranch_scc1 L_helper
    """)

    def masks(dst, full):
        g(f"""
        v_and_b32 v{vT}, 1, v{vC}
        v_lshlrev_b32 v{vT}, 4, v{vT}
        v_mov_b32 v{vT+1}, 0xffff
        v_lshlrev_b32 v{vT+1}, v{vT}, v{vT+1}
        """)
        if full:
            g(f"v_bfe_u32 v{vT+2}, v{vC}, 1, 2")
        else:
            g(f"v_lshrrev_b32 v{vT+2}, 1, v{vC}")
        for t in range(4):
            g(f"""
            v_cmp_eq_u32 vcc, {t}, v{vT+2}
            s_nop 1
            v_cndmask_b32 v{dst+t}, 0, v{vT+1}, vcc
            """)

    g.c("=========== streamer waves 0..3")
    g(f"""
    s_lshl_b32 s{sT0}, s{sWAVE}, {9 if b15 == 1 else 10}
    {f's_mul_i32 s{sT0}, s{sWAVE}, 0x4400' if b15 == 2 else ''}
    {f's_and_b32 s{sT0}, s{sT0}, 0x8400' if b15 == 2 else ''}
    v_lshlrev_b32 v{vOFF}, 4, v{vLANE}
    {f'v_and_b32 v{vOFF}, 0x1ff, v{vOFF}' if b15 == 1 else ''}
    {f'v_lshrrev_b32 v{vT+1}, 5, v{vLANE}' if b15 == 1 else ''}
    {f'v_lshl_add_u32 v{vOFF}, v{vT+1}, 15, v{vOFF}' if b15 == 1 else ''}
    v_add_u32 v{vOFF}, s{sT0}, v{vOFF}
    s_lshl_b32 s{sT1}, s2, 20
    s_mov_b32 s{sOFF}, 0
    s_mov_b32 s{SRD_PF+2}, 0x200000
    s_mov_b32 s{SRD_PF+3}, 0x20000
    s_waitcnt lgkmcnt(0)
    s_add_u32 s{SRD_PF}, s{sK}, s{sT1}
    s_addc_u32 s{SRD_PF+1}, s{sK+1}, 0
    """)

    def pf(b):
        g(f"buffer_load_dwordx4 {vr(vRING+4*b)}, v{vOFF}, {sr(SRD_PF)}, 0 offen {pol}")
        g(f"v_add_u32 v{vOFF}, {4096 if not b15 else (2048 if b % 16 < 15 else 2048 + 32768)}, v{vOFF}")

    lab = [0]

    def throttle(D, fixed):
        if fixed or not adapt:
            g(f"s_waitcnt vmcnt({D-1})")
            return
        lab[0] += 1
        g(f"""
        s_waitcnt vmcnt({DX-1})
        s_cbranch_scc1 L_t{lab[0]}
        s_waitcnt vmcnt({DH-1})
        s_cbranch_vccnz L_t{lab[0]}
        s_waitcnt vmcnt({D-1})
        L_t{lab[0]}:
        """)

    def decide():
        if not adapt:
            return
        if log:
            g(f"s_mov_b32 m0, s{sGC}")
            g(f"v_writelane_b32 v9, s{sCLK}, m0")
        g(f"""
        s_mul_i32 s{sT0}, s{sCLK}, 10
        s_sub_i32 s{sT1}, s{sT0}, s{sD1}
        s_sub_i32 s{sT0}, s{sT0}, s{sD2}
        s_add_u32 s{sGC}, s{sGC}, 1
        s_cmp_gt_u32 s{sGC}, {NA}
        s_cselect_b32 s{sTA1}, {TB}, s{sTA1}
        s_cselect_b32 s{sTA2}, {int(TB*F2)}, s{sTA2}
        s_add_u32 s{sD1}, s{sD1}, s{sTA1}
        s_add_u32 s{sD2}, s{sD2}, s{sTA2}
        s_cmp_gt_i32 s{sT1}, 0
        s_cselect_b64 vcc, -1, 0
        s_cmp_gt_i32 s{sT0}, 0
        """)

    st(5)
    if not D0:
        D0 = DS
    for b in range(D0):
        pf(b)
    g(f"""
    s_add_u32 s{SRD_B}, s{sV}, s{sT1}
    s_addc_u32 s{SRD_B+1}, s{sV+1}, 0
    s_sub_u32 s{SRD_B}, s{SRD_B}, 0x100000
    s_subb_u32 s{SRD_B+1}, s{SRD_B+1}, 0
    s_mul_i32 s{sD1}, s{sCLK}, 10
    s_add_u32 s{sD2}, s{sD1}, {int(A0*F2)}
    s_add_u32 s{sD1}, s{sD1}, {A0}
    s_mov_b32 s{sGC}, 0
    s_mov_b32 s{sTA1}, {TA}
    s_mov_b32 s{sTA2}, {int(TA*F2)}
    """)
    masks(vMASK, False)
    g(f"""
    v_and_b32 v{vT}, 2, v{vC}
    v_cmp_ne_u32 {sr(sMASKC1,2)}, 0, v{vT}
    v_and_b32 v{vT}, 1, v{vC}
    v_cmp_ne_u32 {sr(sMASKC0,2)}, 0, v{vT}
    v_mov_b32 v{vMAX}, 0xff800000
    v_mov_b32 v{vL}, 0
    s_lshl_b32 s{sT0}, s{sWAVE}, 12
    s_add_u32 s{sT0}, s{sT0}, {L_SC}
    v_lshlrev_b32 v{vLDS}, 2, v{vLANE}
    v_add_u32 v{vLDS}, s{sT0}, v{vLDS}
    v_lshlrev_b32 v{vT}, 5, v{vC}
    v_mov_b32 v{vACC}, 0
    v_mov_b32 v{vACC+1}, 0
    v_mov_b32 v{vACC+2}, 0
    v_mov_b32 v{vACC+3}, 0
    s_mov_b32 s{sIT}, 0
    s_mov_b32 s{sT3}, 0x3db504f3
    """)
    for b in range(D0, R):
        g(f"s_waitcnt vmcnt({D0-1})")
        pf(b)
        if gorg and b == 30:
            g(f"v_mov_b32 v9, 0")
            g(f"global_load_dword v9, v9, {sr(sDBG,2)} offset:4 sc1")
    st(8)
    g("s_barrier")
    g.c("q = sum of 4 partials, lane (s,c) takes q[8c..8c+8)")
    tq = [vP, vP + 8, vA, vX]
    for j in range(4):
        g(f"ds_read_b128 {vr(tq[j])}, v{vT} offset:{L_QP+512*j}")
        g(f"ds_read_b128 {vr(tq[j]+4)}, v{vT} offset:{L_QP+512*j+16}")
    g("s_waitcnt lgkmcnt(4)")
    for e in range(8):
        g(f"v_add_f32 v{tq[0]+e}, v{tq[0]+e}, v{tq[1]+e}")
    g("s_waitcnt lgkmcnt(0)")
    if adapt:
        g(f"s_memrealtime {sr(sCLK,2)}")
    for e in range(8):
        g(f"v_add_f32 v{tq[2]+e}, v{tq[2]+e}, v{tq[3]+e}")
    for e in range(8):
        g(f"v_add_f32 v{tq[0]+e}, v{tq[0]+e}, v{tq[2]+e}")
    for t in range(4):
        g(f"v_cvt_pk_bf16_f32 v{vQ+t}, v{tq[0]+2*t}, v{tq[0]+2*t+1}")
    if anchor:
        g(f"""
        s_waitcnt lgkmcnt(0)
        s_mul_i32 s{sD1}, s{sCLK}, 10
        s_add_u32 s{sD2}, s{sD1}, {anchor+int(A0*(F2-1))}
        s_add_u32 s{sD1}, s{sD1}, {anchor}
        """)
    if gorg:
        g(f"""
        v_readfirstlane_b32 s{sT0}, v9
        s_nop 3
        s_mul_i32 s{sT1}, s{sT0}, 10
        s_add_u32 s{sT2}, s{sT1}, {int(gorg*F2)}
        s_add_u32 s{sT1}, s{sT1}, {gorg}
        s_cmp_lg_u32 s{sT0}, 0
        s_cselect_b32 s{sD1}, s{sT1}, s{sD1}
        s_cselect_b32 s{sD2}, s{sT2}, s{sD2}
        """)
    st(1)

    def kgroup(slot, ldsoff, DS=DS):
        g(f"""
        s_cmp_eq_u32 s{sIT}, {16-NG}
        s_cselect_b32 s{SRD_PF}, s{SRD_B}, s{SRD_PF}
        s_cselect_b32 s{SRD_PF+1}, s{SRD_B+1}, s{SRD_PF+1}
        s_add_u32 s{sIT}, s{sIT}, 1
        s_waitcnt lgkmcnt(0)
        """)
        decide()
        for j in range(16):
            b = slot * 16 + j
            rb = vRING + 4 * b
            if DS == R:
                g(f"s_waitcnt vmcnt({DS-1})")
            g(f"v_dot2_f32_bf16 v{vP+j}, v{rb}, v{vQ}, 0")
            for t in range(1, 4):
                g(f"v_dot2_f32_bf16 v{vP+j}, v{rb+t}, v{vQ+t}, v{vP+j}")
            throttle(DS, DS != DSB)
            pf(b)
        if adapt:
            g(f"s_memrealtime {sr(sCLK,2)}")
        g.c("transposing reduction over the 16 lanes of each row")
        g("s_nop 1")
        for j in range(8):
            g(f"v_add_f32_dpp v{vP+j}, v{vP+j}, v{vP+j} row_ror:8 row_mask:0xf bank_mask:0x3")
            g(f"v_add_f32_dpp v{vP+j}, v{vP+j+8}, v{vP+j+8} row_ror:8 row_mask:0xf bank_mask:0xc")
        for j in range(4):
            g(f"v_add_f32_dpp v{vP+j}, v{vP+j}, v{vP+j} row_half_mirror row_mask:0xf bank_mask:0x5")
            g(f"v_add_f32_dpp v{vP+j}, v{vP+j+4}, v{vP+j+4} row_half_mirror row_mask:0xf bank_mask:0xa")
        for j in range(4):
            g(f"v_add_f32_dpp v{vP+j}, v{vP+j}, v{vP+j} quad_perm:[2,3,0,1] row_mask:0xf bank_mask:0xf")
        g(f"v_cndmask_b32 v{vP+0}, v{vP+0}, v{vP+2}, {sr(sMASKC1,2)}")
        g(f"v_cndmask_b32 v{vP+1}, v{vP+1}, v{vP+3}, {sr(sMASKC1,2)}")
        g("s_nop 1")
        g(f"v_add_f32_dpp v{vP+0}, v{vP+0}, v{vP+0} quad_perm:[1,0,3,2] row_mask:0xf bank_mask:0xf")
        g(f"v_add_f32_dpp v{vP+1}, v{vP+1}, v{vP+1} quad_perm:[1,0,3,2] row_mask:0xf bank_mask:0xf")
        g(f"v_cndmask_b32 v{vP+0}, v{vP+0}, v{vP+1}, {sr(sMASKC0,2)}")
        g.c("score = bf16(bf16(q.k) * Dh^-0.5)")
        g(f"""
        v_cvt_pk_bf16_f32 v{vP+0}, v{vP+0}, v{vP+0}
        v_lshlrev_b32 v{vP+0}, 16, v{vP+0}
        v_mul_f32 v{vP+0}, s{sT3}, v{vP+0}
        v_cvt_pk_bf16_f32 v{vP+0}, v{vP+0}, v{vP+0}
        v_lshlrev_b32 v{vSC}, 16, v{vP+0}
        v_max_f32 v{vMAX}, v{vMAX}, v{vSC}
        ds_write_b32 v{vLDS}, v{vSC} offset:{ldsoff}
        """)

    nk = 16 // NG
    if NK1:
        g("L_kloop1:")
        for slot in range(NG):
            kgroup(slot, 256 * slot, DK1)
        g(f"""
        v_add_u32 v{vLDS}, {256*NG}, v{vLDS}
        s_cmp_lt_u32 s{sIT}, {NK1*NG}
        s_cbranch_scc1 L_kloop1
        """)
    g("L_kloop:")
    for slot in range(NG):
        kgroup(slot, 256 * slot)
    g(f"""
    v_add_u32 v{vLDS}, {256*NG}, v{vLDS}
    s_cmp_lt_u32 s{sIT}, {nk*NG}
    s_cbranch_scc1 L_kloop
    """)
    for r in range(16 - nk * NG):
        kgroup(r, 256 * r)
    g.c("wave max")
    g(f"""
    v_subrev_u32 v{vLDS}, {256*NG*nk}, v{vLDS}
    s_nop 0
    v_max_f32_dpp v{vMAX}, v{vMAX}, v{vMAX} row_ror:8 row_mask:0xf bank_mask:0xf
    s_nop 1
    v_max_f32_dpp v{vMAX}, v{vMAX}, v{vMAX} row_ror:4 row_mask:0xf bank_mask:0xf
    s_nop 1
    v_max_f32_dpp v{vMAX}, v{vMAX}, v{vMAX} row_ror:2 row_mask:0xf bank_mask:0xf
    s_nop 1
    v_max_f32_dpp v{vMAX}, v{vMAX}, v{vMAX} row_ror:1 row_mask:0xf bank_mask:0xf
    s_nop 1
    v_max_f32_dpp v{vMAX}, v{vMAX}, v{vMAX} row_bcast:15 row_mask:0xa bank_mask:0xf
    s_nop 1
    v_max_f32_dpp v{vMAX}, v{vMAX}, v{vMAX} row_bcast:31 row_mask:0xc bank_mask:0xf
    s_waitcnt lgkmcnt(0)
    ds_read_b32 v{vSC}, v{vLDS}
    v_readlane_b32 s{sM}, v{vMAX}, 63
    s_mov_b32 s{sT3}, 0x3fb8aa3b
    s_mov_b32 s{sIT}, 0
    """)
    st(2)

    def vgroup(slot, ldsoff, rem, DS=(DV or DS), vPP=vPP):
        if rem is None: g(f"""
        s_waitcnt lgkmcnt(0)
        v_subrev_f32 v{vT}, s{sM}, v{vSC}
        v_mul_f32 v{vT}, s{sT3}, v{vT}
        v_exp_f32 v{vT}, v{vT}
        ds_read_b32 v{vSC}, v{vLDS} offset:{ldsoff+256}
        v_add_f32 v{vL}, v{vL}, v{vT}
        v_cvt_pk_bf16_f32 v{vPP}, v{vT}, v{vT}
        s_nop 1
        """)
        if rem is None and DS == DSB:
            decide()
        mkA(vA, vPP, 0)
        for j in range(16):
            b = slot * 16 + j
            rb = vRING + 4 * b
            if j < 15:
                mkA(vA + 4 * ((j + 1) & 1), vPP, j + 1)
            else:
                g("s_nop 0")
            if rem is not None:
                if rem + 15 - j < max(DS, DX) + 2:
                    g(f"s_waitcnt vmcnt({rem+15-j})")
            elif DS == R:
                g(f"s_waitcnt vmcnt({DS-1})")
            g(f"v_mfma_f32_16x16x32_bf16 {vr(vACC)}, {vr(vA+4*(j&1))}, {vr(rb)}, {vr(vACC)}")
            if rem is None:
                throttle(DS, DS != DSB)
                pf(b)
                if adapt and j == 14:
                    g(f"s_memrealtime {sr(sCLK,2)}")

    s0 = 16 % NG
    nv = (16 - NG - NV2) // NG
    g("L_vloop:")
    for i in range(NG):
        vgroup((s0 + i) % NG, 256 * i, None)
    g(f"""
    v_add_u32 v{vLDS}, {256*NG}, v{vLDS}
    s_add_u32 s{sIT}, s{sIT}, 1
    s_cmp_lt_u32 s{sIT}, {nv}
    s_cbranch_scc1 L_vloop
    """)
    vFLG, vFLA = 53, 54
    vOA = 55
    for i, v in enumerate(range(nv * NG, 16)):
        if v == nv * NG:
            g.c("read the 'slots cleared' flag of column block w (checked by helper w)")
            g(f"""
            s_lshl_b32 s{sT0}, s{sB}, 2
            s_add_u32 s{sT0}, s{sT0}, s{sWAVE}
            s_lshl_b32 s{sT0}, s{sT0}, 3
            v_mov_b32 v{vFLA}, s{sT0}
            global_load_dword v{vFLG}, v{vFLA}, {sr(sDBG,2)} sc1
            s_bfe_u32 s{sT0}, s{sH}, 0x20001
            s_lshl_b32 s{sT0}, s{sT0}, 2
            s_add_u32 s{sT0}, s{sT0}, s{sWAVE}
            s_lshl_b32 s{sT0}, s{sT0}, 6
            v_and_b32 v{vT+1}, 7, v{vLANE}
            v_lshlrev_b32 v{vT+1}, 3, v{vT+1}
            v_add_u32 v{vT+1}, s{sT0}, v{vT+1}
            s_lshl_b32 s{sT0}, s{sB}, 10
            v_add_u32 v{vT+2}, s{sT0}, v{vT+1}
            global_load_dwordx2 v[{vX}:{vX+1}], v{vT+2}, {sr(sX,2)}
            global_load_dwordx2 v[{vX+2}:{vX+3}], v{vT+1}, {sr(sB2,2)}
            """)
            assert v < 16 - NG
        if v == 16 - NG:
            g.c("p of the last groups, final l ; publish (m, l, flag)")
            for k in range(1, NG):
                g(f"ds_read_b32 v{vP+k}, v{vLDS} offset:{256*(i+k)}")
            g(f"""
            s_waitcnt lgkmcnt(0)
            v_mov_b32 v{vP}, v{vSC}
            """)
            for k in range(NG):
                g(f"v_subrev_f32 v{vP+k}, s{sM}, v{vP+k}")
            for k in range(NG):
                g(f"v_mul_f32 v{vP+k}, s{sT3}, v{vP+k}")
            for k in range(NG):
                g(f"v_exp_f32 v{vP+k}, v{vP+k}")
            g("s_nop 0")
            for k in range(NG):
                g(f"v_add_f32 v{vL}, v{vL}, v{vP+k}")
            for k in range(NG):
                g(f"v_cvt_pk_bf16_f32 v{vP+k}, v{vP+k}, v{vP+k}")
            g(f"""
            v_add_f32_dpp v{vL}, v{vL}, v{vL} row_ror:8 row_mask:0xf bank_mask:0xf
            v_lshlrev_b32 v{vOA}, 5, v{vC}
            v_lshlrev_b32 v{vT+1}, 4, v{vS}
            v_add_f32_dpp v{vL}, v{vL}, v{vL} row_ror:4 row_mask:0xf bank_mask:0xf
            v_add_u32 v{vOA}, v{vOA}, v{vT+1}
            s_lshl_b32 s{sT0}, s{sWAVE}, 9
            v_add_f32_dpp v{vL}, v{vL}, v{vL} row_ror:2 row_mask:0xf bank_mask:0xf
            v_add_u32 v{vOA}, s{sT0}, v{vOA}
            s_lshl_b32 s{sT0}, s{sWAVE}, 3
            v_add_f32_dpp v{vL}, v{vL}, v{vL} row_ror:1 row_mask:0xf bank_mask:0xf
            v_mov_b32 v{vT+2}, s{sT0}
            v_mov_b32 v{vT+4}, s{sM}
            v_add_f32_dpp v{vL}, v{vL}, v{vL} row_bcast:15 row_mask:0xa bank_mask:0xf
            v_mov_b32 v{vT}, {L_CNT+4}
            v_mov_b32 v{vT+1}, 1
            v_add_f32_dpp v{vL}, v{vL}, v{vL} row_bcast:31 row_mask:0xc bank_mask:0xf
            s_waitcnt vmcnt(16)
            ds_write_b32 v{vT+2}, v{vFLG} offset:{L_ML+32}
            v_readlane_b32 s{sT1}, v{vL}, 63
            s_nop 1
            v_mov_b32 v{vT+5}, s{sT1}
            ds_write_b64 v{vT+2}, v[{vT+4}:{vT+5}] offset:{L_ML}
            s_waitcnt lgkmcnt(0)
            s_mov_b64 exec, 1
            ds_add_u32 v{vT}, v{vT+1}
            s_mov_b64 exec, -1
            s_nop 3
            """)
        last = v >= 16 - NG
        vgroup((s0 + v) % NG, 256 * i, 16 * (15 - v) if last else None,
               DV2 if (NV2 and v >= 16 - NG - NV2) else (DV or DS), vP + v - (16 - NG) if last else vPP)
    st(3)
    g.c("publish o partial")
    g(f"""
    s_nop 6
    s_mov_b64 exec, {sr(sLO32,2)}
    ds_write_b128 v{vOA}, {vr(vACC)} offset:{L_OP}
    s_mov_b64 exec, -1
    s_waitcnt lgkmcnt(0)
    s_barrier
    s_and_b32 s{sT0}, s{sH}, 0x19
    {'s_branch L_sdone' if (nocons or noproto) else 's_cbranch_scc1 L_sdone'}
    """)
    g.c("=========== consumer: wave w of WG (b, 2jj) reduces columns jj*128+32w .. +32 of batch b")
    vR = vRING
    g(f"""
    s_lshl_b32 s{sT0}, s{sB}, 16
    s_add_u32 s{SRD_C}, s{sWS}, s{sT0}
    s_addc_u32 s{SRD_C+1}, s{sWS+1}, 0
    s_mov_b32 s{SRD_C+2}, 0x10000
    s_mov_b32 s{SRD_C+3}, 0x20000
    s_lshr_b32 s{sT2}, s{sH}, 1
    s_lshl_b32 s{sT2}, s{sT2}, 2
    s_add_u32 s{sT2}, s{sT2}, s{sWAVE}
    v_lshrrev_b32 v{vT}, 3, v{vLANE}
    v_lshlrev_b32 v{vT}, 11, v{vT}
    v_and_b32 v{vT+1}, 7, v{vLANE}
    v_lshl_add_u32 v{vT}, v{vT+1}, 4, v{vT}
    s_lshl_b32 s{sT0}, s{sT2}, 7
    v_add_u32 v{vT}, s{sT0}, v{vT}
    s_lshl_b32 s{sT0}, s{sT2}, 6
    v_lshlrev_b32 v{vT+1}, 3, v{vT+1}
    v_add_u32 v{vT+1}, s{sT0}, v{vT+1}
    s_lshl_b32 s{sT0}, s{sB}, 10
    v_add_u32 v{vT+2}, s{sT0}, v{vT+1}
    s_mov_b32 s{sIT}, 0
    s_movk_i32 s{sT0}, 0x4000
    s_mov_b32 s{sT1}, 0x8000
    s_mov_b32 s{sT2}, 0xc000
    """)
    sMK = [58, 60, 62, 64]
    soffs = ["0", f"s{sT0}", f"s{sT1}", f"s{sT2}"]
    for i in range(4):
        g(f"s_mov_b64 {sr(sMK[i],2)}, -1")
    g.c("x + b2")
    g("s_waitcnt vmcnt(0)")
    for e in range(4):
        src_x = vX + (e >> 1)
        src_b = vX + 2 + (e >> 1)
        if e & 1:
            g(f"v_and_b32 v{vQ+e}, 0xffff0000, v{src_x}")
            g(f"v_and_b32 v{vR+9}, 0xffff0000, v{src_b}")
        else:
            g(f"v_lshlrev_b32 v{vQ+e}, 16, v{src_x}")
            g(f"v_lshlrev_b32 v{vR+9}, 16, v{src_b}")
        g(f"v_add_f32 v{vQ+e}, v{vQ+e}, v{vR+9}")
    g("L_poll:")
    for i in range(4):
        g(f"""
        s_mov_b64 exec, {sr(sMK[i],2)}
        s_cbranch_execz L_pk{i}
        buffer_load_dwordx4 {vr(vR+4*i)}, v{vT}, {sr(SRD_C)}, {soffs[i]} offen sc1
        L_pk{i}:
        """)
    g(f"""
    s_mov_b64 exec, -1
    s_add_u32 s{sIT}, s{sIT}, 1
    s_waitcnt vmcnt(0)
    """)
    for i in range(4):
        g(f"v_max3_u32 v{vA+i}, v{vR+4*i}, v{vR+4*i+1}, v{vR+4*i+2}")
        g(f"v_max_u32 v{vA+i}, v{vA+i}, v{vR+4*i+3}")
    for i in range(4):
        g(f"v_cmp_eq_u32 {sr(sMK[i],2)}, -1, v{vA+i}")
    g(f"""
    s_cmp_gt_u32 s{sIT}, 0x80000
    s_cbranch_scc1 L_pdone
    s_or_b64 vcc, {sr(sMK[0],2)}, {sr(sMK[1],2)}
    s_or_b64 vcc, vcc, {sr(sMK[2],2)}
    s_or_b64 vcc, vcc, {sr(sMK[3],2)}
    s_cbranch_scc0 L_pdone
    """)
    if bk:
        g(f"""
        s_bcnt1_i32_b64 s{sM}, {sr(sMK[0],2)}
        s_bcnt1_i32_b64 s{sT3}, {sr(sMK[1],2)}
        s_add_u32 s{sM}, s{sM}, s{sT3}
        s_bcnt1_i32_b64 s{sT3}, {sr(sMK[2],2)}
        s_add_u32 s{sM}, s{sM}, s{sT3}
        s_bcnt1_i32_b64 s{sT3}, {sr(sMK[3],2)}
        s_add_u32 s{sM}, s{sM}, s{sT3}
        s_cmp_lt_u32 s{sM}, {bkn}
        s_cbranch_scc1 L_poll
        s_sleep {bk}
        """)
    g(f"""
    s_branch L_poll
    L_pdone:
    """)
    for e in range(4):
        g(f"v_add_f32 v{vR+e}, v{vR+e}, v{vR+4+e}")
        g(f"v_add_f32 v{vR+8+e}, v{vR+8+e}, v{vR+12+e}")
    for e in range(4):
        g(f"v_add_f32 v{vR+e}, v{vR+e}, v{vR+8+e}")
    g("s_nop 1")
    for e in range(4):
        g(f"v_add_f32_dpp v{vR+e}, v{vR+e}, v{vR+e} row_ror:8 row_mask:0xf bank_mask:0xf")
    for op in ("v_permlane16_swap_b32", "v_permlane32_swap_b32"):
        for e in range(4):
            g(f"v_mov_b32 v{vR+4+e}, v{vR+e}")
        g("s_nop 1")
        for e in range(4):
            g(f"{op} v{vR+e}, v{vR+4+e}")
        g("s_nop 1")
        for e in range(4):
            g(f"v_add_f32 v{vR+e}, v{vR+e}, v{vR+4+e}")
    for e in range(4):
        g(f"v_add_f32 v{vR+e}, v{vR+e}, v{vQ+e}")
    g(f"""
    v_cvt_pk_bf16_f32 v{vR+10}, v{vR+0}, v{vR+1}
    v_cvt_pk_bf16_f32 v{vR+11}, v{vR+2}, v{vR+3}
    s_mov_b64 exec, 0xff
    global_store_dwordx2 v{vT+2}, v[{vR+10}:{vR+11}], {sr(sOUT,2)} {opol}
    s_mov_b64 exec, -1
    L_sdone:
    """)
    if log:
        g(f"""
        s_lshl_b32 s{sT0}, s2, 2
        s_add_u32 s{sT0}, s{sT0}, s{sWAVE}
        s_lshl_b32 s{sT0}, s{sT0}, 8
        s_add_u32 s{sT0}, s{sT0}, 0x3000000
        v_lshlrev_b32 v{vT}, 2, v{vLANE}
        v_add_u32 v{vT}, s{sT0}, v{vT}
        global_store_dword v{vT}, v9, {sr(sWS,2)}
        """)
    if stamps:
        st(4)
        emit_stamps(g, sST, 14, sWS, sWAVE, vT, sT0)
    g("s_endpgm")

    g.c("=========== helper waves 4..7")
    vACC2 = 28
    vM2 = 32
    vX0, vX1, vXO, vPO, vMB, vSD, vRS, vDL = 36, 37, 38, 39, 40, 41, 42, 43
    vTB, vB1, vH, vF = 44, 46, 47, 48
    xf = 48
    vW1 = 64
    vW = 128
    g(f"""
    L_helper:
    s_setprio {hprio}
    s_sub_u32 s{sJ}, s{sWAVE}, 4
    s_lshl_b32 s{sT0}, s{sB}, 10
    v_lshlrev_b32 v{vT}, 4, v{vLANE}
    v_add_u32 v{vT}, s{sT0}, v{vT}
    s_lshl_b32 s{sT1}, s{sJ}, 8
    s_add_u32 s{sT0}, s{sT0}, s{sT1}
    v_lshlrev_b32 v{vT+1}, 2, v{vLANE}
    v_add_u32 v{vT+1}, s{sT0}, v{vT+1}
    """)
    g.c("wq voffset = (128j + 32s)*8192 + h*256 + c*16")
    g(f"""
    s_lshl_b32 s{sT0}, s{sJ}, 20
    s_lshl_b32 s{sT1}, s{sH}, 8
    s_add_u32 s{sT0}, s{sT0}, s{sT1}
    v_lshlrev_b32 v{vOFF}, 18, v{vS}
    v_lshl_add_u32 v{vOFF}, v{vC}, 4, v{vOFF}
    v_add_u32 v{vOFF}, s{sT0}, v{vOFF}
    s_and_b32 s{sC0}, s{sH}, 7
    s_lshl_b32 s{sC0}, s{sC0}, 2
    s_lshr_b32 s{sT0}, s{sH}, 3
    s_or_b32 s{sC0}, s{sC0}, s{sT0}
    {'' if fmap else f's_mov_b32 s{sC0}, s{sH}'}
    s_mul_i32 s{sC0}, s{sC0}, 43
    s_add_u32 s{sT0}, s{sC0}, 43
    s_lshr_b32 s{sC0}, s{sC0}, 3
    s_lshr_b32 s{sT0}, s{sT0}, 3
    s_sub_u32 s{sNCH}, s{sT0}, s{sC0}
    s_mov_b32 s{sOFF}, 0
    s_waitcnt lgkmcnt(0)
    global_load_dwordx4 {vr(vX)}, v{vT}, {sr(sX,2)}
    global_load_dword v{vXO}, v{vT+1}, {sr(sX,2)}
    """)
    if gorg:
        g(f"""
        s_or_b32 s{sT0}, s2, s{sJ}
        s_cbranch_scc1 L_norg
        s_or_b32 s{sT0}, s{sCLK}, 1
        v_mov_b32 v{vT+2}, 0
        v_mov_b32 v{vT+3}, s{sT0}
        s_mov_b64 exec, 1
        global_store_dword v{vT+2}, v{vT+3}, {sr(sDBG,2)} offset:4 sc1
        s_mov_b64 exec, -1
        s_waitcnt vmcnt(0)
        L_norg:
        """)
    st(5)
    srd(SRD_A, sWQ, 0 if nowq else 0x400000)
    for t in range(32):
        if HQ and t >= HQ:
            g(f"s_waitcnt vmcnt({HQ-1})")
        if not nowq:
            g(f"buffer_load_dwordx4 {vr(vW+4*t)}, v{vOFF}, {sr(SRD_A)}, s{sOFF} offen {wpol}")
        g(f"s_add_u32 s{sOFF}, s{sOFF}, 8192")
    st(6)
    st(7)
    masks(vMASK, False)
    masks(vM2, True)
    g.c("layernorm statistics (whole row per wave)")
    g("s_waitcnt vmcnt(0)" if nowq else "s_waitcnt vmcnt(32)")
    st(8)
    for e in range(4):
        g(f"v_lshlrev_b32 v{xf+2*e}, 16, v{vX+e}")
        g(f"v_and_b32 v{xf+2*e+1}, 0xffff0000, v{vX+e}")
    g(f"""
    v_add_f32 v{vT}, v{xf}, v{xf+1}
    v_add_f32 v{vT+1}, v{xf+2}, v{xf+3}
    v_add_f32 v{vT+2}, v{xf+4}, v{xf+5}
    v_add_f32 v{vT+3}, v{xf+6}, v{xf+7}
    v_add_f32 v{vT}, v{vT}, v{vT+1}
    v_add_f32 v{vT+2}, v{vT+2}, v{vT+3}
    v_add_f32 v{vT}, v{vT}, v{vT+2}
    """)

    def wavesum(v, sdst):
        g(f"""
        s_nop 1
        v_add_f32_dpp v{v}, v{v}, v{v} row_ror:8 row_mask:0xf bank_mask:0xf
        s_nop 1
        v_add_f32_dpp v{v}, v{v}, v{v} row_ror:4 row_mask:0xf bank_mask:0xf
        s_nop 1
        v_add_f32_dpp v{v}, v{v}, v{v} row_ror:2 row_mask:0xf bank_mask:0xf
        s_nop 1
        v_add_f32_dpp v{v}, v{v}, v{v} row_ror:1 row_mask:0xf bank_mask:0xf
        s_nop 1
        v_add_f32_dpp v{v}, v{v}, v{v} row_bcast:15 row_mask:0xa bank_mask:0xf
        s_nop 1
        v_add_f32_dpp v{v}, v{v}, v{v} row_bcast:31 row_mask:0xc bank_mask:0xf
        s_nop 1
        v_readlane_b32 s{sdst}, v{v}, 63
        s_nop 1
        """)

    wavesum(vT, sT0)
    g(f"""
    v_mov_b32 v{vT}, 0x3b000000
    v_mul_f32 v{vT}, s{sT0}, v{vT}
    """)
    for e in range(8):
        g(f"v_sub_f32 v{xf+e}, v{xf+e}, v{vT}")
    g(f"v_mul_f32 v{vT+1}, v{xf}, v{xf}")
    for e in range(1, 8):
        g(f"v_fmac_f32 v{vT+1}, v{xf+e}, v{xf+e}")
    wavesum(vT + 1, sT1)
    g(f"""
    v_mov_b32 v{vT+1}, 0x3b000000
    v_mul_f32 v{vT+1}, s{sT1}, v{vT+1}
    v_cvt_pk_bf16_f32 v{vMB}, v{vT}, v{vT}
    v_lshlrev_b32 v{vMB}, 16, v{vMB}
    v_cvt_pk_bf16_f32 v{vT+1}, v{vT+1}, v{vT+1}
    v_lshlrev_b32 v{vT+1}, 16, v{vT+1}
    v_add_f32 v{vT+1}, 0x3727c5ac, v{vT+1}
    v_cvt_pk_bf16_f32 v{vT+1}, v{vT+1}, v{vT+1}
    v_lshlrev_b32 v{vT+1}, 16, v{vT+1}
    v_sqrt_f32 v{vT+1}, v{vT+1}
    s_nop 0
    v_cvt_pk_bf16_f32 v{vT+1}, v{vT+1}, v{vT+1}
    v_lshlrev_b32 v{vSD}, 16, v{vT+1}
    v_rcp_f32 v{vRS}, v{vSD}
    v_lshlrev_b32 v{vT+4}, 16, v{vXO}
    v_and_b32 v{vT+5}, 0xffff0000, v{vXO}
    """)

    def norm(dst, src):
        g(f"""
        v_sub_f32 v{src}, v{src}, v{vMB}
        v_cvt_pk_bf16_f32 v{src}, v{src}, v{src}
        v_lshlrev_b32 v{src}, 16, v{src}
        v_mul_f32 v{vT+2}, v{src}, v{vRS}
        v_fma_f32 v{vT+3}, -v{vT+2}, v{vSD}, v{src}
        v_fmac_f32 v{vT+2}, v{vT+3}, v{vRS}
        v_cvt_pk_bf16_f32 v{dst}, v{vT+2}, v{vT+2}
        """)

    norm(vX0, vT + 4)
    norm(vX1, vT + 5)
    for e in range(8):
        g(f"v_mov_b32 v{vACC+e}, 0")
    st(9)
    g.c("q partial: tile t=2c'+u rows k = 128j + 32s + t")
    mkA(vA, vX0, 0)
    for t in range(32):
        if t < 31:
            t1 = t + 1
            mkA(vA + 4 * (t1 & 1), vX1 if (t1 & 1) else vX0, t1 >> 1)
        g(f"s_waitcnt vmcnt({31-t})")
        if t == 0:
            st(10)
        g(f"v_mfma_f32_16x16x32_bf16 {vr(vACC)}, {vr(vA+4*(t&1))}, {vr(vW+4*t)}, {vr(vACC)}")
    st(11)
    g(f"""
    v_lshlrev_b32 v{vDL}, 5, v{vC}
    v_lshl_add_u32 v{vDL}, v{vS}, 4, v{vDL}
    s_lshl_b32 s{sT0}, s{sJ}, 9
    v_add_u32 v{vT}, s{sT0}, v{vDL}
    v_mov_b32 v{vT+1}, 0
    v_mov_b32 v{vT+2}, {L_CNT}
    s_nop 2
    s_mov_b64 exec, {sr(sLO32,2)}
    ds_write_b128 v{vT}, {vr(vACC)} offset:{L_QP}
    s_mov_b64 exec, -1
    ds_write_b32 v{vT+2}, v{vT+1}
    ds_write_b32 v{vT+2}, v{vT+1} offset:4
    s_waitcnt lgkmcnt(0)
    s_barrier
    s_setprio {hprio2}
    """)
    st(13)
    g.c("w1 voffset: (128j + 32s + (c>>3))*2752 + (c0 + (c&7))*16, out of range if (c&7) >= nch")
    g(f"""
    v_lshrrev_b32 v{vT}, 3, v{vC}
    v_lshl_add_u32 v{vT}, v{vS}, 5, v{vT}
    s_lshl_b32 s{sT0}, s{sJ}, 7
    v_add_u32 v{vT}, s{sT0}, v{vT}
    v_mul_u32_u24 v{vT}, 2752, v{vT}
    v_and_b32 v{vT+1}, 7, v{vC}
    v_add_u32 v{vT+2}, s{sC0}, v{vT+1}
    v_lshl_add_u32 v{vOFF2}, v{vT+2}, 4, v{vT}
    v_cmp_gt_u32 vcc, s{sNCH}, v{vT+1}
    v_mov_b32 v{vT+3}, 0x40000000
    s_mov_b32 s{sOFF}, 0
    v_cndmask_b32 v{vOFF2}, v{vT+3}, v{vOFF2}, vcc
    """)
    srd(SRD_B, sW1, 0 if noffn else 512 * 2752)
    for u in range(16):
        if HD:
            g(f"s_waitcnt vmcnt({HD-1})")
        if not noffn:
            g(f"buffer_load_dwordx4 {vr(vW1+4*u)}, v{vOFF2}, {sr(SRD_B)}, s{sOFF} offen {wpol}")
        g(f"s_add_u32 s{sOFF}, s{sOFF}, {2*2752}")
    g.c("b1: lane (s,c) -> hidden unit 4c+s")
    vHI = 60
    g(f"""
    s_mov_b32 s{SRD_C}, s{sB1}
    s_mov_b32 s{SRD_C+1}, s{sB1+1}
    s_add_u32 s{sT1}, s{sC0}, s{sNCH}
    s_lshl_b32 s{SRD_C+2}, s{sT1}, 4
    s_mov_b32 s{SRD_C+3}, 0x20000
    v_lshl_add_u32 v{vHI}, v{vC}, 2, v{vS}
    s_lshl_b32 s{sT1}, s{sC0}, 4
    v_lshlrev_b32 v{vT+5}, 1, v{vHI}
    v_add_u32 v{vT+5}, s{sT1}, v{vT+5}
    buffer_load_ushort v{vB1}, v{vT+5}, {sr(SRD_C)}, 0 offen
    """)
    g.c("ffn hidden partial: tile u rows k = 128j + 32s + 2u + (c>>3)")
    for u in range(16):
        a = vA + 4 * (u & 1)
        tb = vTB + (u & 1)
        g(f"v_mov_b32_dpp v{tb}, v{vX0} row_newbcast:{u} row_mask:0xf bank_mask:0x3")
        g(f"v_mov_b32_dpp v{tb}, v{vX1} row_newbcast:{u} row_mask:0xf bank_mask:0xc")
        for t in range(4):
            g(f"v_and_b32 v{a+t}, v{tb}, v{vM2+t}")
        g(f"s_waitcnt vmcnt({16-u})")
        g("s_nop 0")
        g(f"v_mfma_f32_16x16x32_bf16 {vr(vACC2)}, {vr(a)}, {vr(vW1+4*u)}, {vr(vACC2)}")
    st(12)
    g.c("hidden halves to LDS: lanes (s'<2,c'<8) -> [0..64), lanes (s'>=2,c'>=8) -> [64..128)")
    g(f"""
    v_lshrrev_b32 v{vT}, 1, v{vS}
    v_lshrrev_b32 v{vT+1}, 3, v{vC}
    v_cmp_eq_u32 vcc, v{vT}, v{vT+1}
    v_lshlrev_b32 v{vT}, 8, v{vT}
    v_and_b32 v{vT+1}, 7, v{vC}
    v_lshl_add_u32 v{vT}, v{vT+1}, 5, v{vT}
    v_and_b32 v{vT+1}, 1, v{vS}
    v_lshl_add_u32 v{vT}, v{vT+1}, 4, v{vT}
    s_lshl_b32 s{sT0}, s{sJ}, 9
    v_add_u32 v{vT}, s{sT0}, v{vT}
    s_and_saveexec_b64 {sr(sEX,2)}, vcc
    ds_write_b128 v{vT}, {vr(vACC2)} offset:{L_HP}
    s_mov_b64 exec, 1
    v_mov_b32 v{vT+1}, 1
    v_mov_b32 v{vT+2}, {L_CNT}
    s_waitcnt lgkmcnt(0)
    ds_add_u32 v{vT+2}, v{vT+1}
    s_mov_b64 exec, -1
    """)
    g.c("w2 tile t: row = 8c0 + 4t + s, cols j*128 + 8c ; wo tile t=2c'+u: rows d = 32 s + t")
    g(f"""
    s_lshl_b32 s{sT0}, s{sC0}, 13
    s_lshl_b32 s{sT2}, s{sJ}, 8
    v_lshlrev_b32 v{vOFF2}, 10, v{vS}
    v_lshl_add_u32 v{vOFF2}, v{vC}, 4, v{vOFF2}
    v_add_u32 v{vOFF2}, s{sT0}, v{vOFF2}
    v_add_u32 v{vOFF2}, s{sT2}, v{vOFF2}
    s_mov_b32 s{SRD_B}, s{sW2}
    s_mov_b32 s{SRD_B+1}, s{sW2+1}
    s_lshl_b32 s{sT1}, s{sNCH}, 13
    s_add_u32 s{SRD_B+2}, s{sT0}, s{sT1}
    s_mov_b32 s{SRD_B+3}, 0x20000
    s_lshl_b32 s{sT0}, s{sH}, 17
    s_add_u32 s{sT0}, s{sT0}, s{sT2}
    v_lshlrev_b32 v{vOFF}, 15, v{vS}
    v_lshl_add_u32 v{vOFF}, v{vC}, 4, v{vOFF}
    v_add_u32 v{vOFF}, s{sT0}, v{vOFF}
    v_lshlrev_b32 v{vT+5}, 2, v{vHI}
    s_mov_b32 s{sOFF}, 0
    """)
    if noffn:
        g(f"s_mov_b32 s{SRD_B+2}, 0")
    srd(SRD_A, sWO, 0 if nowo else 0x400000)
    hp = 48
    for t in range(12):
        if HD:
            g(f"s_waitcnt vmcnt({HD-1})")
        if not noffn:
            g(f"buffer_load_dwordx4 {vr(vW1+4*t)}, v{vOFF2}, {sr(SRD_B)}, s{sOFF} offen {wpol}")
        g(f"s_add_u32 s{sOFF}, s{sOFF}, 4096")
    g(f"s_mov_b32 s{sOFF}, 0")
    for t in range(32):
        if HD:
            g(f"s_waitcnt vmcnt({HD-1})")
        if not nowo:
            g(f"buffer_load_dwordx4 {vr(vW+4*t)}, v{vOFF}, {sr(SRD_A)}, s{sOFF} offen offset:{1024*(t&3)} {wpol}")
        if (t & 3) == 3:
            g(f"s_add_u32 s{sOFF}, s{sOFF}, 4096")
    st(2)
    g(f"""
    v_mov_b32 v{vT+2}, {L_CNT}
    L_hwait:
    ds_read_b32 v{vT+1}, v{vT+2}
    s_waitcnt lgkmcnt(0)
    v_readfirstlane_b32 s{sT1}, v{vT+1}
    s_nop 3
    s_cmp_ge_u32 s{sT1}, 4
    s_cbranch_scc1 L_hdone
    s_sleep 2
    s_branch L_hwait
    L_hdone:
    """)
    for j in range(4):
        g(f"ds_read_b32 v{hp+2*j}, v{vT+5} offset:{L_HP+512*j}")
        g(f"ds_read_b32 v{hp+2*j+1}, v{vT+5} offset:{L_HP+512*j+256}")
    g(f"""
    s_waitcnt lgkmcnt(0)
    v_add_f32 v{hp}, v{hp}, v{hp+1}
    v_add_f32 v{hp+2}, v{hp+2}, v{hp+3}
    v_add_f32 v{hp+4}, v{hp+4}, v{hp+5}
    v_add_f32 v{hp+6}, v{hp+6}, v{hp+7}
    v_add_f32 v{hp}, v{hp}, v{hp+2}
    v_add_f32 v{hp+4}, v{hp+4}, v{hp+6}
    v_add_f32 v{vT}, v{hp}, v{hp+4}
    v_cvt_pk_bf16_f32 v{vT}, v{vT}, v{vT}
    v_lshlrev_b32 v{vT}, 16, v{vT}
    s_waitcnt vmcnt(44)
    v_lshlrev_b32 v{vB1}, 16, v{vB1}
    v_add_f32 v{vT}, v{vT}, v{vB1}
    v_cvt_pk_bf16_f32 v{vT}, v{vT}, v{vT}
    v_lshlrev_b32 v{vT}, 16, v{vT}
    v_cmp_lt_f32 vcc, 0, v{vT}
    s_lshl_b32 s{sT1}, s{sNCH}, 3
    v_cmp_gt_u32 {sr(sEX,2)}, s{sT1}, v{vHI}
    s_nop 1
    s_and_b64 vcc, vcc, {sr(sEX,2)}
    s_nop 1
    v_cndmask_b32 v{vT}, 0, v{vT}, vcc
    v_mul_f32 v{vT}, v{vT}, v{vT}
    v_cvt_pk_bf16_f32 v{vH}, v{vT}, v{vT}
    """)
    for e in range(4):
        g(f"v_mov_b32 v{vACC+e}, 0")
    for t in range(12):
        a = vA + 4 * (t & 1)
        mkA(a, vH, t)
        g(f"s_waitcnt vmcnt({43-t})")
        g("s_nop 0")
        g(f"v_mfma_f32_16x16x32_bf16 {vr(vACC)}, {vr(a)}, {vr(vW1+4*t)}, {vr(vACC)}")
    st(3)
    g.c("clearing duty: wave 4 of WG (b, 2jj) clears column block jj of all 32 slots of batch b")
    g(f"""
    s_and_b32 s{sT0}, s{sH}, 0x19
    {'s_branch L_noclear' if noproto else 's_cbranch_scc1 L_noclear'}
    s_cmp_lg_u32 s{sJ}, 0
    s_cbranch_scc1 L_noclear
    s_lshl_b32 s{sT0}, s{sB}, 16
    s_add_u32 s{SRD_C}, s{sWS}, s{sT0}
    s_addc_u32 s{SRD_C+1}, s{sWS+1}, 0
    s_mov_b32 s{SRD_C+2}, 0x10000
    s_mov_b32 s{SRD_C+3}, 0x20000
    s_lshr_b32 s{sT2}, s{sH}, 1
    s_lshl_b32 s{sT0}, s{sT2}, 9
    v_lshrrev_b32 v{vT}, 5, v{vLANE}
    v_lshlrev_b32 v{vT}, 11, v{vT}
    v_and_b32 v{vT+1}, 31, v{vLANE}
    v_lshl_add_u32 v{vT}, v{vT+1}, 4, v{vT}
    v_add_u32 v{vT}, s{sT0}, v{vT}
    v_mov_b32 v{vW1}, -1
    v_mov_b32 v{vW1+1}, -1
    v_mov_b32 v{vW1+2}, -1
    v_mov_b32 v{vW1+3}, -1
    s_mov_b32 s{sOFF}, 0
    """)
    for i in range(0 if noclr else 16):
        g(f"buffer_store_dwordx4 {vr(vW1)}, v{vT}, {sr(SRD_C)}, s{sOFF} offen sc1")
        g(f"s_add_u32 s{sOFF}, s{sOFF}, 4096")
    g(f"""
    s_lshl_b32 s{sT0}, s{sB}, 2
    s_add_u32 s{sT0}, s{sT0}, s{sT2}
    s_lshl_b32 s{sT0}, s{sT0}, 3
    v_mov_b32 v{vT}, s{sT0}
    v_mov_b32 v{vT+1}, 1
    s_waitcnt vmcnt(0)
    s_mov_b64 exec, 1
    {'' if noflag else f'global_store_dword v{vT}, v{vT+1}, {sr(sDBG,2)} sc1'}
    s_mov_b64 exec, -1
    L_noclear:
    """)
    g(f"""
    s_lshl_b32 s{sT0}, s{sB}, 2
    s_add_u32 s{sT0}, s{sT0}, s{sJ}
    s_lshl_b32 s{sT0}, s{sT0}, 3
    v_mov_b32 v{vT+3}, s{sT0}
    s_lshl_b32 s{sT0}, s{sJ}, 3
    v_mov_b32 v{vT+4}, s{sT0}
    s_waitcnt vmcnt(0)
    s_lshl_b32 s{sT0}, s2, 11
    s_lshl_b32 s{sT1}, s{sJ}, 9
    s_add_u32 s{sT0}, s{sT0}, s{sT1}
    v_add_u32 v{vPO}, s{sT0}, v{vDL}
    v_lshlrev_b32 v{vT}, 7, v{vS}
    v_lshl_add_u32 v{vT}, v{vC}, 3, v{vT}
    v_mov_b32 v{vT+1}, 0
    v_mov_b32 v{vT+2}, -2
    s_mov_b32 s{sT3}, 0x3fb8aa3b
    """)
    o = 64
    m = 72
    u = 80
    g.c("wait for the four (m, l, flag) records, softmax scale of each streamer partial")
    g(f"""
    v_mov_b32 v{u+7}, {L_CNT+4}
    s_mov_b32 s{sIT}, 0
    L_mwait:
    ds_read_b32 v{u+6}, v{u+7}
    s_add_u32 s{sIT}, s{sIT}, 1
    s_waitcnt lgkmcnt(0)
    v_readfirstlane_b32 s{sT1}, v{u+6}
    s_cmp_gt_u32 s{sIT}, 0x400000
    s_cbranch_scc1 L_mdone
    s_cmp_ge_u32 s{sT1}, 4
    s_cbranch_scc1 L_mdone
    s_sleep 4
    s_branch L_mwait
    L_mdone:
    ds_read_b128 v[{m}:{m+3}], v{vT+1} offset:{L_ML}
    ds_read_b128 v[{m+4}:{m+7}], v{vT+1} offset:{L_ML+16}
    ds_read_b32 v{vT+5}, v{vT+4} offset:{L_ML+32}
    s_waitcnt lgkmcnt(0)
    v_max3_f32 v{u}, v{m}, v{m+2}, v{m+4}
    v_max_f32 v{u}, v{u}, v{m+6}
    v_sub_f32 v{m}, v{m}, v{u}
    v_sub_f32 v{m+2}, v{m+2}, v{u}
    v_sub_f32 v{m+4}, v{m+4}, v{u}
    v_sub_f32 v{m+6}, v{m+6}, v{u}
    v_mul_f32 v{m}, s{sT3}, v{m}
    v_mul_f32 v{m+2}, s{sT3}, v{m+2}
    v_mul_f32 v{m+4}, s{sT3}, v{m+4}
    v_mul_f32 v{m+6}, s{sT3}, v{m+6}
    v_exp_f32 v{m}, v{m}
    v_exp_f32 v{m+2}, v{m+2}
    v_exp_f32 v{m+4}, v{m+4}
    v_exp_f32 v{m+6}, v{m+6}
    v_mul_f32 v{u+1}, v{m}, v{m+1}
    v_fmac_f32 v{u+1}, v{m+2}, v{m+3}
    v_fmac_f32 v{u+1}, v{m+4}, v{m+5}
    v_fmac_f32 v{u+1}, v{m+6}, v{m+7}
    v_rcp_f32 v{u+2}, v{u+1}
    v_readfirstlane_b32 s{sT1}, v{vT+5}
    v_fma_f32 v{u+3}, -v{u+1}, v{u+2}, 1.0
    v_fmac_f32 v{u+2}, v{u+3}, v{u+2}
    v_mul_f32 v{m}, v{m}, v{u+2}
    v_mul_f32 v{m+2}, v{m+2}, v{u+2}
    v_mul_f32 v{m+4}, v{m+4}, v{u+2}
    v_mul_f32 v{m+6}, v{m+6}, v{u+2}
    s_mov_b32 s{sIT}, 0
    s_cmp_lg_u32 s{sT1}, 0
    s_cbranch_scc1 L_fdone
    {'s_branch L_fdone' if noproto else ''}
    L_fwait:
    global_load_dword v{vT+5}, v{vT+3}, {sr(sDBG,2)} sc1
    s_add_u32 s{sIT}, s{sIT}, 1
    s_waitcnt vmcnt(0)
    v_readfirstlane_b32 s{sT1}, v{vT+5}
    s_cmp_gt_u32 s{sIT}, 0x40000
    s_cbranch_scc1 L_fdone
    s_cmp_lg_u32 s{sT1}, 0
    s_cbranch_scc1 L_fdone
    s_sleep 8
    s_branch L_fwait
    L_fdone:
    """)
    st(8)
    g("s_barrier")
    g.c("combine the 4 streamer partials")
    g(f"""
    ds_read_b64 v[{o}:{o+1}], v{vT} offset:{L_OP}
    ds_read_b64 v[{o+2}:{o+3}], v{vT} offset:{L_OP+512}
    ds_read_b64 v[{o+4}:{o+5}], v{vT} offset:{L_OP+1024}
    ds_read_b64 v[{o+6}:{o+7}], v{vT} offset:{L_OP+1536}
    s_waitcnt lgkmcnt(3)
    v_mul_f32 v{o}, v{m}, v{o}
    v_mul_f32 v{o+1}, v{m}, v{o+1}
    s_waitcnt lgkmcnt(2)
    v_fmac_f32 v{o}, v{m+2}, v{o+2}
    v_fmac_f32 v{o+1}, v{m+2}, v{o+3}
    s_waitcnt lgkmcnt(1)
    v_fmac_f32 v{o}, v{m+4}, v{o+4}
    v_fmac_f32 v{o+1}, v{m+4}, v{o+5}
    s_waitcnt lgkmcnt(0)
    v_fmac_f32 v{o}, v{m+6}, v{o+6}
    v_fmac_f32 v{o+1}, v{m+6}, v{o+7}
    v_cvt_pk_bf16_f32 v{vX0}, v{o}, v{o}
    v_cvt_pk_bf16_f32 v{vX1}, v{o+1}, v{o+1}
    s_nop 0
    """)
    mkA(vA, vX0, 0)
    for t in range(32):
        if t < 31:
            t1 = t + 1
            mkA(vA + 4 * (t1 & 1), vX1 if (t1 & 1) else vX0, t1 >> 1)
        else:
            g("s_nop 0")
        g(f"v_mfma_f32_16x16x32_bf16 {vr(vACC)}, {vr(vA+4*(t&1))}, {vr(vW+4*t)}, {vr(vACC)}")
    g(f"""
    s_nop 7
    v_min_u32 v{vACC}, v{vT+2}, v{vACC}
    v_min_u32 v{vACC+1}, v{vT+2}, v{vACC+1}
    v_min_u32 v{vACC+2}, v{vT+2}, v{vACC+2}
    v_min_u32 v{vACC+3}, v{vT+2}, v{vACC+3}
    s_mov_b64 exec, {sr(sLO32,2)}
    global_store_dwordx4 v{vPO}, {vr(vACC)}, {sr(sWS,2)} sc1
    s_mov_b64 exec, -1
    """)
    if stamps:
        st(1)
        st(4)
        emit_stamps(g, sST, 14, sWS, sWAVE, vT, sT0)
    g("""
    L_end:
    s_endpgm
    """)

    out = HEADER + DOC
    out += f"; @launch grid=(256,1,1) block=(512,1,1) lds={LDS}\n"
    out += f""".amdgcn_target "amdgcn-amd-amdhsa--gfx950"
.text
.globl {KNAME}
.p2align 8
.type {KNAME},@function
{KNAME}:
"""
    out += g.text()
    out += f""".section .rodata,"a"
.p2align 6
.amdhsa_kernel {KNAME}
  .amdhsa_next_free_vgpr 256
  .amdhsa_next_free_sgpr 102
  .amdhsa_accum_offset 256
  .amdhsa_group_segment_fixed_size 0
  .amdhsa_kernarg_size 104
  .amdhsa_user_sgpr_count 2
  .amdhsa_user_sgpr_kernarg_segment_ptr 1
  .amdhsa_system_sgpr_workgroup_id_x 1
  .amdhsa_float_denorm_mode_32 3
.end_amdhsa_kernel
"""
    return out


def emit_stamps(g, sST, n, sWS, sWAVE, vT, sT0):
    g(f"""
    s_lshl_b32 s{sT0}, s2, 3
    s_add_u32 s{sT0}, s{sT0}, s{sWAVE}
    s_lshl_b32 s{sT0}, s{sT0}, 7
    s_add_u32 s{sT0}, s{sT0}, 0x1000000
    v_mov_b32 v{vT}, s{sT0}
    s_getreg_b32 s{sT0}, hwreg(HW_REG_XCC_ID)
    s_waitcnt lgkmcnt(0)
    s_mov_b64 exec, 1
    """)
    for k in range(n):
        g(f"v_mov_b32 v{vT+1}, s{sST+2*k}")
        g(f"global_store_dword v{vT}, v{vT+1}, {sr(sWS,2)} offset:{4*k}")
    g(f"v_mov_b32 v{vT+1}, s{sT0}")
    g(f"global_store_dword v{vT}, v{vT+1}, {sr(sWS,2)} offset:64")
    g("s_mov_b64 exec, -1")


if __name__ == "__main__":
    out = sys.argv[1] if len(sys.argv) > 1 else "cdna_kernels/" + NAME + ".s"
    kw = {}
    for a in sys.argv[2:]:
        k, v = a.split("=")
        kw[k] = eval(v)
    open(out, "w").write(gen(**kw))
    print("wrote", out)
```

```python
import sys, os

NAME = "parallel_sum__gqa_block_cached__dense_activation_squared_relu__decode"
KNAME = NAME + "_kernel"
HEADER = open("cdna_kernels/" + NAME + ".s.ref").read().split("; Override launch")[0]


DOC = r'''; ---------------------------------------------------------------------------------------------
; ---------------------------------------------------------------------------------------------
'''


class G:
    def __init__(self):
        self.L = []

    def __call__(self, s):
        for line in s.strip("\n").split("\n"):
            t = line.strip()
            if not t:
                continue
            self.L.append(t if t.endswith(":") else "  " + t)

    def c(self, s):
        self.L.append("  ; " + s)

    def text(self):
        return "\n".join(self.L) + "\n"


def vr(b, n=4):
    return f"v[{b}:{b+n-1}]"


def sr(b, n=4):
    return f"s[{b}:{b+n-1}]"


def gen(R=48, DS=5, stamps=False, pol="nt", wpol="", hprio=0, hprio2=0, D0=6, slp=64, DK1=0, NK1=0, DV=0, alt=False, noproto=False, early=False, DV2=16, NV2=3, pat=(0,), HD=2, HQ=0, b15=0, opol='', bk=0, bkn=64, noflag=False, noclr=False, noflrd=False, DH=6, DX=9, A0=8100, TA=2400, NA=10, TB=2200, F2=1.046, adapt=False, log=False, anchor=300, fmap=True, gorg=0, nocons=False,
        noffn=False, nowo=False, nowq=False):
    g = G()

    def st(k):
        if stamps:
            g(f"s_memrealtime s[{66+2*k}:{67+2*k}]")

    L_QP = 0
    L_HP = 2048
    L_OP = 4096
    L_ML = 6144
    L_CNT = 6400
    L_SC = 8192
    LDS = 8192 + 16384 + 256
    sX, sK, sV, sWQ, sWO, sBX, sW1, sB1 = 4, 6, 8, 10, 12, 14, 16, 18
    sW2, sB2, sOUT, sDBG, sWS = 20, 22, 24, 26, 28
    sWAVE, sB, sH = 30, 31, 3
    SRD_A, SRD_B, SRD_PF, SRD_C = 32, 36, 40, 44
    sOFF, sIT, sT0, sT1, sT2, sT3 = 48, 49, 50, 51, 52, 53
    sM, sC0, sNCH, sJ = 54, 55, 56, 57
    sMASKC1, sMASKC0, sEX = 58, 60, 62
    sLO32 = 64
    sST = 66
    vTID, vLANE, vS, vC = 0, 1, 2, 3
    vMASK = 4
    vOFF, vOFF2 = 8, 9
    vT = 10
    vA = 16
    vACC = 24
    vQ = 28
    vP = 32
    vMAX, vL, vPP, vSC, vLDS = 48, 49, 50, 51, 52
    vX = 56
    vRING = 256 - 4 * R
    assert vRING >= 64 and R % 16 == 0
    NL = 256
    NIT = NL // R
    NG = R // 16
    DSB = DS

    def mkA(dst, src, lane):
        for t in range(4):
            g(f"v_and_b32_dpp v{dst+t}, v{src}, v{vMASK+t} row_newbcast:{lane} row_mask:0xf bank_mask:0xf")

    def srd(d, base, size):
        g(f"""
        s_mov_b32 s{d}, s{base}
        s_mov_b32 s{d+1}, s{base+1}
        s_mov_b32 s{d+2}, {size}
        s_mov_b32 s{d+3}, 0x20000
        """)

    g(f"""
    s_cmp_ge_u32 s2, 256
    s_cbranch_scc1 L_end
    s_load_dwordx16 s[4:19], s[0:1], 0
    s_load_dwordx8 s[20:27], s[0:1], 64
    s_load_dwordx2 s[28:29], s[0:1], 96
    """)
    st(0)
    sCLK, sD1, sD2, sTA1, sTA2, sGC = 94, 96, 97, 98, 99, 100
    if adapt:
        g(f"s_memrealtime {sr(sCLK,2)}")
    g(f"""
    v_lshrrev_b32 v{vT}, 6, v{vTID}
    v_and_b32 v{vLANE}, 63, v{vTID}
    v_readfirstlane_b32 s{sWAVE}, v{vT}
    v_lshrrev_b32 v{vS}, 4, v{vLANE}
    v_and_b32 v{vC}, 15, v{vLANE}
    s_lshr_b32 s{sB}, s2, 5
    s_and_b32 s{sH}, s2, 31
    s_mov_b32 s{sLO32}, -1
    s_mov_b32 s{sLO32+1}, 0
    s_cmp_ge_u32 s{sWAVE}, 4
    s_cbranch_scc1 L_helper
    """)

    def masks(dst, full):
        g(f"""
        v_and_b32 v{vT}, 1, v{vC}
        v_lshlrev_b32 v{vT}, 4, v{vT}
        v_mov_b32 v{vT+1}, 0xffff
        v_lshlrev_b32 v{vT+1}, v{vT}, v{vT+1}
        """)
        if full:
            g(f"v_bfe_u32 v{vT+2}, v{vC}, 1, 2")
        else:
            g(f"v_lshrrev_b32 v{vT+2}, 1, v{vC}")
        for t in range(4):
            g(f"""
            v_cmp_eq_u32 vcc, {t}, v{vT+2}
            s_nop 1
            v_cndmask_b32 v{dst+t}, 0, v{vT+1}, vcc
            """)

    g.c("=========== streamer waves 0..3")
    g(f"""
    s_lshl_b32 s{sT0}, s{sWAVE}, {9 if b15 == 1 else 10}
    {f's_mul_i32 s{sT0}, s{sWAVE}, 0x4400' if b15 == 2 else ''}
    {f's_and_b32 s{sT0}, s{sT0}, 0x8400' if b15 == 2 else ''}
    v_lshlrev_b32 v{vOFF}, 4, v{vLANE}
    {f'v_and_b32 v{vOFF}, 0x1ff, v{vOFF}' if b15 == 1 else ''}
    {f'v_lshrrev_b32 v{vT+1}, 5, v{vLANE}' if b15 == 1 else ''}
    {f'v_lshl_add_u32 v{vOFF}, v{vT+1}, 15, v{vOFF}' if b15 == 1 else ''}
    v_add_u32 v{vOFF}, s{sT0}, v{vOFF}
    s_lshl_b32 s{sT1}, s2, 20
    s_mov_b32 s{sOFF}, 0
    s_mov_b32 s{SRD_PF+2}, 0x200000
    s_mov_b32 s{SRD_PF+3}, 0x20000
    s_waitcnt lgkmcnt(0)
    s_add_u32 s{SRD_PF}, s{sK}, s{sT1}
    s_addc_u32 s{SRD_PF+1}, s{sK+1}, 0
    """)

    def pf(b):
        g(f"buffer_load_dwordx4 {vr(vRING+4*b)}, v{vOFF}, {sr(SRD_PF)}, 0 offen {pol}")
        g(f"v_add_u32 v{vOFF}, {4096 if not b15 else (2048 if b % 16 < 15 else 2048 + 32768)}, v{vOFF}")

    lab = [0]

    def throttle(D, fixed):
        if fixed or not adapt:
            g(f"s_waitcnt vmcnt({D-1})")
            return
        lab[0] += 1
        g(f"""
        s_waitcnt vmcnt({DX-1})
        s_cbranch_scc1 L_t{lab[0]}
        s_waitcnt vmcnt({DH-1})
        s_cbranch_vccnz L_t{lab[0]}
        s_waitcnt vmcnt({D-1})
        L_t{lab[0]}:
        """)

    def decide():
        if not adapt:
            return
        if log:
            g(f"s_mov_b32 m0, s{sGC}")
            g(f"v_writelane_b32 v9, s{sCLK}, m0")
        g(f"""
        s_mul_i32 s{sT0}, s{sCLK}, 10
        s_sub_i32 s{sT1}, s{sT0}, s{sD1}
        s_sub_i32 s{sT0}, s{sT0}, s{sD2}
        s_add_u32 s{sGC}, s{sGC}, 1
        s_cmp_gt_u32 s{sGC}, {NA}
        s_cselect_b32 s{sTA1}, {TB}, s{sTA1}
        s_cselect_b32 s{sTA2}, {int(TB*F2)}, s{sTA2}
        s_add_u32 s{sD1}, s{sD1}, s{sTA1}
        s_add_u32 s{sD2}, s{sD2}, s{sTA2}
        s_cmp_gt_i32 s{sT1}, 0
        s_cselect_b64 vcc, -1, 0
        s_cmp_gt_i32 s{sT0}, 0
        """)

    st(5)
    if not D0:
        D0 = DS
    for b in range(D0):
        pf(b)
    g(f"""
    s_add_u32 s{SRD_B}, s{sV}, s{sT1}
    s_addc_u32 s{SRD_B+1}, s{sV+1}, 0
    s_sub_u32 s{SRD_B}, s{SRD_B}, 0x100000
    s_subb_u32 s{SRD_B+1}, s{SRD_B+1}, 0
    """)
    if adapt:
        g(f"""
        s_mul_i32 s{sD1}, s{sCLK}, 10
        s_add_u32 s{sD2}, s{sD1}, {int(A0*F2)}
        s_add_u32 s{sD1}, s{sD1}, {A0}
        s_mov_b32 s{sGC}, 0
        s_mov_b32 s{sTA1}, {TA}
        s_mov_b32 s{sTA2}, {int(TA*F2)}
        """)
    g(f"""
    """)
    masks(vMASK, False)
    g(f"""
    v_and_b32 v{vT}, 2, v{vC}
    v_cmp_ne_u32 {sr(sMASKC1,2)}, 0, v{vT}
    v_and_b32 v{vT}, 1, v{vC}
    v_cmp_ne_u32 {sr(sMASKC0,2)}, 0, v{vT}
    v_mov_b32 v{vMAX}, 0xff800000
    v_mov_b32 v{vL}, 0
    s_lshl_b32 s{sT0}, s{sWAVE}, 12
    s_add_u32 s{sT0}, s{sT0}, {L_SC}
    v_lshlrev_b32 v{vLDS}, 2, v{vLANE}
    v_add_u32 v{vLDS}, s{sT0}, v{vLDS}
    v_lshlrev_b32 v{vT}, 5, v{vC}
    v_mov_b32 v{vACC}, 0
    v_mov_b32 v{vACC+1}, 0
    v_mov_b32 v{vACC+2}, 0
    v_mov_b32 v{vACC+3}, 0
    s_mov_b32 s{sIT}, 0
    s_mov_b32 s{sT3}, 0x3db504f3
    """)
    for b in range(D0, R):
        g(f"s_waitcnt vmcnt({D0-1})")
        pf(b)
        if gorg and b == 30:
            g(f"v_mov_b32 v9, 0")
            g(f"global_load_dword v9, v9, {sr(sDBG,2)} offset:4 sc1")
    st(8)
    g("s_barrier")
    g.c("q = sum of 4 partials, lane (s,c) takes q[8c..8c+8)")
    tq = [vP, vP + 8, vA, vX]
    for j in range(4):
        g(f"ds_read_b128 {vr(tq[j])}, v{vT} offset:{L_QP+512*j}")
        g(f"ds_read_b128 {vr(tq[j]+4)}, v{vT} offset:{L_QP+512*j+16}")
    g("s_waitcnt lgkmcnt(4)")
    for e in range(8):
        g(f"v_add_f32 v{tq[0]+e}, v{tq[0]+e}, v{tq[1]+e}")
    g("s_waitcnt lgkmcnt(0)")
    if adapt:
        g(f"s_memrealtime {sr(sCLK,2)}")
    for e in range(8):
        g(f"v_add_f32 v{tq[2]+e}, v{tq[2]+e}, v{tq[3]+e}")
    for e in range(8):
        g(f"v_add_f32 v{tq[0]+e}, v{tq[0]+e}, v{tq[2]+e}")
    for t in range(4):
        g(f"v_cvt_pk_bf16_f32 v{vQ+t}, v{tq[0]+2*t}, v{tq[0]+2*t+1}")
    if anchor and adapt:
        g(f"""
        s_waitcnt lgkmcnt(0)
        s_mul_i32 s{sD1}, s{sCLK}, 10
        s_add_u32 s{sD2}, s{sD1}, {anchor+int(A0*(F2-1))}
        s_add_u32 s{sD1}, s{sD1}, {anchor}
        """)
    if gorg:
        g(f"""
        v_readfirstlane_b32 s{sT0}, v9
        s_nop 3
        s_mul_i32 s{sT1}, s{sT0}, 10
        s_add_u32 s{sT2}, s{sT1}, {int(gorg*F2)}
        s_add_u32 s{sT1}, s{sT1}, {gorg}
        s_cmp_lg_u32 s{sT0}, 0
        s_cselect_b32 s{sD1}, s{sT1}, s{sD1}
        s_cselect_b32 s{sD2}, s{sT2}, s{sD2}
        """)
    st(1)

    def kgroup(slot, ldsoff, DS=DS):
        g(f"""
        s_cmp_eq_u32 s{sIT}, {16-NG}
        s_cselect_b32 s{SRD_PF}, s{SRD_B}, s{SRD_PF}
        s_cselect_b32 s{SRD_PF+1}, s{SRD_B+1}, s{SRD_PF+1}
        s_add_u32 s{sIT}, s{sIT}, 1
        {'s_waitcnt lgkmcnt(0)' if adapt else ''}
        """)
        decide()
        for j in range(16):
            b = slot * 16 + j
            rb = vRING + 4 * b
            if DS == R:
                g(f"s_waitcnt vmcnt({DS-1})")
            g(f"v_dot2_f32_bf16 v{vP+j}, v{rb}, v{vQ}, 0")
            for t in range(1, 4):
                g(f"v_dot2_f32_bf16 v{vP+j}, v{rb+t}, v{vQ+t}, v{vP+j}")
            throttle(DS, DS != DSB)
            pf(b)
        if adapt:
            g(f"s_memrealtime {sr(sCLK,2)}")
        g.c("transposing reduction over the 16 lanes of each row")
        g("s_nop 1")
        for j in range(8):
            g(f"v_add_f32_dpp v{vP+j}, v{vP+j}, v{vP+j} row_ror:8 row_mask:0xf bank_mask:0x3")
            g(f"v_add_f32_dpp v{vP+j}, v{vP+j+8}, v{vP+j+8} row_ror:8 row_mask:0xf bank_mask:0xc")
        for j in range(4):
            g(f"v_add_f32_dpp v{vP+j}, v{vP+j}, v{vP+j} row_half_mirror row_mask:0xf bank_mask:0x5")
            g(f"v_add_f32_dpp v{vP+j}, v{vP+j+4}, v{vP+j+4} row_half_mirror row_mask:0xf bank_mask:0xa")
        for j in range(4):
            g(f"v_add_f32_dpp v{vP+j}, v{vP+j}, v{vP+j} quad_perm:[2,3,0,1] row_mask:0xf bank_mask:0xf")
        g(f"v_cndmask_b32 v{vP+0}, v{vP+0}, v{vP+2}, {sr(sMASKC1,2)}")
        g(f"v_cndmask_b32 v{vP+1}, v{vP+1}, v{vP+3}, {sr(sMASKC1,2)}")
        g("s_nop 1")
        g(f"v_add_f32_dpp v{vP+0}, v{vP+0}, v{vP+0} quad_perm:[1,0,3,2] row_mask:0xf bank_mask:0xf")
        g(f"v_add_f32_dpp v{vP+1}, v{vP+1}, v{vP+1} quad_perm:[1,0,3,2] row_mask:0xf bank_mask:0xf")
        g(f"v_cndmask_b32 v{vP+0}, v{vP+0}, v{vP+1}, {sr(sMASKC0,2)}")
        g.c("score = bf16(bf16(q.k) * Dh^-0.5)")
        g(f"""
        v_cvt_pk_bf16_f32 v{vP+0}, v{vP+0}, v{vP+0}
        v_lshlrev_b32 v{vP+0}, 16, v{vP+0}
        v_mul_f32 v{vP+0}, s{sT3}, v{vP+0}
        v_cvt_pk_bf16_f32 v{vP+0}, v{vP+0}, v{vP+0}
        v_lshlrev_b32 v{vSC}, 16, v{vP+0}
        v_max_f32 v{vMAX}, v{vMAX}, v{vSC}
        ds_write_b32 v{vLDS}, v{vSC} offset:{ldsoff}
        """)

    nk = 16 // NG
    if NK1:
        g("L_kloop1:")
        for slot in range(NG):
            kgroup(slot, 256 * slot, DK1)
        g(f"""
        v_add_u32 v{vLDS}, {256*NG}, v{vLDS}
        s_cmp_lt_u32 s{sIT}, {NK1*NG}
        s_cbranch_scc1 L_kloop1
        """)
    g("L_kloop:")
    for slot in range(NG):
        kgroup(slot, 256 * slot)
    g(f"""
    v_add_u32 v{vLDS}, {256*NG}, v{vLDS}
    s_cmp_lt_u32 s{sIT}, {nk*NG}
    s_cbranch_scc1 L_kloop
    """)
    for r in range(16 - nk * NG):
        kgroup(r, 256 * r)
    g.c("wave max")
    g(f"""
    v_subrev_u32 v{vLDS}, {256*NG*nk}, v{vLDS}
    s_nop 0
    v_max_f32_dpp v{vMAX}, v{vMAX}, v{vMAX} row_ror:8 row_mask:0xf bank_mask:0xf
    s_nop 1
    v_max_f32_dpp v{vMAX}, v{vMAX}, v{vMAX} row_ror:4 row_mask:0xf bank_mask:0xf
    s_nop 1
    v_max_f32_dpp v{vMAX}, v{vMAX}, v{vMAX} row_ror:2 row_mask:0xf bank_mask:0xf
    s_nop 1
    v_max_f32_dpp v{vMAX}, v{vMAX}, v{vMAX} row_ror:1 row_mask:0xf bank_mask:0xf
    s_nop 1
    v_max_f32_dpp v{vMAX}, v{vMAX}, v{vMAX} row_bcast:15 row_mask:0xa bank_mask:0xf
    s_nop 1
    v_max_f32_dpp v{vMAX}, v{vMAX}, v{vMAX} row_bcast:31 row_mask:0xc bank_mask:0xf
    s_waitcnt lgkmcnt(0)
    ds_read_b32 v{vSC}, v{vLDS}
    v_readlane_b32 s{sM}, v{vMAX}, 63
    s_mov_b32 s{sT3}, 0x3fb8aa3b
    s_mov_b32 s{sIT}, 0
    """)
    st(2)

    def vgroup(slot, ldsoff, rem, DS=(DV or DS), vPP=vPP):
        if rem is None: g(f"""
        s_waitcnt lgkmcnt(0)
        v_subrev_f32 v{vT}, s{sM}, v{vSC}
        v_mul_f32 v{vT}, s{sT3}, v{vT}
        v_exp_f32 v{vT}, v{vT}
        ds_read_b32 v{vSC}, v{vLDS} offset:{ldsoff+256}
        v_add_f32 v{vL}, v{vL}, v{vT}
        v_cvt_pk_bf16_f32 v{vPP}, v{vT}, v{vT}
        s_nop 1
        """)
        if rem is None and DS == DSB:
            decide()
        mkA(vA, vPP, 0)
        for j in range(16):
            b = slot * 16 + j
            rb = vRING + 4 * b
            if j < 15:
                mkA(vA + 4 * ((j + 1) & 1), vPP, j + 1)
            else:
                g("s_nop 0")
            if rem is not None:
                if rem + 15 - j < max(DS, DX) + 2:
                    g(f"s_waitcnt vmcnt({rem+15-j})")
            elif DS == R:
                g(f"s_waitcnt vmcnt({DS-1})")
            g(f"v_mfma_f32_16x16x32_bf16 {vr(vACC)}, {vr(vA+4*(j&1))}, {vr(rb)}, {vr(vACC)}")
            if rem is None:
                throttle(DS, DS != DSB)
                pf(b)
                if adapt and j == 14:
                    g(f"s_memrealtime {sr(sCLK,2)}")

    s0 = 16 % NG
    nv = (16 - NG - NV2) // NG
    g("L_vloop:")
    for i in range(NG):
        vgroup((s0 + i) % NG, 256 * i, None)
    g(f"""
    v_add_u32 v{vLDS}, {256*NG}, v{vLDS}
    s_add_u32 s{sIT}, s{sIT}, 1
    s_cmp_lt_u32 s{sIT}, {nv}
    s_cbranch_scc1 L_vloop
    """)
    vFLG, vFLA = 53, 54
    vOA = 55
    for i, v in enumerate(range(nv * NG, 16)):
        if v == nv * NG:
            g.c("read the 'slots cleared' flag of column block w (checked by helper w)")
            g(f"""
            s_lshl_b32 s{sT0}, s{sB}, 2
            s_add_u32 s{sT0}, s{sT0}, s{sWAVE}
            s_lshl_b32 s{sT0}, s{sT0}, 3
            v_mov_b32 v{vFLA}, s{sT0}
            global_load_dword v{vFLG}, v{vFLA}, {sr(sDBG,2)} sc1
            s_bfe_u32 s{sT0}, s{sH}, 0x20001
            s_lshl_b32 s{sT0}, s{sT0}, 2
            s_add_u32 s{sT0}, s{sT0}, s{sWAVE}
            s_lshl_b32 s{sT0}, s{sT0}, 6
            v_and_b32 v{vT+1}, 7, v{vLANE}
            v_lshlrev_b32 v{vT+1}, 3, v{vT+1}
            v_add_u32 v{vT+1}, s{sT0}, v{vT+1}
            s_lshl_b32 s{sT0}, s{sB}, 10
            v_add_u32 v{vT+2}, s{sT0}, v{vT+1}
            global_load_dwordx2 v[{vX}:{vX+1}], v{vT+2}, {sr(sX,2)}
            global_load_dwordx2 v[{vX+2}:{vX+3}], v{vT+1}, {sr(sB2,2)}
            """)
            assert v < 16 - NG
        if v == 16 - NG:
            g.c("p of the last groups, final l ; publish (m, l, flag)")
            for k in range(1, NG):
                g(f"ds_read_b32 v{vP+k}, v{vLDS} offset:{256*(i+k)}")
            g(f"""
            s_waitcnt lgkmcnt(0)
            v_mov_b32 v{vP}, v{vSC}
            """)
            for k in range(NG):
                g(f"v_subrev_f32 v{vP+k}, s{sM}, v{vP+k}")
            for k in range(NG):
                g(f"v_mul_f32 v{vP+k}, s{sT3}, v{vP+k}")
            for k in range(NG):
                g(f"v_exp_f32 v{vP+k}, v{vP+k}")
            g("s_nop 0")
            for k in range(NG):
                g(f"v_add_f32 v{vL}, v{vL}, v{vP+k}")
            for k in range(NG):
                g(f"v_cvt_pk_bf16_f32 v{vP+k}, v{vP+k}, v{vP+k}")
            g(f"""
            v_add_f32_dpp v{vL}, v{vL}, v{vL} row_ror:8 row_mask:0xf bank_mask:0xf
            v_lshlrev_b32 v{vOA}, 5, v{vC}
            v_lshlrev_b32 v{vT+1}, 4, v{vS}
            v_add_f32_dpp v{vL}, v{vL}, v{vL} row_ror:4 row_mask:0xf bank_mask:0xf
            v_add_u32 v{vOA}, v{vOA}, v{vT+1}
            s_lshl_b32 s{sT0}, s{sWAVE}, 9
            v_add_f32_dpp v{vL}, v{vL}, v{vL} row_ror:2 row_mask:0xf bank_mask:0xf
            v_add_u32 v{vOA}, s{sT0}, v{vOA}
            s_lshl_b32 s{sT0}, s{sWAVE}, 3
            v_add_f32_dpp v{vL}, v{vL}, v{vL} row_ror:1 row_mask:0xf bank_mask:0xf
            v_mov_b32 v{vT+2}, s{sT0}
            v_mov_b32 v{vT+4}, s{sM}
            v_add_f32_dpp v{vL}, v{vL}, v{vL} row_bcast:15 row_mask:0xa bank_mask:0xf
            v_mov_b32 v{vT}, {L_CNT+4}
            v_mov_b32 v{vT+1}, 1
            v_add_f32_dpp v{vL}, v{vL}, v{vL} row_bcast:31 row_mask:0xc bank_mask:0xf
            s_waitcnt vmcnt(16)
            ds_write_b32 v{vT+2}, v{vFLG} offset:{L_ML+32}
            v_readlane_b32 s{sT1}, v{vL}, 63
            s_nop 1
            v_mov_b32 v{vT+5}, s{sT1}
            ds_write_b64 v{vT+2}, v[{vT+4}:{vT+5}] offset:{L_ML}
            s_waitcnt lgkmcnt(0)
            s_mov_b64 exec, 1
            ds_add_u32 v{vT}, v{vT+1}
            s_mov_b64 exec, -1
            s_nop 3
            """)
        last = v >= 16 - NG
        vgroup((s0 + v) % NG, 256 * i, 16 * (15 - v) if last else None,
               DV2 if (NV2 and v >= 16 - NG - NV2) else (DV or DS), vP + v - (16 - NG) if last else vPP)
    st(3)
    g.c("publish o partial")
    g(f"""
    s_nop 6
    s_mov_b64 exec, {sr(sLO32,2)}
    ds_write_b128 v{vOA}, {vr(vACC)} offset:{L_OP}
    s_mov_b64 exec, -1
    s_waitcnt lgkmcnt(0)
    s_barrier
    s_and_b32 s{sT0}, s{sH}, 0x19
    {'s_branch L_sdone' if (nocons or noproto) else 's_cbranch_scc1 L_sdone'}
    """)
    g.c("=========== consumer: wave w of WG (b, 2jj) reduces columns jj*128+32w .. +32 of batch b")
    vR = vRING
    g(f"""
    s_lshl_b32 s{sT0}, s{sB}, 16
    s_add_u32 s{SRD_C}, s{sWS}, s{sT0}
    s_addc_u32 s{SRD_C+1}, s{sWS+1}, 0
    s_mov_b32 s{SRD_C+2}, 0x10000
    s_mov_b32 s{SRD_C+3}, 0x20000
    s_lshr_b32 s{sT2}, s{sH}, 1
    s_lshl_b32 s{sT2}, s{sT2}, 2
    s_add_u32 s{sT2}, s{sT2}, s{sWAVE}
    v_lshrrev_b32 v{vT}, 3, v{vLANE}
    v_lshlrev_b32 v{vT}, 11, v{vT}
    v_and_b32 v{vT+1}, 7, v{vLANE}
    v_lshl_add_u32 v{vT}, v{vT+1}, 4, v{vT}
    s_lshl_b32 s{sT0}, s{sT2}, 7
    v_add_u32 v{vT}, s{sT0}, v{vT}
    s_lshl_b32 s{sT0}, s{sT2}, 6
    v_lshlrev_b32 v{vT+1}, 3, v{vT+1}
    v_add_u32 v{vT+1}, s{sT0}, v{vT+1}
    s_lshl_b32 s{sT0}, s{sB}, 10
    v_add_u32 v{vT+2}, s{sT0}, v{vT+1}
    s_mov_b32 s{sIT}, 0
    s_movk_i32 s{sT0}, 0x4000
    s_mov_b32 s{sT1}, 0x8000
    s_mov_b32 s{sT2}, 0xc000
    """)
    sMK = [58, 60, 62, 64]
    soffs = ["0", f"s{sT0}", f"s{sT1}", f"s{sT2}"]
    for i in range(4):
        g(f"s_mov_b64 {sr(sMK[i],2)}, -1")
    g.c("x + b2")
    g("s_waitcnt vmcnt(0)")
    for e in range(4):
        src_x = vX + (e >> 1)
        src_b = vX + 2 + (e >> 1)
        if e & 1:
            g(f"v_and_b32 v{vQ+e}, 0xffff0000, v{src_x}")
            g(f"v_and_b32 v{vR+9}, 0xffff0000, v{src_b}")
        else:
            g(f"v_lshlrev_b32 v{vQ+e}, 16, v{src_x}")
            g(f"v_lshlrev_b32 v{vR+9}, 16, v{src_b}")
        g(f"v_add_f32 v{vQ+e}, v{vQ+e}, v{vR+9}")
    g("L_poll:")
    for i in range(4):
        g(f"""
        s_mov_b64 exec, {sr(sMK[i],2)}
        s_cbranch_execz L_pk{i}
        buffer_load_dwordx4 {vr(vR+4*i)}, v{vT}, {sr(SRD_C)}, {soffs[i]} offen sc1
        L_pk{i}:
        """)
    g(f"""
    s_mov_b64 exec, -1
    s_add_u32 s{sIT}, s{sIT}, 1
    s_waitcnt vmcnt(0)
    """)
    for i in range(4):
        g(f"v_max3_u32 v{vA+i}, v{vR+4*i}, v{vR+4*i+1}, v{vR+4*i+2}")
        g(f"v_max_u32 v{vA+i}, v{vA+i}, v{vR+4*i+3}")
    for i in range(4):
        g(f"v_cmp_eq_u32 {sr(sMK[i],2)}, -1, v{vA+i}")
    g(f"""
    s_cmp_gt_u32 s{sIT}, 0x80000
    s_cbranch_scc1 L_pdone
    s_or_b64 vcc, {sr(sMK[0],2)}, {sr(sMK[1],2)}
    s_or_b64 vcc, vcc, {sr(sMK[2],2)}
    s_or_b64 vcc, vcc, {sr(sMK[3],2)}
    s_cbranch_scc0 L_pdone
    """)
    if bk:
        g(f"""
        s_bcnt1_i32_b64 s{sM}, {sr(sMK[0],2)}
        s_bcnt1_i32_b64 s{sT3}, {sr(sMK[1],2)}
        s_add_u32 s{sM}, s{sM}, s{sT3}
        s_bcnt1_i32_b64 s{sT3}, {sr(sMK[2],2)}
        s_add_u32 s{sM}, s{sM}, s{sT3}
        s_bcnt1_i32_b64 s{sT3}, {sr(sMK[3],2)}
        s_add_u32 s{sM}, s{sM}, s{sT3}
        s_cmp_lt_u32 s{sM}, {bkn}
        s_cbranch_scc1 L_poll
        s_sleep {bk}
        """)
    g(f"""
    s_branch L_poll
    L_pdone:
    """)
    for e in range(4):
        g(f"v_add_f32 v{vR+e}, v{vR+e}, v{vR+4+e}")
        g(f"v_add_f32 v{vR+8+e}, v{vR+8+e}, v{vR+12+e}")
    for e in range(4):
        g(f"v_add_f32 v{vR+e}, v{vR+e}, v{vR+8+e}")
    g("s_nop 1")
    for e in range(4):
        g(f"v_add_f32_dpp v{vR+e}, v{vR+e}, v{vR+e} row_ror:8 row_mask:0xf bank_mask:0xf")
    for op in ("v_permlane16_swap_b32", "v_permlane32_swap_b32"):
        for e in range(4):
            g(f"v_mov_b32 v{vR+4+e}, v{vR+e}")
        g("s_nop 1")
        for e in range(4):
            g(f"{op} v{vR+e}, v{vR+4+e}")
        g("s_nop 1")
        for e in range(4):
            g(f"v_add_f32 v{vR+e}, v{vR+e}, v{vR+4+e}")
    for e in range(4):
        g(f"v_add_f32 v{vR+e}, v{vR+e}, v{vQ+e}")
    g(f"""
    v_cvt_pk_bf16_f32 v{vR+10}, v{vR+0}, v{vR+1}
    v_cvt_pk_bf16_f32 v{vR+11}, v{vR+2}, v{vR+3}
    s_mov_b64 exec, 0xff
    global_store_dwordx2 v{vT+2}, v[{vR+10}:{vR+11}], {sr(sOUT,2)} {opol}
    s_mov_b64 exec, -1
    L_sdone:
    """)
    if log:
        g(f"""
        s_lshl_b32 s{sT0}, s2, 2
        s_add_u32 s{sT0}, s{sT0}, s{sWAVE}
        s_lshl_b32 s{sT0}, s{sT0}, 8
        s_add_u32 s{sT0}, s{sT0}, 0x3000000
        v_lshlrev_b32 v{vT}, 2, v{vLANE}
        v_add_u32 v{vT}, s{sT0}, v{vT}
        global_store_dword v{vT}, v9, {sr(sWS,2)}
        """)
    if stamps:
        st(4)
        emit_stamps(g, sST, 14, sWS, sWAVE, vT, sT0)
    g("s_endpgm")

    g.c("=========== helper waves 4..7")
    vACC2 = 28
    vM2 = 32
    vX0, vX1, vXO, vPO, vMB, vSD, vRS, vDL = 36, 37, 38, 39, 40, 41, 42, 43
    vTB, vB1, vH, vF = 44, 46, 47, 48
    xf = 48
    vW1 = 64
    vW = 128
    g(f"""
    L_helper:
    s_setprio {hprio}
    s_sub_u32 s{sJ}, s{sWAVE}, 4
    s_lshl_b32 s{sT0}, s{sB}, 10
    v_lshlrev_b32 v{vT}, 4, v{vLANE}
    v_add_u32 v{vT}, s{sT0}, v{vT}
    s_lshl_b32 s{sT1}, s{sJ}, 8
    s_add_u32 s{sT0}, s{sT0}, s{sT1}
    v_lshlrev_b32 v{vT+1}, 2, v{vLANE}
    v_add_u32 v{vT+1}, s{sT0}, v{vT+1}
    """)
    g.c("wq voffset = (128j + 32s)*8192 + h*256 + c*16")
    g(f"""
    s_lshl_b32 s{sT0}, s{sJ}, 20
    s_lshl_b32 s{sT1}, s{sH}, 8
    s_add_u32 s{sT0}, s{sT0}, s{sT1}
    v_lshlrev_b32 v{vOFF}, 18, v{vS}
    v_lshl_add_u32 v{vOFF}, v{vC}, 4, v{vOFF}
    v_add_u32 v{vOFF}, s{sT0}, v{vOFF}
    s_and_b32 s{sC0}, s{sH}, 7
    s_lshl_b32 s{sC0}, s{sC0}, 2
    s_lshr_b32 s{sT0}, s{sH}, 3
    s_or_b32 s{sC0}, s{sC0}, s{sT0}
    {'' if fmap else f's_mov_b32 s{sC0}, s{sH}'}
    s_mul_i32 s{sC0}, s{sC0}, 43
    s_add_u32 s{sT0}, s{sC0}, 43
    s_lshr_b32 s{sC0}, s{sC0}, 3
    s_lshr_b32 s{sT0}, s{sT0}, 3
    s_sub_u32 s{sNCH}, s{sT0}, s{sC0}
    s_mov_b32 s{sOFF}, 0
    s_waitcnt lgkmcnt(0)
    global_load_dwordx4 {vr(vX)}, v{vT}, {sr(sX,2)}
    global_load_dword v{vXO}, v{vT+1}, {sr(sX,2)}
    """)
    if gorg:
        g(f"""
        s_or_b32 s{sT0}, s2, s{sJ}
        s_cbranch_scc1 L_norg
        s_or_b32 s{sT0}, s{sCLK}, 1
        v_mov_b32 v{vT+2}, 0
        v_mov_b32 v{vT+3}, s{sT0}
        s_mov_b64 exec, 1
        global_store_dword v{vT+2}, v{vT+3}, {sr(sDBG,2)} offset:4 sc1
        s_mov_b64 exec, -1
        s_waitcnt vmcnt(0)
        L_norg:
        """)
    st(5)
    srd(SRD_A, sWQ, 0 if nowq else 0x400000)
    for t in range(32):
        if HQ and t >= HQ:
            g(f"s_waitcnt vmcnt({HQ-1})")
        if not nowq:
            g(f"buffer_load_dwordx4 {vr(vW+4*t)}, v{vOFF}, {sr(SRD_A)}, s{sOFF} offen {wpol}")
        g(f"s_add_u32 s{sOFF}, s{sOFF}, 8192")
    st(6)
    st(7)
    masks(vMASK, False)
    masks(vM2, True)
    g.c("layernorm statistics (whole row per wave)")
    g("s_waitcnt vmcnt(0)" if nowq else "s_waitcnt vmcnt(32)")
    st(8)
    for e in range(4):
        g(f"v_lshlrev_b32 v{xf+2*e}, 16, v{vX+e}")
        g(f"v_and_b32 v{xf+2*e+1}, 0xffff0000, v{vX+e}")
    g(f"""
    v_add_f32 v{vT}, v{xf}, v{xf+1}
    v_add_f32 v{vT+1}, v{xf+2}, v{xf+3}
    v_add_f32 v{vT+2}, v{xf+4}, v{xf+5}
    v_add_f32 v{vT+3}, v{xf+6}, v{xf+7}
    v_add_f32 v{vT}, v{vT}, v{vT+1}
    v_add_f32 v{vT+2}, v{vT+2}, v{vT+3}
    v_add_f32 v{vT}, v{vT}, v{vT+2}
    """)

    def wavesum(v, sdst):
        g(f"""
        s_nop 1
        v_add_f32_dpp v{v}, v{v}, v{v} row_ror:8 row_mask:0xf bank_mask:0xf
        s_nop 1
        v_add_f32_dpp v{v}, v{v}, v{v} row_ror:4 row_mask:0xf bank_mask:0xf
        s_nop 1
        v_add_f32_dpp v{v}, v{v}, v{v} row_ror:2 row_mask:0xf bank_mask:0xf
        s_nop 1
        v_add_f32_dpp v{v}, v{v}, v{v} row_ror:1 row_mask:0xf bank_mask:0xf
        s_nop 1
        v_add_f32_dpp v{v}, v{v}, v{v} row_bcast:15 row_mask:0xa bank_mask:0xf
        s_nop 1
        v_add_f32_dpp v{v}, v{v}, v{v} row_bcast:31 row_mask:0xc bank_mask:0xf
        s_nop 1
        v_readlane_b32 s{sdst}, v{v}, 63
        s_nop 1
        """)

    wavesum(vT, sT0)
    g(f"""
    v_mov_b32 v{vT}, 0x3b000000
    v_mul_f32 v{vT}, s{sT0}, v{vT}
    """)
    for e in range(8):
        g(f"v_sub_f32 v{xf+e}, v{xf+e}, v{vT}")
    g(f"v_mul_f32 v{vT+1}, v{xf}, v{xf}")
    for e in range(1, 8):
        g(f"v_fmac_f32 v{vT+1}, v{xf+e}, v{xf+e}")
    wavesum(vT + 1, sT1)
    g(f"""
    v_mov_b32 v{vT+1}, 0x3b000000
    v_mul_f32 v{vT+1}, s{sT1}, v{vT+1}
    v_cvt_pk_bf16_f32 v{vMB}, v{vT}, v{vT}
    v_lshlrev_b32 v{vMB}, 16, v{vMB}
    v_cvt_pk_bf16_f32 v{vT+1}, v{vT+1}, v{vT+1}
    v_lshlrev_b32 v{vT+1}, 16, v{vT+1}
    v_add_f32 v{vT+1}, 0x3727c5ac, v{vT+1}
    v_cvt_pk_bf16_f32 v{vT+1}, v{vT+1}, v{vT+1}
    v_lshlrev_b32 v{vT+1}, 16, v{vT+1}
    v_sqrt_f32 v{vT+1}, v{vT+1}
    s_nop 0
    v_cvt_pk_bf16_f32 v{vT+1}, v{vT+1}, v{vT+1}
    v_lshlrev_b32 v{vSD}, 16, v{vT+1}
    v_rcp_f32 v{vRS}, v{vSD}
    v_lshlrev_b32 v{vT+4}, 16, v{vXO}
    v_and_b32 v{vT+5}, 0xffff0000, v{vXO}
    """)

    def norm(dst, src):
        g(f"""
        v_sub_f32 v{src}, v{src}, v{vMB}
        v_cvt_pk_bf16_f32 v{src}, v{src}, v{src}
        v_lshlrev_b32 v{src}, 16, v{src}
        v_mul_f32 v{vT+2}, v{src}, v{vRS}
        v_fma_f32 v{vT+3}, -v{vT+2}, v{vSD}, v{src}
        v_fmac_f32 v{vT+2}, v{vT+3}, v{vRS}
        v_cvt_pk_bf16_f32 v{dst}, v{vT+2}, v{vT+2}
        """)

    norm(vX0, vT + 4)
    norm(vX1, vT + 5)
    for e in range(8):
        g(f"v_mov_b32 v{vACC+e}, 0")
    st(9)
    g.c("q partial: tile t=2c'+u rows k = 128j + 32s + t")
    mkA(vA, vX0, 0)
    for t in range(32):
        if t < 31:
            t1 = t + 1
            mkA(vA + 4 * (t1 & 1), vX1 if (t1 & 1) else vX0, t1 >> 1)
        g(f"s_waitcnt vmcnt({31-t})")
        if t == 0:
            st(10)
        g(f"v_mfma_f32_16x16x32_bf16 {vr(vACC)}, {vr(vA+4*(t&1))}, {vr(vW+4*t)}, {vr(vACC)}")
    st(11)
    g(f"""
    v_lshlrev_b32 v{vDL}, 5, v{vC}
    v_lshl_add_u32 v{vDL}, v{vS}, 4, v{vDL}
    s_lshl_b32 s{sT0}, s{sJ}, 9
    v_add_u32 v{vT}, s{sT0}, v{vDL}
    v_mov_b32 v{vT+1}, 0
    v_mov_b32 v{vT+2}, {L_CNT}
    s_nop 2
    s_mov_b64 exec, {sr(sLO32,2)}
    ds_write_b128 v{vT}, {vr(vACC)} offset:{L_QP}
    s_mov_b64 exec, -1
    ds_write_b32 v{vT+2}, v{vT+1}
    ds_write_b32 v{vT+2}, v{vT+1} offset:4
    s_waitcnt lgkmcnt(0)
    s_barrier
    s_setprio {hprio2}
    """)
    st(13)
    g.c("w1 voffset: (128j + 32s + (c>>3))*2752 + (c0 + (c&7))*16, out of range if (c&7) >= nch")
    g(f"""
    v_lshrrev_b32 v{vT}, 3, v{vC}
    v_lshl_add_u32 v{vT}, v{vS}, 5, v{vT}
    s_lshl_b32 s{sT0}, s{sJ}, 7
    v_add_u32 v{vT}, s{sT0}, v{vT}
    v_mul_u32_u24 v{vT}, 2752, v{vT}
    v_and_b32 v{vT+1}, 7, v{vC}
    v_add_u32 v{vT+2}, s{sC0}, v{vT+1}
    v_lshl_add_u32 v{vOFF2}, v{vT+2}, 4, v{vT}
    v_cmp_gt_u32 vcc, s{sNCH}, v{vT+1}
    v_mov_b32 v{vT+3}, 0x40000000
    s_mov_b32 s{sOFF}, 0
    v_cndmask_b32 v{vOFF2}, v{vT+3}, v{vOFF2}, vcc
    """)
    srd(SRD_B, sW1, 0 if noffn else 512 * 2752)
    for u in range(16):
        if HD:
            g(f"s_waitcnt vmcnt({HD-1})")
        if not noffn:
            g(f"buffer_load_dwordx4 {vr(vW1+4*u)}, v{vOFF2}, {sr(SRD_B)}, s{sOFF} offen {wpol}")
        g(f"s_add_u32 s{sOFF}, s{sOFF}, {2*2752}")
    g.c("b1: lane (s,c) -> hidden unit 4c+s")
    vHI = 60
    g(f"""
    s_mov_b32 s{SRD_C}, s{sB1}
    s_mov_b32 s{SRD_C+1}, s{sB1+1}
    s_add_u32 s{sT1}, s{sC0}, s{sNCH}
    s_lshl_b32 s{SRD_C+2}, s{sT1}, 4
    s_mov_b32 s{SRD_C+3}, 0x20000
    v_lshl_add_u32 v{vHI}, v{vC}, 2, v{vS}
    s_lshl_b32 s{sT1}, s{sC0}, 4
    v_lshlrev_b32 v{vT+5}, 1, v{vHI}
    v_add_u32 v{vT+5}, s{sT1}, v{vT+5}
    buffer_load_ushort v{vB1}, v{vT+5}, {sr(SRD_C)}, 0 offen
    """)
    g.c("ffn hidden partial: tile u rows k = 128j + 32s + 2u + (c>>3)")
    for u in range(16):
        a = vA + 4 * (u & 1)
        tb = vTB + (u & 1)
        g(f"v_mov_b32_dpp v{tb}, v{vX0} row_newbcast:{u} row_mask:0xf bank_mask:0x3")
        g(f"v_mov_b32_dpp v{tb}, v{vX1} row_newbcast:{u} row_mask:0xf bank_mask:0xc")
        for t in range(4):
            g(f"v_and_b32 v{a+t}, v{tb}, v{vM2+t}")
        g(f"s_waitcnt vmcnt({16-u})")
        g("s_nop 0")
        g(f"v_mfma_f32_16x16x32_bf16 {vr(vACC2)}, {vr(a)}, {vr(vW1+4*u)}, {vr(vACC2)}")
    st(12)
    g.c("hidden halves to LDS: lanes (s'<2,c'<8) -> [0..64), lanes (s'>=2,c'>=8) -> [64..128)")
    g(f"""
    v_lshrrev_b32 v{vT}, 1, v{vS}
    v_lshrrev_b32 v{vT+1}, 3, v{vC}
    v_cmp_eq_u32 vcc, v{vT}, v{vT+1}
    v_lshlrev_b32 v{vT}, 8, v{vT}
    v_and_b32 v{vT+1}, 7, v{vC}
    v_lshl_add_u32 v{vT}, v{vT+1}, 5, v{vT}
    v_and_b32 v{vT+1}, 1, v{vS}
    v_lshl_add_u32 v{vT}, v{vT+1}, 4, v{vT}
    s_lshl_b32 s{sT0}, s{sJ}, 9
    v_add_u32 v{vT}, s{sT0}, v{vT}
    s_and_saveexec_b64 {sr(sEX,2)}, vcc
    ds_write_b128 v{vT}, {vr(vACC2)} offset:{L_HP}
    s_mov_b64 exec, 1
    v_mov_b32 v{vT+1}, 1
    v_mov_b32 v{vT+2}, {L_CNT}
    s_waitcnt lgkmcnt(0)
    ds_add_u32 v{vT+2}, v{vT+1}
    s_mov_b64 exec, -1
    """)
    g.c("w2 tile t: row = 8c0 + 4t + s, cols j*128 + 8c ; wo tile t=2c'+u: rows d = 32 s + t")
    g(f"""
    s_lshl_b32 s{sT0}, s{sC0}, 13
    s_lshl_b32 s{sT2}, s{sJ}, 8
    v_lshlrev_b32 v{vOFF2}, 10, v{vS}
    v_lshl_add_u32 v{vOFF2}, v{vC}, 4, v{vOFF2}
    v_add_u32 v{vOFF2}, s{sT0}, v{vOFF2}
    v_add_u32 v{vOFF2}, s{sT2}, v{vOFF2}
    s_mov_b32 s{SRD_B}, s{sW2}
    s_mov_b32 s{SRD_B+1}, s{sW2+1}
    s_lshl_b32 s{sT1}, s{sNCH}, 13
    s_add_u32 s{SRD_B+2}, s{sT0}, s{sT1}
    s_mov_b32 s{SRD_B+3}, 0x20000
    s_lshl_b32 s{sT0}, s{sH}, 17
    s_add_u32 s{sT0}, s{sT0}, s{sT2}
    v_lshlrev_b32 v{vOFF}, 15, v{vS}
    v_lshl_add_u32 v{vOFF}, v{vC}, 4, v{vOFF}
    v_add_u32 v{vOFF}, s{sT0}, v{vOFF}
    v_lshlrev_b32 v{vT+5}, 2, v{vHI}
    s_mov_b32 s{sOFF}, 0
    """)
    if noffn:
        g(f"s_mov_b32 s{SRD_B+2}, 0")
    srd(SRD_A, sWO, 0 if nowo else 0x400000)
    hp = 48
    for t in range(12):
        if HD:
            g(f"s_waitcnt vmcnt({HD-1})")
        if not noffn:
            g(f"buffer_load_dwordx4 {vr(vW1+4*t)}, v{vOFF2}, {sr(SRD_B)}, s{sOFF} offen {wpol}")
        g(f"s_add_u32 s{sOFF}, s{sOFF}, 4096")
    g(f"s_mov_b32 s{sOFF}, 0")
    for t in range(32):
        if HD:
            g(f"s_waitcnt vmcnt({HD-1})")
        if not nowo:
            g(f"buffer_load_dwordx4 {vr(vW+4*t)}, v{vOFF}, {sr(SRD_A)}, s{sOFF} offen offset:{1024*(t&3)} {wpol}")
        if (t & 3) == 3:
            g(f"s_add_u32 s{sOFF}, s{sOFF}, 4096")
    st(2)
    g(f"""
    v_mov_b32 v{vT+2}, {L_CNT}
    L_hwait:
    ds_read_b32 v{vT+1}, v{vT+2}
    s_waitcnt lgkmcnt(0)
    v_readfirstlane_b32 s{sT1}, v{vT+1}
    s_nop 3
    s_cmp_ge_u32 s{sT1}, 4
    s_cbranch_scc1 L_hdone
    s_sleep 2
    s_branch L_hwait
    L_hdone:
    """)
    for j in range(4):
        g(f"ds_read_b32 v{hp+2*j}, v{vT+5} offset:{L_HP+512*j}")
        g(f"ds_read_b32 v{hp+2*j+1}, v{vT+5} offset:{L_HP+512*j+256}")
    g(f"""
    s_waitcnt lgkmcnt(0)
    v_add_f32 v{hp}, v{hp}, v{hp+1}
    v_add_f32 v{hp+2}, v{hp+2}, v{hp+3}
    v_add_f32 v{hp+4}, v{hp+4}, v{hp+5}
    v_add_f32 v{hp+6}, v{hp+6}, v{hp+7}
    v_add_f32 v{hp}, v{hp}, v{hp+2}
    v_add_f32 v{hp+4}, v{hp+4}, v{hp+6}
    v_add_f32 v{vT}, v{hp}, v{hp+4}
    v_cvt_pk_bf16_f32 v{vT}, v{vT}, v{vT}
    v_lshlrev_b32 v{vT}, 16, v{vT}
    s_waitcnt vmcnt(44)
    v_lshlrev_b32 v{vB1}, 16, v{vB1}
    v_add_f32 v{vT}, v{vT}, v{vB1}
    v_cvt_pk_bf16_f32 v{vT}, v{vT}, v{vT}
    v_lshlrev_b32 v{vT}, 16, v{vT}
    v_cmp_lt_f32 vcc, 0, v{vT}
    s_lshl_b32 s{sT1}, s{sNCH}, 3
    v_cmp_gt_u32 {sr(sEX,2)}, s{sT1}, v{vHI}
    s_nop 1
    s_and_b64 vcc, vcc, {sr(sEX,2)}
    s_nop 1
    v_cndmask_b32 v{vT}, 0, v{vT}, vcc
    v_mul_f32 v{vT}, v{vT}, v{vT}
    v_cvt_pk_bf16_f32 v{vH}, v{vT}, v{vT}
    """)
    for e in range(4):
        g(f"v_mov_b32 v{vACC+e}, 0")
    for t in range(12):
        a = vA + 4 * (t & 1)
        mkA(a, vH, t)
        g(f"s_waitcnt vmcnt({43-t})")
        g("s_nop 0")
        g(f"v_mfma_f32_16x16x32_bf16 {vr(vACC)}, {vr(a)}, {vr(vW1+4*t)}, {vr(vACC)}")
    st(3)
    g.c("clearing duty: wave 4 of WG (b, 2jj) clears column block jj of all 32 slots of batch b")
    g(f"""
    s_and_b32 s{sT0}, s{sH}, 0x19
    {'s_branch L_noclear' if noproto else 's_cbranch_scc1 L_noclear'}
    s_cmp_lg_u32 s{sJ}, 0
    s_cbranch_scc1 L_noclear
    s_lshl_b32 s{sT0}, s{sB}, 16
    s_add_u32 s{SRD_C}, s{sWS}, s{sT0}
    s_addc_u32 s{SRD_C+1}, s{sWS+1}, 0
    s_mov_b32 s{SRD_C+2}, 0x10000
    s_mov_b32 s{SRD_C+3}, 0x20000
    s_lshr_b32 s{sT2}, s{sH}, 1
    s_lshl_b32 s{sT0}, s{sT2}, 9
    v_lshrrev_b32 v{vT}, 5, v{vLANE}
    v_lshlrev_b32 v{vT}, 11, v{vT}
    v_and_b32 v{vT+1}, 31, v{vLANE}
    v_lshl_add_u32 v{vT}, v{vT+1}, 4, v{vT}
    v_add_u32 v{vT}, s{sT0}, v{vT}
    v_mov_b32 v{vW1}, -1
    v_mov_b32 v{vW1+1}, -1
    v_mov_b32 v{vW1+2}, -1
    v_mov_b32 v{vW1+3}, -1
    s_mov_b32 s{sOFF}, 0
    """)
    for i in range(0 if noclr else 16):
        g(f"buffer_store_dwordx4 {vr(vW1)}, v{vT}, {sr(SRD_C)}, s{sOFF} offen sc1")
        g(f"s_add_u32 s{sOFF}, s{sOFF}, 4096")
    g(f"""
    s_lshl_b32 s{sT0}, s{sB}, 2
    s_add_u32 s{sT0}, s{sT0}, s{sT2}
    s_lshl_b32 s{sT0}, s{sT0}, 3
    v_mov_b32 v{vT}, s{sT0}
    v_mov_b32 v{vT+1}, 1
    s_waitcnt vmcnt(0)
    s_mov_b64 exec, 1
    {'' if noflag else f'global_store_dword v{vT}, v{vT+1}, {sr(sDBG,2)} sc1'}
    s_mov_b64 exec, -1
    L_noclear:
    """)
    g(f"""
    s_lshl_b32 s{sT0}, s{sB}, 2
    s_add_u32 s{sT0}, s{sT0}, s{sJ}
    s_lshl_b32 s{sT0}, s{sT0}, 3
    v_mov_b32 v{vT+3}, s{sT0}
    s_lshl_b32 s{sT0}, s{sJ}, 3
    v_mov_b32 v{vT+4}, s{sT0}
    s_waitcnt vmcnt(0)
    s_lshl_b32 s{sT0}, s2, 11
    s_lshl_b32 s{sT1}, s{sJ}, 9
    s_add_u32 s{sT0}, s{sT0}, s{sT1}
    v_add_u32 v{vPO}, s{sT0}, v{vDL}
    v_lshlrev_b32 v{vT}, 7, v{vS}
    v_lshl_add_u32 v{vT}, v{vC}, 3, v{vT}
    v_mov_b32 v{vT+1}, 0
    v_mov_b32 v{vT+2}, -2
    s_mov_b32 s{sT3}, 0x3fb8aa3b
    """)
    o = 64
    m = 72
    u = 80
    g.c("wait for the four (m, l, flag) records, softmax scale of each streamer partial")
    g(f"""
    v_mov_b32 v{u+7}, {L_CNT+4}
    s_mov_b32 s{sIT}, 0
    L_mwait:
    ds_read_b32 v{u+6}, v{u+7}
    s_add_u32 s{sIT}, s{sIT}, 1
    s_waitcnt lgkmcnt(0)
    v_readfirstlane_b32 s{sT1}, v{u+6}
    s_cmp_gt_u32 s{sIT}, 0x400000
    s_cbranch_scc1 L_mdone
    s_cmp_ge_u32 s{sT1}, 4
    s_cbranch_scc1 L_mdone
    s_sleep 4
    s_branch L_mwait
    L_mdone:
    ds_read_b128 v[{m}:{m+3}], v{vT+1} offset:{L_ML}
    ds_read_b128 v[{m+4}:{m+7}], v{vT+1} offset:{L_ML+16}
    ds_read_b32 v{vT+5}, v{vT+4} offset:{L_ML+32}
    s_waitcnt lgkmcnt(0)
    v_max3_f32 v{u}, v{m}, v{m+2}, v{m+4}
    v_max_f32 v{u}, v{u}, v{m+6}
    v_sub_f32 v{m}, v{m}, v{u}
    v_sub_f32 v{m+2}, v{m+2}, v{u}
    v_sub_f32 v{m+4}, v{m+4}, v{u}
    v_sub_f32 v{m+6}, v{m+6}, v{u}
    v_mul_f32 v{m}, s{sT3}, v{m}
    v_mul_f32 v{m+2}, s{sT3}, v{m+2}
    v_mul_f32 v{m+4}, s{sT3}, v{m+4}
    v_mul_f32 v{m+6}, s{sT3}, v{m+6}
    v_exp_f32 v{m}, v{m}
    v_exp_f32 v{m+2}, v{m+2}
    v_exp_f32 v{m+4}, v{m+4}
    v_exp_f32 v{m+6}, v{m+6}
    v_mul_f32 v{u+1}, v{m}, v{m+1}
    v_fmac_f32 v{u+1}, v{m+2}, v{m+3}
    v_fmac_f32 v{u+1}, v{m+4}, v{m+5}
    v_fmac_f32 v{u+1}, v{m+6}, v{m+7}
    v_rcp_f32 v{u+2}, v{u+1}
    v_readfirstlane_b32 s{sT1}, v{vT+5}
    v_fma_f32 v{u+3}, -v{u+1}, v{u+2}, 1.0
    v_fmac_f32 v{u+2}, v{u+3}, v{u+2}
    v_mul_f32 v{m}, v{m}, v{u+2}
    v_mul_f32 v{m+2}, v{m+2}, v{u+2}
    v_mul_f32 v{m+4}, v{m+4}, v{u+2}
    v_mul_f32 v{m+6}, v{m+6}, v{u+2}
    s_mov_b32 s{sIT}, 0
    s_cmp_lg_u32 s{sT1}, 0
    s_cbranch_scc1 L_fdone
    {'s_branch L_fdone' if noproto else ''}
    L_fwait:
    global_load_dword v{vT+5}, v{vT+3}, {sr(sDBG,2)} sc1
    s_add_u32 s{sIT}, s{sIT}, 1
    s_waitcnt vmcnt(0)
    v_readfirstlane_b32 s{sT1}, v{vT+5}
    s_cmp_gt_u32 s{sIT}, 0x40000
    s_cbranch_scc1 L_fdone
    s_cmp_lg_u32 s{sT1}, 0
    s_cbranch_scc1 L_fdone
    s_sleep 8
    s_branch L_fwait
    L_fdone:
    """)
    st(8)
    g("s_barrier")
    g.c("combine the 4 streamer partials")
    g(f"""
    ds_read_b64 v[{o}:{o+1}], v{vT} offset:{L_OP}
    ds_read_b64 v[{o+2}:{o+3}], v{vT} offset:{L_OP+512}
    ds_read_b64 v[{o+4}:{o+5}], v{vT} offset:{L_OP+1024}
    ds_read_b64 v[{o+6}:{o+7}], v{vT} offset:{L_OP+1536}
    s_waitcnt lgkmcnt(3)
    v_mul_f32 v{o}, v{m}, v{o}
    v_mul_f32 v{o+1}, v{m}, v{o+1}
    s_waitcnt lgkmcnt(2)
    v_fmac_f32 v{o}, v{m+2}, v{o+2}
    v_fmac_f32 v{o+1}, v{m+2}, v{o+3}
    s_waitcnt lgkmcnt(1)
    v_fmac_f32 v{o}, v{m+4}, v{o+4}
    v_fmac_f32 v{o+1}, v{m+4}, v{o+5}
    s_waitcnt lgkmcnt(0)
    v_fmac_f32 v{o}, v{m+6}, v{o+6}
    v_fmac_f32 v{o+1}, v{m+6}, v{o+7}
    v_cvt_pk_bf16_f32 v{vX0}, v{o}, v{o}
    v_cvt_pk_bf16_f32 v{vX1}, v{o+1}, v{o+1}
    s_nop 0
    """)
    mkA(vA, vX0, 0)
    for t in range(32):
        if t < 31:
            t1 = t + 1
            mkA(vA + 4 * (t1 & 1), vX1 if (t1 & 1) else vX0, t1 >> 1)
        else:
            g("s_nop 0")
        g(f"v_mfma_f32_16x16x32_bf16 {vr(vACC)}, {vr(vA+4*(t&1))}, {vr(vW+4*t)}, {vr(vACC)}")
    g(f"""
    s_nop 7
    v_min_u32 v{vACC}, v{vT+2}, v{vACC}
    v_min_u32 v{vACC+1}, v{vT+2}, v{vACC+1}
    v_min_u32 v{vACC+2}, v{vT+2}, v{vACC+2}
    v_min_u32 v{vACC+3}, v{vT+2}, v{vACC+3}
    s_mov_b64 exec, {sr(sLO32,2)}
    global_store_dwordx4 v{vPO}, {vr(vACC)}, {sr(sWS,2)} sc1
    s_mov_b64 exec, -1
    """)
    if stamps:
        st(1)
        st(4)
        emit_stamps(g, sST, 14, sWS, sWAVE, vT, sT0)
    g("""
    L_end:
    s_endpgm
    """)

    out = HEADER + DOC
    out += f"; @launch grid=(256,1,1) block=(512,1,1) lds={LDS}\n"
    out += f""".amdgcn_target "amdgcn-amd-amdhsa--gfx950"
.text
.globl {KNAME}
.p2align 8
.type {KNAME},@function
{KNAME}:
"""
    out += g.text()
    out += f""".section .rodata,"a"
.p2align 6
.amdhsa_kernel {KNAME}
  .amdhsa_next_free_vgpr 256
  .amdhsa_next_free_sgpr {102 if (adapt or stamps) else 72}
  .amdhsa_accum_offset 256
  .amdhsa_group_segment_fixed_size 0
  .amdhsa_kernarg_size 104
  .amdhsa_user_sgpr_count 2
  .amdhsa_user_sgpr_kernarg_segment_ptr 1
  .amdhsa_system_sgpr_workgroup_id_x 1
  .amdhsa_float_denorm_mode_32 3
.end_amdhsa_kernel
"""
    return out


def emit_stamps(g, sST, n, sWS, sWAVE, vT, sT0):
    g(f"""
    s_lshl_b32 s{sT0}, s2, 3
    s_add_u32 s{sT0}, s{sT0}, s{sWAVE}
    s_lshl_b32 s{sT0}, s{sT0}, 7
    s_add_u32 s{sT0}, s{sT0}, 0x1000000
    v_mov_b32 v{vT}, s{sT0}
    s_getreg_b32 s{sT0}, hwreg(HW_REG_XCC_ID)
    s_waitcnt lgkmcnt(0)
    s_mov_b64 exec, 1
    """)
    for k in range(n):
        g(f"v_mov_b32 v{vT+1}, s{sST+2*k}")
        g(f"global_store_dword v{vT}, v{vT+1}, {sr(sWS,2)} offset:{4*k}")
    g(f"v_mov_b32 v{vT+1}, s{sT0}")
    g(f"global_store_dword v{vT}, v{vT+1}, {sr(sWS,2)} offset:64")
    g("s_mov_b64 exec, -1")


if __name__ == "__main__":
    out = sys.argv[1] if len(sys.argv) > 1 else "cdna_kernels/" + NAME + ".s"
    kw = {}
    for a in sys.argv[2:]:
        k, v = a.split("=")
        kw[k] = eval(v)
    open(out, "w").write(gen(**kw))
    print("wrote", out)
```
